```python
import torch

def _softmax(x, axis=-1):
    return torch.softmax(x, dim=axis)
def _gelu(x):
    return torch.nn.functional.gelu(x, approximate="tanh")
def _silu(x):
    return torch.nn.functional.silu(x)
def _sigmoid(x):
    return torch.sigmoid(x)
def _layernorm(x, axis=-1, eps=1e-5):
    m = x.mean(dim=axis, keepdim=True)
    v = x.var(dim=axis, keepdim=True, unbiased=False)
    return (x - m) / torch.sqrt(v + eps)
def _scatter_add(tgt, idx, src, axis=0):
    return tgt.clone().index_add_(axis, idx, src)
def _segment_sum(src, seg, n):
    out = torch.zeros((n,) + src.shape[1:], dtype=src.dtype)
    return out.index_add_(0, seg, src)
def _pad(x, pw):
    flat = tuple(v for pair in reversed(pw) for v in pair)
    return torch.nn.functional.pad(x, flat)

kernel_name = 'sequential_preLN__linear_kernel_hedgehog__dense_activation_squared_relu__prompt'

def setup_inputs():

    _w = (lambda a: (lambda t: t.to(torch.bfloat16) if t.is_floating_point() else t)(torch.as_tensor(a)))
    def _A_setup():
        B, S, D, H = 1, 2048, 1024, 32
        Dh = D // H
        return {
            "x": _w((lambda *s: torch.randn(*s, dtype=torch.bfloat16) * 0.05)(B, S, D)),
            "wqkv": _w((lambda *s: torch.randn(*s, dtype=torch.bfloat16) * 0.2)(D, 3 * D)),
            "w_phi": _w((lambda *s: torch.randn(*s, dtype=torch.bfloat16) * 0.2)(H, Dh, Dh) * (Dh ** -0.5)),
            "wo": _w((lambda *s: torch.randn(*s, dtype=torch.bfloat16) * 0.05)(D, D)),
        }
    _A_in = _A_setup()

    def _B_setup():
        B, S, D, F = 1, 2048, 1024, 3584
        return {
            "x": _w((lambda *s: torch.randn(*s, dtype=torch.bfloat16) * 0.05)(B, S, D)),
            "w1": _w((lambda *s: torch.randn(*s, dtype=torch.bfloat16) * 0.05)(D, F)),
            "b1": _w((lambda *s: torch.randn(*s, dtype=torch.bfloat16) * 0.4)(F)),
            "w2": _w((lambda *s: torch.randn(*s, dtype=torch.bfloat16) * 0.05)(F, D)),
            "b2": _w((lambda *s: torch.randn(*s, dtype=torch.bfloat16) * 3.2)(D)),
        }
    _B_in = _B_setup()

    return {
        "A_x": _A_in["x"],
        "A_wqkv": _A_in["wqkv"],
        "A_w_phi": _A_in["w_phi"],
        "A_wo": _A_in["wo"],
        "B_x": _B_in["x"],
        "B_w1": _B_in["w1"],
        "B_b1": _B_in["b1"],
        "B_w2": _B_in["w2"],
        "B_b2": _B_in["b2"],
    }

def reference(A_x, A_wqkv, A_w_phi, A_wo, B_x, B_w1, B_b1, B_w2, B_b2):
    def _A_ref(x, wqkv, w_phi, wo):
        B, S, D = x.shape
        H = 32; Dh = D // H
        qkv = (lambda x, *d: x.permute(*d))((x @ wqkv).reshape(B, S, 3, H, Dh), 2, 0, 3, 1, 4)
        q, k, v = qkv[0], qkv[1], qkv[2]
        pq = torch.einsum("bhsd,hdf->bhsf", q, w_phi)
        pk = torch.einsum("bhsd,hdf->bhsf", k, w_phi)
        phi_q = torch.concatenate([_softmax(pq, axis=-1), _softmax(-pq, axis=-1)], axis=-1)
        phi_k = torch.concatenate([_softmax(pk, axis=-1), _softmax(-pk, axis=-1)], axis=-1)
        kv = torch.einsum("bhsf,bhsd->bhfd", phi_k, v)
        z  = torch.einsum("bhsf->bhf", phi_k)
        num = torch.einsum("bhqf,bhfd->bhqd", phi_q, kv)
        den = torch.einsum("bhqf,bhf->bhq", phi_q, z)[..., None] + 1e-6
        o = num / den
        return (lambda x, *d: x.permute(*d))(o, 0, 2, 1, 3).reshape(B, S, D) @ wo

    def _B_ref(x, w1, b1, w2, b2):
        h = torch.einsum("bsd,df->bsf", x, w1) + b1
        zero = torch.zeros_like(h)
        r = torch.where(h > zero, h, zero)
        h = r * r
        out = torch.einsum("bsf,fd->bsd", h, w2) + b2
        return out

    x = A_x
    h = x + _A_ref(_layernorm(x, axis=-1), A_wqkv, A_w_phi, A_wo)
    h2 = h + _B_ref(_layernorm(h, axis=-1), B_w1, B_b1, B_w2, B_b2)
    return h2
```

```python
import re

HEADER = """; Kernarg layout for this problem (96 bytes, ptrs only, base s[0:1]):
;   offset  88: d_ws      268435456 bytes workspace (unspecified values whenever your kernel or launch list starts; a list's later launches find what earlier ones wrote)
"""

_reg_re = re.compile(r"^(-|abs\()?([vsa])(\d+|\[(\d+):(\d+)\])\)?$")

def parse_reg(tok):
    t = tok.strip()
    t = t.lstrip("-")
    if t.startswith("abs(") and t.endswith(")"): t = t[4:-1]
    if t.startswith("|") and t.endswith("|"): t = t[1:-1]
    if t in ("vcc",): return ("s", {106, 107})
    if t == "vcc_lo": return ("s", {106})
    if t == "vcc_hi": return ("s", {107})
    if t == "exec": return ("s", {126, 127})
    if t == "exec_lo": return ("s", {126})
    if t == "exec_hi": return ("s", {127})
    if t == "m0": return ("s", {124})
    m = re.match(r"^([vsa])(\d+)$", t)
    if m: return (m.group(1), {int(m.group(2))})
    m = re.match(r"^([vsa])\[(\d+):(\d+)\]$", t)
    if m: return (m.group(1), set(range(int(m.group(2)), int(m.group(3)) + 1)))
    return None

TRANS = ("v_exp_f32", "v_log_f32", "v_rcp_f32", "v_rsq_f32", "v_sqrt_f32", "v_sin_f32", "v_cos_f32", "v_rcp_iflag_f32")

class Ins:
    __slots__ = ("text", "op", "vr", "vw", "sr", "sw", "kind", "passes", "cregs", "label", "target", "nopn", "lds_dma", "wide_store")
    def __init__(self, text):
        self.text = text
        self.vr = set(); self.vw = set(); self.sr = set(); self.sw = set()
        self.kind = "other"; self.passes = 0; self.cregs = set(); self.label = None; self.target = None
        self.nopn = 0; self.lds_dma = False; self.wide_store = False
        t = text.split(";")[0].strip()
        self.op = ""
        if not t: self.kind = "blank"; return
        if t.endswith(":") and " " not in t: self.kind = "label"; self.label = t[:-1]; return
        if t.startswith("."): self.kind = "directive"; return
        parts = t.split(None, 1)
        op = parts[0]; self.op = op
        rest = parts[1] if len(parts) > 1 else ""
        ops = []; cur = ""; depth = 0
        for ch in rest:
            if ch in "[(": depth += 1
            if ch in "])": depth -= 1
            if ch == "," and depth == 0: ops.append(cur.strip()); cur = ""
            else: cur += ch
        if cur.strip(): ops.append(cur.strip())
        mods = ""
        if ops:
            sp = ops[-1].split(None, 1)
            if len(sp) > 1:
                ops[-1] = sp[0]; mods = sp[1]
        regs = [parse_reg(o) for o in ops]
        def addr(r):
            if r is None: return
            (self.vr if r[0] in "va" else self.sr).update(self._n(r))
        def addw(r):
            if r is None: return
            (self.vw if r[0] in "va" else self.sw).update(self._n(r))
        base = op.replace("_e32", "").replace("_e64", "").replace("_dpp", "").replace("_sdwa", "")
        if op.startswith("v_mfma"):
            self.kind = "mfma"
            self.passes = 8 if "32x32" in op else 4
            addw(regs[0]); addr(regs[1]); addr(regs[2]); addr(regs[3])
            if regs[3] is not None: self.cregs = set(self._n(regs[3]))
        elif op.startswith("v_cmp"):
            self.kind = "valu"; addw(regs[0])
            for r in regs[1:]: addr(r)
        elif base in ("v_readfirstlane_b32", "v_readlane_b32"):
            self.kind = "readlane"; addw(regs[0])
            for r in regs[1:]: addr(r)
        elif base.startswith("v_permlane"):
            self.kind = "permlane"
            for r in regs[:2]: addr(r); addw(r)
        elif op.startswith("v_"):
            self.kind = "trans" if base in TRANS else ("dpp" if ("_dpp" in op or "row_" in mods or "quad_perm" in mods) else "valu")
            addw(regs[0])
            start = 1
            if base in ("v_add_co_u32", "v_sub_co_u32", "v_addc_co_u32", "v_subb_co_u32", "v_mad_u64_u32", "v_div_scale_f32"):
                addw(regs[1]); start = 2
            for r in regs[start:]: addr(r)
            if base.startswith("v_fmac") or base.startswith("v_dot2c") or base.startswith("v_pk_fmac") or base == "v_writelane_b32":
                addr(regs[0])
            if base == "v_cndmask_b32" and len(ops) == 3: self.sr.update({106, 107})
        elif op.startswith("ds_"):
            self.kind = "ds"
            if op.startswith("ds_read") or op.startswith("ds_bpermute") or op.startswith("ds_permute") or op.startswith("ds_swizzle"):
                addw(regs[0])
                for r in regs[1:]: addr(r)
            elif "rtn" in op:
                addw(regs[0])
                for r in regs[1:]: addr(r)
            else:
                for r in regs: addr(r)
        elif op.startswith("buffer_") or op.startswith("global_") or op.startswith("flat_"):
            self.kind = "vmem"
            allmods = mods + " " + " ".join(ops)
            if op in ("buffer_inv", "buffer_wbl2"):
                pass
            elif op.startswith("buffer_load") and re.search(r"\blds\b", mods):
                self.lds_dma = True
                for r in regs: addr(r)
            elif op.startswith("global_load_lds"):
                self.lds_dma = True
                for r in regs: addr(r)
            elif "load" in op:
                addw(regs[0])
                for r in regs[1:]: addr(r)
            elif "atomic" in op:
                for r in regs: addr(r)
                if re.search(r"\bsc0\b", mods):
                    addw(regs[0])
            else:
                for r in regs: addr(r)
                if "x4" in op or "x3" in op: self.wide_store = True
            if self.wide_store:
                d = regs[0] if op.startswith("buffer_") else regs[1]
                self.cregs = set(self._n(d))
        elif op.startswith("s_"):
            self.kind = "salu"
            if op == "s_nop":
                self.kind = "nop"; self.nopn = int(ops[0], 0) + 1
            elif op.startswith("s_cbranch") or op == "s_branch":
                self.kind = "branch"; self.target = ops[0]
            elif op.startswith("s_cmp") or op in ("s_waitcnt", "s_barrier", "s_endpgm", "s_setprio", "s_sleep", "s_bitcmp1_b32", "s_bitcmp0_b32"):
                for r in regs: addr(r)
            else:
                if regs: addw(regs[0])
                for r in regs[1:]: addr(r)
                if op in ("s_and_saveexec_b64", "s_or_saveexec_b64"): self.sw.update({126, 127})
    @staticmethod
    def _n(r):
        if r[0] == "a": return {x + 512 for x in r[1]}
        return r[1]

def required(prod, cons):
    need = 0
    pk = prod.kind; ck = cons.kind
    pv = pk in ("valu", "trans", "dpp", "permlane", "readlane")
    cv = ck in ("valu", "trans", "dpp", "permlane", "readlane")
    if pv and ck == "mfma" and (prod.vw & cons.vr): need = max(need, 2)
    if pk == "mfma":
        P = prod.passes
        raw = {4: 8, 8: 12}[P]
        if ck == "mfma":
            if prod.vw & cons.vr:
                ab = cons.vr - cons.cregs
                if (prod.vw & cons.cregs):
                    if prod.vw == cons.cregs and prod.passes == cons.passes: c = 0
                    else: c = {4: 6, 8: 10}[P]
                    need = max(need, c)
                if prod.vw & ab: need = max(need, raw)
            if (prod.vw & cons.vw) and not (prod.vw & cons.cregs): need = max(need, {4: 6, 8: 10}[P])
        elif cv or ck in ("ds", "vmem"):
            if (prod.vw & cons.vr) or (prod.vw & cons.vw): need = max(need, raw)
        if cv and (prod.cregs & cons.vw): need = max(need, {4: 3, 8: 7}[P])
    if pk == "trans" and (cv or ck == "mfma") and ck != "trans" and (prod.vw & cons.vr): need = max(need, 1)
    if pk == "trans" and ck in ("ds", "vmem") and (prod.vw & cons.vr): need = max(need, 1)
    if pv and ck == "permlane" and (prod.vw & cons.vr): need = max(need, 2)
    if pv and ck == "readlane" and (prod.vw & cons.vr): need = max(need, 1)
    if pv and ck == "dpp" and (prod.vw & cons.vr): need = max(need, 2)
    if pv and prod.sw:
        if cv and (prod.sw & cons.sr): need = max(need, 4 if ck == "readlane" else 2)
        if ck == "vmem" and (prod.sw & cons.sr): need = max(need, 5)
        if ck in ("salu", "branch") and (prod.sw & cons.sr): need = max(need, 4)
        if ck == "branch" and ({106,107} & prod.sw) and "vcc" in cons.op: need = max(need, 5)
    if pk == "salu" and (124 in prod.sw) and (cons.lds_dma): need = max(need, 1)
    if pk == "vmem" and prod.wide_store and (cv or ck in ("mfma", "ds", "vmem")) and (prod.cregs & cons.vw): need = max(need, 2)
    if pk == "salu" and ({126,127} & prod.sw) and ck in ("dpp", "permlane", "readlane", "mfma"): need = max(need, 4)
    return need

MAXD = 14
def states(i):
    if i.kind in ("blank", "label", "directive"): return 0
    if i.kind == "nop": return i.nopn
    return 1

def insert_nops(lines):
    ins = [Ins(l) for l in lines]
    def build():
        labels = {x.label: k for k, x in enumerate(ins) if x.kind == "label"}
        preds = {}
        for k, x in enumerate(ins):
            if x.kind == "branch" and x.target in labels:
                preds.setdefault(labels[x.target], []).append(k)
        return preds
    def needed(k, preds):
        cons = ins[k]
        best = 0
        stack = [(k - 1, 0, False)]
        seen = set()
        while stack:
            j, d, viab = stack.pop()
            first = True
            while j >= 0 and d < MAXD:
                if (j, d) in seen: break
                seen.add((j, d))
                p = ins[j]
                if p.kind == "label":
                    for b in preds.get(j, []):
                        stack.append((b, d, True))
                    j -= 1; first = False; continue
                if p.op in ("s_branch", "s_endpgm") and not (first and viab):
                    break
                first = False
                r = required(p, cons)
                if r > d: best = max(best, r - d)
                d += states(p)
                j -= 1
        return best
    for it in range(10):
        changed = False
        preds = build()
        k = 0
        while k < len(ins):
            x = ins[k]
            if x.kind not in ("blank", "label", "directive", "nop"):
                n = needed(k, preds)
                if n > 0:
                    changed = True
                    while n > 0:
                        c = min(n, 16)
                        ins.insert(k, Ins("s_nop %d" % (c - 1)))
                        k += 1; n -= c
                    preds = build()
            k += 1
        if not changed: break
    else:
        raise RuntimeError("nop insertion did not converge")
    return [x.text for x in ins]

class Asm:
    def __init__(self):
        self.lines = []
    def __call__(self, s=""):
        for l in s.split("\n"):
            self.lines.append(l)
    def label(self, n):
        self.lines.append(n + ":")
    def c(self, s):
        self.lines.append("; " + s)
    def text(self, nops=True):
        l = self.lines
        if nops: l = insert_nops(l)
        return "\n".join(l) + "\n"

def kernel_begin(a, name):
    a(".text")
    a(".globl %s" % name)
    a(".p2align 8")
    a(".type %s,@function" % name)
    a.label(name)

def kernel_desc(name, vgpr, sgpr=96, accum=None, wg_y=False):
    if accum is None:
        accum = min(256, (vgpr + 3) // 4 * 4)
    s = ".amdhsa_kernel %s\n" % name
    s += "  .amdhsa_next_free_vgpr %d\n" % vgpr
    s += "  .amdhsa_next_free_sgpr %d\n" % sgpr
    s += "  .amdhsa_accum_offset %d\n" % accum
    s += "  .amdhsa_group_segment_fixed_size 0\n"
    s += "  .amdhsa_kernarg_size 96\n"
    s += "  .amdhsa_user_sgpr_count 2\n"
    s += "  .amdhsa_user_sgpr_kernarg_segment_ptr 1\n"
    s += "  .amdhsa_system_sgpr_workgroup_id_x 1\n"
    if wg_y: s += "  .amdhsa_system_sgpr_workgroup_id_y 1\n"
    s += "  .amdhsa_float_denorm_mode_32 3\n"
    s += "  .amdhsa_float_denorm_mode_16_64 3\n"
    s += ".end_amdhsa_kernel\n"
    return s

def vr(b, n=1):
    return "v%d" % b if n == 1 else "v[%d:%d]" % (b, b + n - 1)
def sr(b, n=1):
    return "s%d" % b if n == 1 else "s[%d:%d]" % (b, b + n - 1)
```

```python
from asmgen import *

WS_XN   = 0x0000000
WS_Q    = 0x0400000
WS_KVP  = 0x0800000
WS_ZP   = 0x0C00000
WS_O    = 0x1000000
WS_H    = 0x1400000
WS_HSTP = 0x1800000
WS_CS1P = 0x1900000
WS_F    = 0x2000000
WS_PROF = 0x4000000
SZ_ACT  = 2048*1024*2
SZ_F    = 2048*3584*2

KA = dict(x=0, wqkv=8, wphi=16, wo=24, w1=40, b1=48, w2=56, b2=64, out=72, dbg=80, ws=88)
LOG2E = 0x3fb8aa3b

class G:
    prof = False

def ldptr(a, sdst, name):
    a("s_load_dwordx2 %s, s[0:1], %d" % (sr(sdst, 2), KA[name]))

def srd(a, d, p, off, size):
    if off:
        a("s_add_u32 s%d, s%d, 0x%x" % (d, p, off))
        a("s_addc_u32 s%d, s%d, 0" % (d + 1, p + 1))
    else:
        a("s_mov_b32 s%d, s%d" % (d, p))
        a("s_mov_b32 s%d, s%d" % (d + 1, p + 1))
    a("s_mov_b32 s%d, 0x%x" % (d + 2, size))
    a("s_mov_b32 s%d, 0x20000" % (d + 3))

def stamp(a, i):
    if G.prof:
        a("s_memrealtime s[%d:%d]" % (84 + 2*i, 85 + 2*i))

def prof_store(a, kidx, wsptr):
    if not G.prof: return
    a("s_waitcnt lgkmcnt(0)")
    srd(a, 76, wsptr, WS_PROF + kidx * 0x4000, 0x4000)
    a("v_mov_b32 v4, s84\nv_mov_b32 v5, s86\nv_mov_b32 v6, s88\nv_mov_b32 v7, s90")
    a("s_lshl_b32 s80, s2, 4")
    a("v_mov_b32 v2, s80")
    a("s_mov_b64 s[82:83], exec")
    a("s_mov_b64 exec, 1")
    a("buffer_store_dwordx4 v[4:7], v2, s[76:79], 0 offen")
    a("s_mov_b64 exec, s[82:83]")

def tile_map(a, mx, nx):
    mgroups = 16 // mx
    import math
    lm = int(math.log2(mgroups)); lmx = int(math.log2(mx))
    a("s_and_b32 s6, s2, 7")
    a("s_lshr_b32 s7, s2, 3")
    a("s_and_b32 s4, s6, %d" % (mgroups - 1))
    a("s_lshr_b32 s5, s6, %d" % lm)
    a("s_mul_i32 s4, s4, %d" % mx)
    a("s_mul_i32 s5, s5, %d" % nx)
    a("s_and_b32 s6, s7, %d" % (mx - 1))
    a("s_add_u32 s4, s4, s6")
    a("s_lshr_b32 s6, s7, %d" % lmx)
    a("s_add_u32 s5, s5, s6")

class Cfg:
    pass

S_XOFF, S_WOFF, S_LDS, S_TMP, S_CNT, S_DELTA, S_BUF = 48, 49, 50, 51, 52, 53, 54
V_LANE = 1

def emit_issue(a, c):
    if c.xmode == "row":
        for j in range(4):
            a("s_add_u32 m0, s%d, %d" % (S_LDS, j * 1024))
            a("s_add_u32 s%d, s%d, %d" % (S_TMP, S_XOFF, j * 8 * c.ldx))
            a("buffer_load_dwordx4 v%d, s[8:11], s%d offen lds" % (2 + (j & 1), S_TMP))
        a("s_add_u32 s%d, s%d, 128" % (S_XOFF, S_XOFF))
    else:
        a("s_mov_b32 m0, s%d" % S_LDS)
        a("s_nop 0")
        for j in range(4):
            a("buffer_load_dwordx4 v2, s[8:11], s%d offen offset:%d lds" % (S_XOFF, j * 1024))
        a("s_add_u32 s%d, s%d, 4096" % (S_XOFF, S_XOFF))
    if c.wmode == "pair":
        NP = c.NB // 2
        for kpl in range(2):
            for np_ in range(NP):
                a("s_add_u32 m0, s55, %d" % ((kpl * NP + np_) * 1024))
                a("s_add_u32 s%d, s%d, %d" % (S_TMP, S_WOFF, kpl * 8 * c.ldw + c.strip[np_]))
                a("buffer_load_dwordx4 v4, s[12:15], s%d offen lds" % S_TMP)
    else:
        for t in range(7):
            a("s_add_u32 m0, s55, %d" % (t * 1024))
            a("s_nop 0")
            a("buffer_load_dwordx4 v%d, s[12:15], s%d offen lds" % (4 + t, S_WOFF))
    a("s_add_u32 s%d, s%d, %d" % (S_WOFF, S_WOFF, 64 * c.ldw))
    a("s_add_u32 s%d, s%d, 1" % (S_BUF, S_BUF))
    a("s_cmp_eq_u32 s%d, %d" % (S_BUF, c.NS))
    a("s_cselect_b32 s%d, s62, s61" % S_DELTA)
    a("s_cselect_b32 s%d, 0, s%d" % (S_BUF, S_BUF))
    a("s_add_u32 s%d, s%d, s%d" % (S_LDS, S_LDS, S_DELTA))
    a("s_add_u32 s55, s55, s%d" % S_DELTA)

def emit_loader(a, c):
    n = c.name
    a.label(n + "_loader")
    a("s_sub_u32 s3, s3, 4")
    if c.xmode == "row":
        a("v_lshrrev_b32 v10, 3, v1")
        a("v_mul_u32_u24 v10, %d, v10" % c.ldx)
        a("v_and_b32 v11, 7, v1")
        a("v_lshrrev_b32 v12, 4, v1")
        a("v_xor_b32 v13, v11, v12")
        a("v_lshl_add_u32 v2, v13, 4, v10")
        a("v_xor_b32 v13, 4, v13")
        a("v_lshl_add_u32 v3, v13, 4, v10")
        a("s_lshl_b32 s%d, s4, 7" % S_XOFF)
        a("s_lshl_b32 s%d, s3, 5" % S_TMP)
        a("s_add_u32 s%d, s%d, s%d" % (S_XOFF, S_XOFF, S_TMP))
        a("s_mul_i32 s%d, s%d, %d" % (S_XOFF, S_XOFF, c.ldx))
    else:
        a("v_lshlrev_b32 v2, 4, v1")
        a("s_lshl_b32 s%d, s4, 2" % S_XOFF)
        a("s_add_u32 s%d, s%d, s3" % (S_XOFF, S_XOFF))
        a("s_mul_i32 s%d, s%d, %d" % (S_XOFF, S_XOFF, c.K // 8 * 512))
    if c.wmode == "pair":
        a("v_lshrrev_b32 v10, 5, v1")
        a("v_lshlrev_b32 v10, 2, v10")
        a("v_bfe_u32 v11, v1, 2, 2")
        a("v_add_u32 v10, v10, v11")
        a("v_mul_u32_u24 v10, %d, v10" % c.ldw)
        a("v_bfe_u32 v11, v1, 4, 1")
        a("v_lshl_add_u32 v10, v11, 6, v10")
        a("v_and_b32 v11, 3, v1")
        a("v_lshl_add_u32 v4, v11, 4, v10")
        a("s_mul_i32 s%d, s3, %d" % (S_WOFF, 16 * c.ldw))
        a("s_mul_i32 s%d, s5, %d" % (S_TMP, c.ntile_bytes))
        a("s_add_u32 s%d, s%d, s%d" % (S_WOFF, S_WOFF, S_TMP))
        a("s_mul_i32 s55, s3, %d" % (2 * (c.NB // 2) * 1024))
    else:
        a("v_lshrrev_b32 v12, 4, v1")
        a("v_bfe_u32 v13, v1, 2, 2")
        a("v_and_b32 v14, 3, v1")
        a("v_lshlrev_b32 v14, 4, v14")
        for t in range(7):
            a("v_add_u32 v15, %d, v12" % (4 * t))
            a("v_mul_u32_u24 v16, 37, v15")
            a("v_lshrrev_b32 v16, 8, v16")
            a("v_mul_u32_u24 v17, 7, v16")
            a("v_sub_u32 v17, v15, v17")
            a("v_lshl_add_u32 v16, v16, 2, v13")
            a("v_mul_u32_u24 v16, %d, v16" % c.ldw)
            a("v_lshl_add_u32 v16, v17, 6, v16")
            a("v_add_u32 v%d, v16, v14" % (4 + t))
        a("s_mul_i32 s%d, s3, %d" % (S_WOFF, 16 * c.ldw))
        a("s_mul_i32 s%d, s5, %d" % (S_TMP, c.ntile_bytes))
        a("s_add_u32 s%d, s%d, s%d" % (S_WOFF, S_WOFF, S_TMP))
        a("s_mul_i32 s55, s3, 7168")
    a("s_add_u32 s55, s55, 16384")
    a("s_lshl_b32 s%d, s3, 12" % S_LDS)
    a("s_mov_b32 s%d, 0" % S_BUF)
    if c.loader_pre: c.loader_pre(a, c)
    npw = 4 + (c.NB * 4) // 4
    assert (c.NS - 1) * npw <= 63
    a("s_mov_b32 s%d, 0" % S_CNT)
    a.label(n + "_lpro")
    emit_issue(a, c)
    a("s_add_u32 s%d, s%d, 1" % (S_CNT, S_CNT))
    a("s_cmp_lt_u32 s%d, %d" % (S_CNT, c.NS))
    a("s_cbranch_scc1 %s_lpro" % n)
    a("s_waitcnt vmcnt(%d)" % ((c.NS - 1) * npw))
    a("s_barrier")
    a("s_mov_b32 s%d, 0" % S_CNT)
    a.label(n + "_lloop")
    a("s_waitcnt vmcnt(%d)" % ((c.NS - 2) * npw))
    a("s_barrier")
    emit_issue(a, c)
    a("s_add_u32 s%d, s%d, 1" % (S_CNT, S_CNT))
    a("s_cmp_lt_u32 s%d, %d" % (S_CNT, c.NST - c.NS))
    a("s_cbranch_scc1 %s_lloop" % n)
    for i in range(c.NST - c.NS, c.NST):
        w = max(0, min(c.NS - 2, c.NST - 2 - i)) * npw
        a("s_waitcnt vmcnt(%d)" % w)
        a("s_barrier")
    if c.loader_post: c.loader_post(a, c)
    a("s_endpgm")

def emit_reads(c, p, s):
    r = []
    xs = []
    for t in range(c.TBW):
        if c.xmode == "row":
            xs.append("ds_read_b128 %s, v%d offset:%d" % (vr(c.XF[p][t], 4), c.VXA + s, t * 4096))
        else:
            xs.append("ds_read_b128 %s, v%d offset:%d" % (vr(c.XF[p][t], 4), c.VXA, t * 4096 + s * 1024))
    ws = []
    for b in range(c.NBW):
        for e in range(2):
            if c.wmode == "pair":
                NP = c.NB // 2
                off = (2 * s * NP + b) * 1024 + e * 512
            else:
                off = ((4 * s + e) * 7 + b) * 256
            ws.append("ds_read_b64_tr_b16 %s, v%d offset:%d" % (vr(c.WF[p][b] + 2 * e, 2), c.VWA, 16384 + off))
    r = ws[:2] + xs + ws[2:]
    return r

def emit_compute_addr(a, c):
    if c.WN == 2:
        a("s_lshr_b32 s6, s3, 1")
        a("s_and_b32 s7, s3, 1")
    else:
        a("s_mov_b32 s6, s3")
        a("s_mov_b32 s7, 0")
    a("v_and_b32 v10, 31, v1")
    a("v_lshrrev_b32 v11, 5, v1")
    if c.xmode == "row":
        a("v_bfe_u32 v12, v10, 1, 3")
        a("v_xor_b32 v12, v12, v11")
        a("s_mul_i32 s56, s6, %d" % (c.TBW * 32 * 128))
        a("v_lshlrev_b32 v13, 7, v10")
        a("v_add_u32 v13, s56, v13")
        for s in range(4):
            a("v_xor_b32 v14, %d, v12" % (2 * s))
            a("v_lshl_add_u32 v%d, v14, 4, v13" % (c.VXA + s))
    else:
        a("s_mul_i32 s56, s6, %d" % (c.TBW * 4096))
        a("v_lshlrev_b32 v13, 4, v1")
        a("v_add_u32 v%d, s56, v13" % c.VXA)
    a("v_bfe_u32 v12, v1, 2, 2")
    a("v_lshlrev_b32 v12, 6, v12")
    a("v_bfe_u32 v13, v1, 4, 1")
    a("v_lshl_add_u32 v12, v13, 5, v12")
    a("v_and_b32 v13, 3, v1")
    a("v_lshl_add_u32 v12, v13, 3, v12")
    if c.wmode == "pair":
        a("v_mul_u32_u24 v13, %d, v11" % ((c.NB // 2) * 1024))
        a("s_lshl_b32 s56, s7, 8")
        a("v_add3_u32 v%d, v12, v13, s56" % c.VWA)
    else:
        a("v_mul_u32_u24 v13, %d, v11" % (2 * 7 * 256))
        a("v_add_u32 v%d, v12, v13" % c.VWA)

def emit_mainloop(a, c):
    n = c.name
    nx = 4 if c.xmode == "row" else 1
    for r in emit_reads(c, 0, 0): a(r)
    a("s_mov_b32 s%d, 0" % S_CNT)
    a("s_mov_b32 s%d, 0" % S_BUF)
    a.label(n + "_loop")
    for s in range(4):
        p = s & 1
        a("s_waitcnt lgkmcnt(0)")
        if s == 3:
            a("s_add_u32 s%d, s%d, 1" % (S_BUF, S_BUF))
            a("s_cmp_eq_u32 s%d, %d" % (S_BUF, c.NS))
            a("s_cselect_b32 s%d, s62, s61" % S_DELTA)
            a("s_cselect_b32 s%d, 0, s%d" % (S_BUF, S_BUF))
            for q in range(nx):
                a("v_add_u32 v%d, s%d, v%d" % (c.VXA + q, S_DELTA, c.VXA + q))
            a("v_add_u32 v%d, s%d, v%d" % (c.VWA, S_DELTA, c.VWA))
            a("s_barrier")
        reads = emit_reads(c, 1 - p, (s + 1) & 3)
        mf = []
        for b in range(c.NBW):
            for t in range(c.TBW):
                acc = c.ACC[t][b]
                if c.orient[b] == "T":
                    mf.append("v_mfma_f32_32x32x16_bf16 %s, %s, %s, %s" % (vr(acc, 16), vr(c.WF[p][b], 4), vr(c.XF[p][t], 4), vr(acc, 16)))
                else:
                    mf.append("v_mfma_f32_32x32x16_bf16 %s, %s, %s, %s" % (vr(acc, 16), vr(c.XF[p][t], 4), vr(c.WF[p][b], 4), vr(acc, 16)))
        per = c.reads_per_gap
        ri = 0
        for m in mf:
            a(m)
            for _ in range(per):
                if ri < len(reads): a(reads[ri]); ri += 1
        while ri < len(reads): a(reads[ri]); ri += 1
    a("s_add_u32 s%d, s%d, 1" % (S_CNT, S_CNT))
    a("s_cmp_lt_u32 s%d, %d" % (S_CNT, c.NST))
    a("s_cbranch_scc1 %s_loop" % n)
    a("s_waitcnt lgkmcnt(0)")

def gemm_kernel(a, c, kidx):
    n = c.name
    kernel_begin(a, n)
    a("s_cmp_ge_u32 s2, 256")
    a("s_cbranch_scc1 %s_end" % n)
    stamp(a, 0)
    for i, pn in enumerate(c.ptrs): ldptr(a, 32 + 2 * i, pn)
    tile_map(a, *c.xcdmap)
    a("v_lshrrev_b32 v2, 6, v0")
    a("v_and_b32 v1, 63, v0")
    a("v_readfirstlane_b32 s3, v2")
    a("s_waitcnt lgkmcnt(0)")
    c.srds(a, c)
    a("s_mov_b32 s61, %d" % c.SS)
    a("s_mov_b32 s62, 0x%x" % ((-(c.NS - 1) * c.SS) & 0xffffffff))
    a("s_cmp_ge_u32 s3, 4")
    a("s_cbranch_scc1 %s_loader" % n)
    emit_compute_addr(a, c)
    for t in range(c.TBW):
        for b in range(c.NBW):
            for r in range(16): a("v_mov_b32 v%d, 0" % (c.ACC[t][b] + r))
    if c.compute_pre: c.compute_pre(a, c)
    a("s_waitcnt lgkmcnt(0)")
    a("s_barrier")
    stamp(a, 1)
    emit_mainloop(a, c)
    stamp(a, 2)
    c.epilogue(a, c)
    if G.prof:
        a("s_waitcnt vmcnt(0)")
        stamp(a, 3)
        a("s_cmp_lg_u32 s3, 0")
        a("s_cbranch_scc1 %s_end" % n)
        prof_store(a, kidx, c.wsptr)
    a("s_endpgm")
    emit_loader(a, c)
    a.label(n + "_end")
    a("s_endpgm")
```

```python
from gen import *

S_L2E = 60

def pack_nat(a, acc, P):
    for g in range(4):
        a("v_cvt_pk_bf16_f32 v%d, v%d, v%d" % (P + 2*g, acc + 4*g, acc + 4*g + 1))
        a("v_cvt_pk_bf16_f32 v%d, v%d, v%d" % (P + 2*g + 1, acc + 4*g + 2, acc + 4*g + 3))
    for s in range(2):
        a("v_permlane32_swap_b32 v%d, v%d" % (P + 4*s, P + 4*s + 2))
        a("v_permlane32_swap_b32 v%d, v%d" % (P + 4*s + 1, P + 4*s + 3))

def pack_raw(a, acc, P):
    for g in range(4):
        a("v_cvt_pk_bf16_f32 v%d, v%d, v%d" % (P + 2*g, acc + 4*g, acc + 4*g + 1))
        a("v_cvt_pk_bf16_f32 v%d, v%d, v%d" % (P + 2*g + 1, acc + 4*g + 2, acc + 4*g + 3))

def xhalf(a, op, v, t):
    a("v_mov_b32 v%d, v%d" % (t, v))
    a("v_permlane32_swap_b32 v%d, v%d" % (v, t))
    a("%s v%d, v%d, v%d" % (op, v, v, t))

def wave_sum(a, v, t):
    for r in (8, 4, 2, 1):
        a("v_add_f32_dpp v%d, v%d, v%d row_ror:%d row_mask:0xf bank_mask:0xf" % (v, v, v, r))
    a("v_mov_b32 v%d, v%d" % (t, v))
    a("v_permlane16_swap_b32 v%d, v%d" % (v, t))
    a("v_add_f32 v%d, v%d, v%d" % (v, v, t))
    xhalf(a, "v_add_f32", v, t)

def softmax_dual(a, P, E, T, PP, PN):
    mx, mn, t0, t1, sp, sn = T, T+1, T+2, T+3, T+4, T+5
    a("v_max3_f32 v%d, v%d, v%d, v%d" % (mx, P, P+1, P+2))
    a("v_min3_f32 v%d, v%d, v%d, v%d" % (mn, P, P+1, P+2))
    for r in range(3, 15, 2):
        a("v_max3_f32 v%d, v%d, v%d, v%d" % (mx, mx, P+r, P+r+1))
        a("v_min3_f32 v%d, v%d, v%d, v%d" % (mn, mn, P+r, P+r+1))
    a("v_max_f32 v%d, v%d, v%d" % (mx, mx, P+15))
    a("v_min_f32 v%d, v%d, v%d" % (mn, mn, P+15))
    a("v_mov_b32 v%d, v%d" % (t0, mx))
    a("v_mov_b32 v%d, v%d" % (t1, mn))
    a("v_permlane32_swap_b32 v%d, v%d" % (mx, t0))
    a("v_permlane32_swap_b32 v%d, v%d" % (mn, t1))
    a("v_max_f32 v%d, v%d, v%d" % (mx, mx, t0))
    a("v_min_f32 v%d, v%d, v%d" % (mn, mn, t1))
    a("v_mul_f32 v%d, s%d, v%d" % (mx, S_L2E, mx))
    a("v_mul_f32 v%d, s%d, v%d" % (mn, S_L2E, mn))
    for r in range(16):
        a("v_fma_f32 v%d, v%d, s%d, -v%d" % (E+r, P+r, S_L2E, mx))
        a("v_fma_f32 v%d, -v%d, s%d, v%d" % (P+r, P+r, S_L2E, mn))
    for r in range(16):
        a("v_exp_f32 v%d, v%d" % (E+r, E+r))
        a("v_exp_f32 v%d, v%d" % (P+r, P+r))
    a("v_add_f32 v%d, v%d, v%d" % (sp, E, E+1))
    a("v_add_f32 v%d, v%d, v%d" % (sn, P, P+1))
    for r in range(2, 16):
        a("v_add_f32 v%d, v%d, v%d" % (sp, sp, E+r))
        a("v_add_f32 v%d, v%d, v%d" % (sn, sn, P+r))
    a("v_mov_b32 v%d, v%d" % (t0, sp))
    a("v_mov_b32 v%d, v%d" % (t1, sn))
    a("v_permlane32_swap_b32 v%d, v%d" % (sp, t0))
    a("v_permlane32_swap_b32 v%d, v%d" % (sn, t1))
    a("v_add_f32 v%d, v%d, v%d" % (sp, sp, t0))
    a("v_add_f32 v%d, v%d, v%d" % (sn, sn, t1))
    a("v_rcp_f32 v%d, v%d" % (sp, sp))
    a("v_rcp_f32 v%d, v%d" % (sn, sn))
    for r in range(16):
        a("v_mul_f32 v%d, v%d, v%d" % (E+r, E+r, sp))
        a("v_mul_f32 v%d, v%d, v%d" % (P+r, P+r, sn))
    pack_raw(a, E, PP)
    pack_raw(a, P, PN)

MF = "v_mfma_f32_32x32x16_bf16"
def mfma(a, d, x, y, c):
    a("%s %s, %s, %s, %s" % (MF, vr(d, 16), vr(x, 4), vr(y, 4), vr(c, 16) if c is not None else "0"))

def k1(a, kidx):
    n = "k1_kernel"
    kernel_begin(a, n)
    a("s_cmp_ge_u32 s2, 480")
    a("s_cbranch_scc1 k1_end")
    stamp(a, 0)
    ldptr(a, 32, "x"); ldptr(a, 34, "ws"); ldptr(a, 36, "w1")
    a("v_lshrrev_b32 v2, 6, v0")
    a("v_and_b32 v1, 63, v0")
    a("v_readfirstlane_b32 s3, v2")
    a("s_waitcnt lgkmcnt(0)")
    a("s_cmp_ge_u32 s2, 256")
    a("s_cbranch_scc1 k1_cs")
    srd(a, 8, 32, 0, SZ_ACT)
    srd(a, 12, 34, WS_XN, SZ_ACT)
    a("s_lshl_b32 s4, s2, 3")
    a("s_add_u32 s4, s4, s3")
    a("s_lshl_b32 s4, s4, 11")
    a("v_lshlrev_b32 v2, 4, v1")
    a("buffer_load_dwordx4 v[4:7], v2, s[8:11], s4 offen")
    a("buffer_load_dwordx4 v[8:11], v2, s[8:11], s4 offen offset:1024")
    a("s_waitcnt vmcnt(0)")
    X = 16
    for i in range(8):
        a("v_lshlrev_b32 v%d, 16, v%d" % (X + 2*i, 4 + i))
        a("v_and_b32 v%d, 0xffff0000, v%d" % (X + 2*i + 1, 4 + i))
    a("v_add_f32 v12, v%d, v%d" % (X, X+1))
    for i in range(2, 16): a("v_add_f32 v12, v12, v%d" % (X + i))
    wave_sum(a, 12, 13)
    a("v_mul_f32 v12, 0x3a800000, v12")
    for i in range(16): a("v_sub_f32 v%d, v%d, v12" % (X + i, X + i))
    a("v_mul_f32 v14, v%d, v%d" % (X, X))
    for i in range(1, 16): a("v_fmac_f32 v14, v%d, v%d" % (X + i, X + i))
    wave_sum(a, 14, 13)
    a("v_mov_b32 v15, 0x3727c5ac")
    a("v_fmac_f32 v15, 0x3a800000, v14")
    a("v_rsq_f32 v15, v15")
    for i in range(16): a("v_mul_f32 v%d, v%d, v15" % (X + i, X + i))
    for i in range(8): a("v_cvt_pk_bf16_f32 v%d, v%d, v%d" % (4 + i, X + 2*i, X + 2*i + 1))
    a("buffer_store_dwordx4 v[4:7], v2, s[12:15], s4 offen")
    a("buffer_store_dwordx4 v[8:11], v2, s[12:15], s4 offen offset:1024")
    if G.prof:
        stamp(a, 1); stamp(a, 2)
        a("s_waitcnt vmcnt(0)")
        stamp(a, 3)
        a("s_cmp_lg_u32 s3, 0")
        a("s_cbranch_scc1 k1_end")
        prof_store(a, kidx, 34)
    a("s_endpgm")
    a.label("k1_cs")
    srd(a, 8, 36, 0, 1024*3584*2)
    srd(a, 12, 34, WS_CS1P, 8*3584*4)
    a("s_sub_u32 s4, s2, 256")
    a("s_mul_hi_u32 s5, s4, 0x%x" % ((2**32 + 27)//28))
    a("s_mul_i32 s6, s5, 28")
    a("s_sub_u32 s6, s4, s6")
    a("v_lshrrev_b32 v2, 4, v0")
    a("v_mul_u32_u24 v2, 7168, v2")
    a("v_and_b32 v3, 15, v0")
    a("v_lshl_add_u32 v2, v3, 4, v2")
    a("s_mul_i32 s7, s5, %d" % (128*7168))
    a("s_lshl_b32 s16, s6, 8")
    a("s_add_u32 s7, s7, s16")
    for i in range(4):
        a("buffer_load_dwordx4 %s, v2, s[8:11], s7 offen" % vr(4 + 4*i, 4))
        if i < 3: a("s_add_u32 s7, s7, %d" % (32*7168))
    A = 24
    a("s_waitcnt vmcnt(0)")
    for d in range(4):
        a("v_lshlrev_b32 v%d, 16, v%d" % (A + 2*d, 4 + d))
        a("v_and_b32 v%d, 0xffff0000, v%d" % (A + 2*d + 1, 4 + d))
    for i in range(1, 4):
        for d in range(4):
            a("v_lshlrev_b32 v20, 16, v%d" % (4 + 4*i + d))
            a("v_and_b32 v21, 0xffff0000, v%d" % (4 + 4*i + d))
            a("v_add_f32 v%d, v%d, v20" % (A + 2*d, A + 2*d))
            a("v_add_f32 v%d, v%d, v21" % (A + 2*d + 1, A + 2*d + 1))
    for e in range(8):
        a("v_mov_b32 v20, v%d" % (A + e))
        a("v_permlane16_swap_b32 v%d, v20" % (A + e))
        a("v_add_f32 v%d, v%d, v20" % (A + e, A + e))
        xhalf(a, "v_add_f32", A + e, 20)
    a("v_and_b32 v3, 15, v1")
    a("v_lshlrev_b32 v3, 5, v3")
    a("s_lshl_b32 s16, s3, 9")
    a("v_add_u32 v3, s16, v3")
    a("ds_write_b128 v3, %s" % vr(A, 4))
    a("ds_write_b128 v3, %s offset:16" % vr(A + 4, 4))
    a("s_waitcnt lgkmcnt(0)")
    a("s_barrier")
    a("s_cmp_ge_u32 s3, 2")
    a("s_cbranch_scc1 k1_end")
    a("v_lshlrev_b32 v3, 2, v0")
    for w in range(8): a("ds_read_b32 v%d, v3 offset:%d" % (4 + w, w * 512))
    a("s_waitcnt lgkmcnt(0)")
    for w in range(1, 8): a("v_add_f32 v4, v4, v%d" % (4 + w))
    a("s_mul_i32 s7, s5, %d" % (3584*4))
    a("s_lshl_b32 s16, s6, 9")
    a("s_add_u32 s7, s7, s16")
    a("buffer_store_dword v4, v3, s[12:15], s7 offen")
    a.label("k1_end")
    a("s_endpgm")
    return dict(name=n, grid=480, block=512, lds=4096, vgpr=48)

def k2_cfg():
    c = Cfg()
    c.name = "k2_kernel"; c.NB = 6; c.WN = 2; c.TBW = 2; c.NBW = 3
    c.xmode = "row"; c.wmode = "pair"; c.K = 1024; c.NST = 16; c.NS = 3
    c.ldx = 2048; c.ldw = 6144; c.strip = [0, 2048, 4096]; c.ntile_bytes = 128
    c.SS = 16384 + 6 * 4096
    c.orient = ["T", "T", "N"]
    c.xcdmap = (8, 4)
    c.VXA = 2; c.VWA = 6
    c.ACC = [[16 + (t*3 + b)*16 for b in range(3)] for t in range(2)]
    c.XF = [[112 + p*8 + t*4 for t in range(2)] for p in range(2)]
    c.WF = [[128 + p*12 + b*4 for b in range(3)] for p in range(2)]
    c.reads_per_gap = 3
    c.ptrs = ["ws", "wqkv", "wphi"]
    c.wsptr = 32
    c.WPHI = 3 * c.SS
    c.lds = c.WPHI + 4096
    c.vgpr = 200
    def srds(a, c):
        srd(a, 8, 32, WS_XN, SZ_ACT)
        srd(a, 12, 34, 0, 1024*3072*2)
        srd(a, 16, 32, WS_Q, SZ_ACT)
        srd(a, 20, 32, WS_KVP, 16*32*8192)
        srd(a, 24, 32, WS_ZP, 16*32*256)
        srd(a, 28, 36, 0, 32*2048)
    c.srds = srds
    def loader_pre(a, c):
        a("v_lshlrev_b32 v20, 4, v1")
        a("s_lshl_b32 s56, s5, 12")
        a("s_lshl_b32 s57, s3, 10")
        a("s_add_u32 s56, s56, s57")
        a("s_add_u32 m0, s57, %d" % c.WPHI)
        a("s_nop 0")
        a("buffer_load_dwordx4 v20, s[28:31], s56 offen lds")
    c.loader_pre = loader_pre
    c.loader_post = None
    c.compute_pre = None
    def epilogue(a, c):
        a("s_mov_b32 s%d, 0x%x" % (S_L2E, LOG2E))
        TMP = 112
        E = 152
        PP = 168; PN = 176
        T = 184
        KV = [112, 128]
        Z = [192, 208]
        WP = 144
        QP = 224
        ONES = 232
        VA = 236; VB = 237; VC = 238; VD = 239
        a("v_and_b32 v10, 31, v1")
        a("v_lshrrev_b32 v11, 5, v1")
        a("v_bfe_u32 v12, v1, 2, 2")
        a("v_lshlrev_b32 v12, 6, v12")
        a("v_bfe_u32 v13, v1, 4, 1")
        a("v_lshl_add_u32 v12, v13, 5, v12")
        a("v_and_b32 v13, 3, v1")
        a("v_lshl_add_u32 v12, v13, 3, v12")
        a("v_lshl_add_u32 v13, v11, 8, v12")
        a("s_lshl_b32 s56, s7, 11")
        a("s_add_u32 s56, s56, %d" % c.WPHI)
        a("v_add_u32 v13, s56, v13")
        for s in range(2):
            for e in range(2):
                a("ds_read_b64_tr_b16 %s, v13 offset:%d" % (vr(WP + 4*s + 2*e, 2), (4*s + 2*e) * 256))
        a("s_lshl_b32 s56, s4, 2")
        a("s_lshl_b32 s57, s6, 1")
        a("s_add_u32 s56, s56, s57")
        a("s_lshl_b32 s56, s56, 7")
        a("s_lshl_b32 s57, s5, 1")
        a("s_add_u32 s57, s57, s7")
        a("s_mov_b32 s58, s57")
        a("s_lshl_b32 s57, s57, 2")
        a("s_add_u32 s56, s56, s57")
        a("s_lshl_b32 s56, s56, 9")
        a("v_lshlrev_b32 v%d, 4, v1" % VA)
        for t in range(2):
            pack_nat(a, c.ACC[t][0], QP)
            a("buffer_store_dwordx4 %s, v%d, s[16:19], s56 offen" % (vr(QP, 4), VA))
            a("buffer_store_dwordx4 %s, v%d, s[16:19], s56 offen offset:1024" % (vr(QP + 4, 4), VA))
            if t == 0: a("s_add_u32 s56, s56, %d" % (128 * 512))
        a("s_lshl_b32 s56, s3, 13")
        a("v_bfe_u32 v12, v10, 1, 2")
        a("v_lshlrev_b32 v13, 6, v10")
        a("v_lshl_add_u32 v13, v11, 3, v13")
        a("v_add_u32 v13, s56, v13")
        for g in range(4):
            a("v_xor_b32 v14, %d, v12" % g)
            a("v_lshl_add_u32 v%d, v14, 4, v13" % (240 + g))
        a("v_bfe_u32 v12, v1, 2, 2")
        a("v_lshlrev_b32 v14, 2, v11")
        a("v_add_u32 v14, v14, v12")
        a("v_lshrrev_b32 v15, 1, v14")
        a("v_and_b32 v15, 3, v15")
        a("v_bfe_u32 v12, v1, 4, 1")
        a("v_lshlrev_b32 v12, 1, v12")
        a("v_bfe_u32 v9, v1, 1, 1")
        a("v_add_u32 v12, v12, v9")
        a("v_xor_b32 v12, v12, v15")
        a("v_lshlrev_b32 v12, 4, v12")
        a("v_lshl_add_u32 v12, v14, 6, v12")
        a("v_and_b32 v9, 1, v1")
        a("v_lshl_add_u32 v12, v9, 3, v12")
        a("v_add_u32 v%d, s56, v12" % VB)
        for r in range(4): a("v_mov_b32 v%d, 0x3f803f80" % (ONES + r))
        a("s_waitcnt lgkmcnt(0)")
        PK = 128
        KP = 112
        PHI = 244
        VP = 120
        for t in range(2):
            pack_raw(a, c.ACC[t][1], KP)
            mfma(a, PK, WP, KP, None)
            mfma(a, PK, WP + 4, KP + 4, PK)
            softmax_dual(a, PK, E, T, PP, PN)
            for sg, PX in enumerate((PP, PN)):
                for g in range(4):
                    a("ds_write_b64 v%d, %s offset:%d" % (240 + g, vr(PX + 2*g, 2), t * 4096 + sg * 2048))
            pack_raw(a, c.ACC[t][2], VP)
            for sg in range(2):
                kvacc = c.ACC[sg][0]
                for s in range(2):
                    for e in range(2):
                        a("ds_read_b64_tr_b16 %s, v%d offset:%d" % (vr(PHI + 4*s + 2*e, 2), VB, t * 4096 + sg * 2048 + (2*s + e) * 512))
                a("s_waitcnt lgkmcnt(0)")
                for s in range(2):
                    first = (t == 0 and s == 0)
                    mfma(a, kvacc, PHI + 4*s, VP + 4*s, None if first else kvacc)
                    mfma(a, Z[sg], PHI + 4*s, ONES, None if first else Z[sg])
        a("s_lshl_b32 s56, s3, 13")
        a("s_add_u32 s56, s56, 65536")
        a("v_add_u32 v%d, s56, v%d" % (VC, VA))
        a("s_xor_b32 s57, s3, 2")
        a("s_lshl_b32 s57, s57, 13")
        a("s_add_u32 s57, s57, 65536")
        a("v_add_u32 v%d, s57, v%d" % (VD, VA))
        kv = [c.ACC[0][0], c.ACC[1][0]]
        a("s_cmp_eq_u32 s6, 0")
        a("s_cbranch_scc1 k2_i0")
        for keep, lab in ((1, None), (0, "k2_i0")):
            if lab: a.label(lab)
            send = 1 - keep
            for q in range(4):
                a("ds_write_b128 v%d, %s offset:%d" % (VC, vr(kv[send] + 4*q, 4), q * 1024))
                a("ds_write_b128 v%d, %s offset:%d" % (VC, vr(Z[send] + 4*q, 4), 4096 + q * 1024))
            a("s_waitcnt lgkmcnt(0)")
            a("s_barrier")
            R = 112
            for q in range(4):
                a("ds_read_b128 %s, v%d offset:%d" % (vr(R + 4*q, 4), VD, q * 1024))
                a("ds_read_b128 %s, v%d offset:%d" % (vr(R + 16 + 4*q, 4), VD, 4096 + q * 1024))
            a("s_waitcnt lgkmcnt(0)")
            for r in range(16):
                a("v_add_f32 v%d, v%d, v%d" % (kv[keep] + r, kv[keep] + r, R + r))
                a("v_add_f32 v%d, v%d, v%d" % (Z[keep] + r, Z[keep] + r, R + 16 + r))
            a("s_lshl_b32 s56, s4, 5")
            a("s_add_u32 s56, s56, s58")
            a("s_lshl_b32 s57, s56, 8")
            a("s_lshl_b32 s56, s56, 13")
            a("s_add_u32 s56, s56, %d" % (keep * 4096))
            for q in range(4):
                a("buffer_store_dwordx4 %s, v%d, s[20:23], s56 offen offset:%d" % (vr(kv[keep] + 4*q, 4), VA, q * 1024))
            a("v_lshlrev_b32 v12, 6, v11")
            a("s_add_u32 s57, s57, %d" % (keep * 128))
            a("s_mov_b32 exec_lo, 1")
            a("s_mov_b32 exec_hi, 1")
            for q in range(4):
                a("buffer_store_dwordx4 %s, v12, s[24:27], s57 offen offset:%d" % (vr(Z[keep] + 4*q, 4), q * 16))
            a("s_mov_b64 exec, -1")
            if keep == 1: a("s_branch k2_done")
        a.label("k2_done")
    c.epilogue = epilogue
    c.vgpr = 256
    return c

def k3(a, kidx):
    n = "k3_kernel"
    kernel_begin(a, n)
    a("s_cmp_ge_u32 s2, 256")
    a("s_cbranch_scc1 k3_end")
    stamp(a, 0)
    ldptr(a, 32, "ws"); ldptr(a, 34, "wphi")
    a("s_and_b32 s6, s2, 7")
    a("s_lshr_b32 s7, s2, 3")
    a("s_lshl_b32 s4, s6, 2")
    a("s_lshr_b32 s5, s7, 3")
    a("s_add_u32 s4, s4, s5")
    a("s_and_b32 s5, s7, 7")
    a("v_lshrrev_b32 v2, 6, v0")
    a("v_and_b32 v1, 63, v0")
    a("v_readfirstlane_b32 s3, v2")
    a("s_waitcnt lgkmcnt(0)")
    srd(a, 8, 32, WS_Q, SZ_ACT)
    srd(a, 12, 32, WS_KVP, 16*32*8192)
    srd(a, 16, 32, WS_ZP, 16*32*256)
    srd(a, 20, 32, WS_O, SZ_ACT)
    srd(a, 24, 34, 0, 32*2048)
    a("s_mov_b32 s%d, 0x%x" % (S_L2E, LOG2E))
    VA = 2
    a("v_lshlrev_b32 v%d, 4, v1" % VA)
    a("s_lshl_b32 s40, s4, 11")
    a("s_lshl_b32 s41, s3, 11")
    a("s_add_u32 m0, s41, 8192")
    a("s_nop 0")
    a("buffer_load_dwordx4 v%d, s[24:27], s40 offen lds" % VA)
    a("buffer_load_dwordx4 v%d, s[24:27], s40 offen offset:1024 lds" % VA)
    a("s_lshl_b32 s42, s5, 3")
    a("s_add_u32 s42, s42, s3")
    a("s_lshl_b32 s42, s42, 7")
    a("s_lshl_b32 s43, s4, 2")
    a("s_add_u32 s42, s42, s43")
    a("s_lshl_b32 s42, s42, 9")
    QF = 4
    a("buffer_load_dwordx4 %s, v%d, s[8:11], s42 offen" % (vr(QF, 4), VA))
    a("buffer_load_dwordx4 %s, v%d, s[8:11], s42 offen offset:1024" % (vr(QF + 4, 4), VA))
    L = 64
    a("s_lshl_b32 s44, s4, 13")
    a("s_lshl_b32 s45, s3, 10")
    a("s_add_u32 s44, s44, s45")
    for m in range(16):
        a("buffer_load_dwordx4 %s, v%d, s[12:15], s44 offen" % (vr(L + 4*m, 4), VA))
        if m < 15: a("s_add_u32 s44, s44, %d" % (32 * 8192))
    ZL = 128
    a("s_cmp_lg_u32 s3, 0")
    a("s_cbranch_scc1 k3_noz")
    a("v_lshlrev_b32 v3, 2, v1")
    a("s_lshl_b32 s46, s4, 8")
    for m in range(16):
        a("buffer_load_dword v%d, v3, s[16:19], s46 offen" % (ZL + m))
        if m < 15: a("s_add_u32 s46, s46, %d" % (32 * 256))
    a("s_waitcnt vmcnt(0)")
    for m in range(1, 16): a("v_add_f32 v%d, v%d, v%d" % (ZL, ZL, ZL + m))
    a("v_cvt_pk_bf16_f32 v%d, v%d, v%d" % (ZL, ZL, ZL))
    a("v_lshlrev_b32 v3, 1, v1")
    a("ds_write_b16 v3, v%d offset:4096" % ZL)
    a.label("k3_noz")
    a("v_lshrrev_b32 v15, 5, v1")
    a("v_bfe_u32 v12, v1, 2, 2")
    a("v_lshlrev_b32 v12, 6, v12")
    a("v_bfe_u32 v13, v1, 4, 1")
    a("v_lshl_add_u32 v12, v13, 5, v12")
    a("v_and_b32 v13, 3, v1")
    a("v_lshl_add_u32 v12, v13, 3, v12")
    a("v_lshl_add_u32 v13, v15, 9, v12")
    a("s_add_u32 s41, s41, 8192")
    a("v_add_u32 v13, s41, v13")
    a("s_waitcnt vmcnt(18)")
    WP = 16
    for s in range(2):
        for e in range(2):
            a("ds_read_b64_tr_b16 %s, v13 offset:%d" % (vr(WP + 4*s + 2*e, 2), (4*s + e) * 256))
    a("s_waitcnt vmcnt(16) lgkmcnt(0)")
    PK = 24; E = 40; T = 56
    PP = 144; PN = 152
    mfma(a, PK, WP, QF, None)
    mfma(a, PK, WP + 4, QF + 4, PK)
    softmax_dual(a, PK, E, T, PP, PN)
    a("s_waitcnt vmcnt(0)")
    for m in range(1, 16):
        for r in range(4): a("v_add_f32 v%d, v%d, v%d" % (L + r, L + r, L + 4*m + r))
    a("v_cvt_pk_bf16_f32 v%d, v%d, v%d" % (L, L, L + 1))
    a("v_cvt_pk_bf16_f32 v%d, v%d, v%d" % (L + 1, L + 2, L + 3))
    a("s_lshr_b32 s46, s3, 1")
    a("s_lshl_b32 s46, s46, 10")
    a("s_and_b32 s47, s3, 1")
    a("s_lshl_b32 s47, s47, 3")
    a("s_add_u32 s46, s46, s47")
    a("v_add_u32 v3, s46, v%d" % VA)
    a("ds_write_b64 v3, %s" % vr(L, 2))
    a("s_waitcnt lgkmcnt(0)")
    a("s_barrier")
    KF = 64; ZF = 80
    for sg in range(2):
        for s in range(2):
            a("ds_read_b128 %s, v%d offset:%d" % (vr(KF + (sg*2 + s)*4, 4), VA, (sg*2 + s) * 1024))
    a("v_lshlrev_b32 v3, 5, v15")
    for sg in range(2):
        for s in range(2):
            a("ds_read_b128 %s, v3 offset:%d" % (vr(ZF + (sg*2 + s)*4, 4), 4096 + sg * 64 + s * 16))
    a("s_waitcnt lgkmcnt(0)")
    NUM = 96; DEN = 112
    first = True
    for sg, PX in enumerate((PP, PN)):
        for s in range(2):
            mfma(a, NUM, KF + (sg*2 + s)*4, PX + 4*s, None if first else NUM)
            mfma(a, DEN, ZF + (sg*2 + s)*4, PX + 4*s, None if first else DEN)
            first = False
    a("v_add_f32 v3, 0x358637bd, v%d" % DEN)
    a("v_rcp_f32 v3, v3")
    for r in range(16): a("v_mul_f32 v%d, v%d, v3" % (NUM + r, NUM + r))
    OP = 128
    pack_nat(a, NUM, OP)
    a("buffer_store_dwordx4 %s, v%d, s[20:23], s42 offen" % (vr(OP, 4), VA))
    a("buffer_store_dwordx4 %s, v%d, s[20:23], s42 offen offset:1024" % (vr(OP + 4, 4), VA))
    if G.prof:
        stamp(a, 1); stamp(a, 2)
        a("s_waitcnt vmcnt(0)")
        stamp(a, 3)
        a("s_cmp_lg_u32 s3, 0")
        a("s_cbranch_scc1 k3_end")
        prof_store(a, kidx, 32)
    a.label("k3_end")
    a("s_endpgm")
    return dict(name=n, grid=256, block=512, lds=8192 + 16384, vgpr=160)

def small_cfg(name, K, NS):
    c = Cfg()
    c.name = name; c.NB = 2; c.WN = 2; c.TBW = 2; c.NBW = 1
    c.xmode = "blk"; c.wmode = "pair"; c.K = K; c.NST = K // 64; c.NS = NS
    c.ldw = 2048; c.strip = [0]; c.ntile_bytes = 128
    c.SS = 16384 + 2 * 4096
    c.orient = ["T"]
    c.xcdmap = (4, 8)
    c.VXA = 2; c.VWA = 6
    c.ACC = [[16], [32]]
    c.XF = [[48 + p*8 + t*4 for t in range(2)] for p in range(2)]
    c.WF = [[64 + p*4] for p in range(2)]
    c.reads_per_gap = 2
    return c

def k4_cfg():
    c = small_cfg("k4_kernel", 1024, 5)
    c.ptrs = ["ws", "wo", "x"]
    c.wsptr = 32
    c.XT = c.NS * c.SS
    c.lds = c.XT + 16384
    def srds(a, c):
        srd(a, 8, 32, WS_O, SZ_ACT)
        srd(a, 12, 34, 0, 1024*1024*2)
        srd(a, 16, 32, WS_H, SZ_ACT)
        srd(a, 20, 32, WS_HSTP, 32*2048*8)
        srd(a, 24, 36, 0, SZ_ACT)
    c.srds = srds
    def loader_pre(a, c):
        a("v_lshrrev_b32 v10, 3, v1")
        a("v_lshlrev_b32 v10, 11, v10")
        a("v_and_b32 v11, 7, v1")
        a("v_lshrrev_b32 v12, 4, v1")
        a("v_xor_b32 v13, v11, v12")
        a("v_lshl_add_u32 v20, v13, 4, v10")
        a("v_xor_b32 v13, 4, v13")
        a("v_lshl_add_u32 v21, v13, 4, v10")
        a("s_lshl_b32 s56, s4, 7")
        a("s_lshl_b32 s57, s3, 5")
        a("s_add_u32 s56, s56, s57")
        a("s_lshl_b32 s56, s56, 11")
        a("s_lshl_b32 s57, s5, 7")
        a("s_add_u32 s56, s56, s57")
        a("s_lshl_b32 s57, s3, 12")
        a("s_add_u32 s57, s57, %d" % c.XT)
        for j in range(4):
            a("s_add_u32 m0, s57, %d" % (j * 1024))
            a("s_add_u32 s%d, s56, %d" % (S_TMP, j * 8 * 2048))
            a("buffer_load_dwordx4 v%d, s[24:27], s%d offen lds" % (20 + (j & 1), S_TMP))
    c.loader_pre = loader_pre
    c.loader_post = None
    c.compute_pre = None
    def epilogue(a, c):
        a("v_and_b32 v10, 31, v1")
        a("v_lshrrev_b32 v11, 5, v1")
        a("v_bfe_u32 v12, v10, 1, 3")
        a("s_lshl_b32 s56, s7, 2")
        a("v_xor_b32 v12, s56, v12")
        a("s_lshl_b32 s56, s6, 13")
        a("s_add_u32 s56, s56, %d" % c.XT)
        a("v_lshlrev_b32 v13, 7, v10")
        a("v_lshl_add_u32 v13, v11, 3, v13")
        a("v_add_u32 v13, s56, v13")
        for g in range(4):
            a("v_xor_b32 v14, %d, v12" % g)
            a("v_lshl_add_u32 v%d, v14, 4, v13" % (72 + g))
        XR = 80
        for t in range(2):
            for g in range(4):
                a("ds_read_b64 %s, v%d offset:%d" % (vr(XR + t*8 + 2*g, 2), 72 + g, t * 4096))
        a("v_lshlrev_b32 v15, 4, v1")
        a("s_lshl_b32 s56, s4, 2")
        a("s_lshl_b32 s57, s6, 1")
        a("s_add_u32 s56, s56, s57")
        a("s_mov_b32 s58, s56")
        a("s_lshl_b32 s56, s56, 7")
        a("s_lshl_b32 s57, s5, 3")
        a("s_add_u32 s56, s56, s57")
        a("s_lshl_b32 s57, s7, 2")
        a("s_add_u32 s56, s56, s57")
        a("s_lshl_b32 s56, s56, 9")
        a("s_lshl_b32 s57, s5, 1")
        a("s_add_u32 s57, s57, s7")
        a("s_lshl_b32 s57, s57, 11")
        a("s_lshl_b32 s59, s58, 5")
        a("s_add_u32 s57, s57, s59")
        a("s_lshl_b32 s57, s57, 3")
        a("v_lshlrev_b32 v9, 3, v10")
        a("v_lshl_add_u32 v9, v11, 2, v9")
        a("v_cmp_eq_u32 vcc, 0, v11")
        a("s_waitcnt lgkmcnt(0)")
        P = 100
        for t in range(2):
            acc = c.ACC[t][0]
            for g in range(4):
                for d in range(2):
                    x = XR + t*8 + 2*g + d
                    a("v_lshlrev_b32 v96, 16, v%d" % x)
                    a("v_and_b32 v97, 0xffff0000, v%d" % x)
                    a("v_add_f32 v%d, v%d, v96" % (acc + 4*g + 2*d, acc + 4*g + 2*d))
                    a("v_add_f32 v%d, v%d, v97" % (acc + 4*g + 2*d + 1, acc + 4*g + 2*d + 1))
            a("v_add_f32 v96, v%d, v%d" % (acc, acc + 1))
            a("v_mul_f32 v97, v%d, v%d" % (acc, acc))
            a("v_fmac_f32 v97, v%d, v%d" % (acc + 1, acc + 1))
            for r in range(2, 16):
                a("v_add_f32 v96, v96, v%d" % (acc + r))
                a("v_fmac_f32 v97, v%d, v%d" % (acc + r, acc + r))
            xhalf(a, "v_add_f32", 96, 98)
            xhalf(a, "v_add_f32", 97, 98)
            a("v_cndmask_b32 v96, v97, v96, vcc")
            a("buffer_store_dword v96, v9, s[20:23], s57 offen")
            pack_nat(a, acc, P)
            a("buffer_store_dwordx4 %s, v15, s[16:19], s56 offen" % vr(P, 4))
            a("buffer_store_dwordx4 %s, v15, s[16:19], s56 offen offset:1024" % vr(P + 4, 4))
            if t == 0:
                a("s_add_u32 s56, s56, %d" % (128 * 512))
                a("s_add_u32 s57, s57, %d" % (32 * 8))
    c.epilogue = epilogue
    c.vgpr = 112
    return c

def k5_cfg():
    c = Cfg()
    c.name = "k5_kernel"; c.NB = 7; c.WN = 1; c.TBW = 1; c.NBW = 7
    c.xmode = "blk"; c.wmode = "lin7"; c.K = 1024; c.NST = 16; c.NS = 3
    c.ldw = 7168; c.ntile_bytes = 448
    c.SS = 16384 + 7 * 4096
    c.orient = ["T"] * 7
    c.xcdmap = (8, 4)
    c.VXA = 2; c.VWA = 6
    c.ACC = [[16 + b*16 for b in range(7)]]
    c.XF = [[128 + p*4] for p in range(2)]
    c.WF = [[136 + p*28 + b*4 for b in range(7)] for p in range(2)]
    c.reads_per_gap = 3
    c.ptrs = ["ws", "w1", "b1"]
    c.wsptr = 32
    c.TAB = c.NS * c.SS
    c.lds = c.TAB + 2048
    def srds(a, c):
        srd(a, 8, 32, WS_H, SZ_ACT)
        srd(a, 12, 34, 0, 1024*3584*2)
        srd(a, 16, 32, WS_F, SZ_F)
        srd(a, 20, 32, WS_HSTP, 32*2048*8)
        srd(a, 24, 32, WS_CS1P, 8*3584*4)
        srd(a, 28, 36, 0, 3584*2)
    c.srds = srds
    c.loader_pre = None
    c.loader_post = None
    def compute_pre(a, c):
        L = 192
        a("v_lshlrev_b32 v10, 2, v1")
        a("s_lshl_b32 s56, s4, 7")
        a("s_lshl_b32 s57, s3, 5")
        a("s_add_u32 s56, s56, s57")
        a("s_lshl_b32 s56, s56, 3")
        for p in range(32):
            a("buffer_load_dword v%d, v10, s[20:23], s56 offen" % (L + p))
            if p < 31: a("s_add_u32 s56, s56, %d" % (2048 * 8))
        a("v_lshlrev_b32 v11, 2, v0")
        a("s_mul_i32 s57, s5, %d" % (224 * 4))
        C = 224
        for k in range(8):
            a("buffer_load_dword v%d, v11, s[24:27], s57 offen" % (C + k))
            if k < 7: a("s_add_u32 s57, s57, %d" % (3584 * 4))
        a("v_lshlrev_b32 v12, 1, v0")
        a("s_mul_i32 s57, s5, 448")
        a("buffer_load_ushort v%d, v12, s[28:31], s57 offen" % (C + 8))
        a("s_waitcnt vmcnt(9)")
        for p in range(1, 32): a("v_add_f32 v%d, v%d, v%d" % (L, L, L + p))
        a("v_mov_b32_dpp v%d, v%d quad_perm:[0,0,2,2] row_mask:0xf bank_mask:0xf" % (L + 1, L))
        a("v_mov_b32_dpp v%d, v%d quad_perm:[1,1,3,3] row_mask:0xf bank_mask:0xf" % (L + 2, L))
        a("v_mul_f32 v%d, 0x3a800000, v%d" % (L + 1, L + 1))
        a("v_mul_f32 v%d, 0x3a800000, v%d" % (L + 2, L + 2))
        a("v_fma_f32 v%d, -v%d, v%d, v%d" % (L + 2, L + 1, L + 1, L + 2))
        a("v_max_f32 v%d, 0, v%d" % (L + 2, L + 2))
        a("v_add_f32 v%d, 0x3727c5ac, v%d" % (L + 2, L + 2))
        a("v_rsq_f32 v%d, v%d" % (L + 2, L + 2))
        a("v_mul_f32 v%d, v%d, v%d" % (L + 1, L + 1, L + 2))
        a("v_sub_f32 v%d, 0, v%d" % (L + 1, L + 1))
        a("v_and_b32 v13, 31, v1")
        a("v_lshlrev_b32 v13, 3, v13")
        a("ds_bpermute_b32 v8, v13, v%d" % (L + 2))
        a("ds_bpermute_b32 v9, v13, v%d" % (L + 1))
        a("s_waitcnt vmcnt(0)")
        for k in range(1, 8): a("v_add_f32 v%d, v%d, v%d" % (C, C, C + k))
        a("v_lshlrev_b32 v%d, 16, v%d" % (C + 8, C + 8))
        a("v_cmp_gt_u32 vcc, 224, v0")
        a("s_and_saveexec_b64 s[58:59], vcc")
        a("v_add_u32 v11, %d, v11" % c.TAB)
        a("ds_write_b32 v11, v%d" % C)
        a("ds_write_b32 v11, v%d offset:1024" % (C + 8))
        a("s_mov_b64 exec, s[58:59]")
    c.compute_pre = compute_pre
    def epilogue(a, c):
        a("v_lshrrev_b32 v11, 5, v1")
        a("v_lshlrev_b32 v12, 4, v11")
        a("v_add_u32 v12, %d, v12" % c.TAB)
        a("v_lshlrev_b32 v15, 4, v1")
        a("s_lshl_b32 s56, s4, 2")
        a("s_add_u32 s56, s56, s3")
        a("s_mul_i32 s56, s56, 448")
        a("s_mul_i32 s57, s5, 28")
        a("s_add_u32 s56, s56, s57")
        a("s_lshl_b32 s56, s56, 9")
        CS = 128; B1 = 144; P = 160
        for b in range(7):
            acc = c.ACC[0][b]
            q = b & 1
            cs = CS + q * 64; b1 = cs + 16; pk = P + q * 64
            cs = (128 if q == 0 else 192); b1 = cs + 16; pk = cs + 32
            for g in range(4):
                a("ds_read_b128 %s, v12 offset:%d" % (vr(cs + 4*g, 4), (32*b + 8*g) * 4))
                a("ds_read_b128 %s, v12 offset:%d" % (vr(b1 + 4*g, 4), 1024 + (32*b + 8*g) * 4))
            a("s_waitcnt lgkmcnt(0)")
            for r in range(16):
                a("v_fma_f32 v%d, v9, v%d, v%d" % (b1 + r, cs + r, b1 + r))
            for r in range(16):
                a("v_fma_f32 v%d, v8, v%d, v%d" % (acc + r, acc + r, b1 + r))
            for r in range(16):
                a("v_max_f32 v%d, 0, v%d" % (acc + r, acc + r))
            for r in range(16):
                a("v_mul_f32 v%d, v%d, v%d" % (acc + r, acc + r, acc + r))
            pack_nat(a, acc, pk)
            a("buffer_store_dwordx4 %s, v15, s[16:19], s56 offen" % vr(pk, 4))
            a("buffer_store_dwordx4 %s, v15, s[16:19], s56 offen offset:1024" % vr(pk + 4, 4))
            if b < 6: a("s_add_u32 s56, s56, 2048")
    c.epilogue = epilogue
    c.vgpr = 256
    return c

def k6_cfg():
    c = small_cfg("k6_kernel", 3584, 6)
    c.ptrs = ["ws", "w2", "b2", "out"]
    c.wsptr = 32
    c.lds = c.NS * c.SS
    def srds(a, c):
        srd(a, 8, 32, WS_F, SZ_F)
        srd(a, 12, 34, 0, 3584*1024*2)
        srd(a, 16, 32, WS_H, SZ_ACT)
        srd(a, 20, 36, 0, 2048)
        srd(a, 24, 38, 0, SZ_ACT)
    c.srds = srds
    c.loader_pre = None
    c.loader_post = None
    HR = 80; BR = 96
    def compute_pre(a, c):
        a("v_and_b32 v10, 31, v1")
        a("v_lshrrev_b32 v11, 5, v1")
        a("v_lshlrev_b32 v12, 4, v10")
        a("v_lshl_add_u32 v12, v11, 3, v12")
        a("s_lshl_b32 s56, s4, 2")
        a("s_lshl_b32 s57, s6, 1")
        a("s_add_u32 s56, s56, s57")
        a("s_lshl_b32 s56, s56, 7")
        a("s_lshl_b32 s57, s5, 3")
        a("s_add_u32 s56, s56, s57")
        a("s_lshl_b32 s57, s7, 2")
        a("s_add_u32 s56, s56, s57")
        a("s_lshl_b32 s56, s56, 9")
        for t in range(2):
            for g in range(4):
                a("buffer_load_dwordx2 %s, v12, s[16:19], s56 offen offset:%d" % (vr(HR + t*8 + 2*g, 2), g * 512))
            if t == 0: a("s_add_u32 s56, s56, %d" % (128 * 512))
        a("v_lshlrev_b32 v13, 3, v11")
        a("s_lshl_b32 s56, s5, 7")
        a("s_lshl_b32 s57, s7, 6")
        a("s_add_u32 s56, s56, s57")
        for g in range(4):
            a("buffer_load_dwordx2 %s, v13, s[20:23], s56 offen offset:%d" % (vr(BR + 2*g, 2), g * 16))
    c.compute_pre = compute_pre
    def epilogue(a, c):
        a("v_and_b32 v10, 31, v1")
        a("v_lshrrev_b32 v11, 5, v1")
        a("v_lshlrev_b32 v12, 11, v10")
        a("v_lshl_add_u32 v12, v11, 4, v12")
        a("s_lshl_b32 s56, s4, 7")
        a("s_lshl_b32 s57, s6, 6")
        a("s_add_u32 s56, s56, s57")
        a("s_lshl_b32 s56, s56, 11")
        a("s_lshl_b32 s57, s5, 7")
        a("s_add_u32 s56, s56, s57")
        a("s_lshl_b32 s57, s7, 6")
        a("s_add_u32 s56, s56, s57")
        a("s_waitcnt vmcnt(0)")
        BF = 104
        for g in range(4):
            for d in range(2):
                a("v_lshlrev_b32 v%d, 16, v%d" % (BF + 4*g + 2*d, BR + 2*g + d))
                a("v_and_b32 v%d, 0xffff0000, v%d" % (BF + 4*g + 2*d + 1, BR + 2*g + d))
        P = 120
        for t in range(2):
            acc = c.ACC[t][0]
            for g in range(4):
                for d in range(2):
                    x = HR + t*8 + 2*g + d
                    r = 4*g + 2*d
                    a("v_lshlrev_b32 v76, 16, v%d" % x)
                    a("v_and_b32 v77, 0xffff0000, v%d" % x)
                    a("v_add_f32 v%d, v%d, v%d" % (acc + r, acc + r, BF + r))
                    a("v_add_f32 v%d, v%d, v%d" % (acc + r + 1, acc + r + 1, BF + r + 1))
                    a("v_add_f32 v%d, v%d, v76" % (acc + r, acc + r))
                    a("v_add_f32 v%d, v%d, v77" % (acc + r + 1, acc + r + 1))
            pack_nat(a, acc, P)
            a("buffer_store_dwordx4 %s, v12, s[24:27], s56 offen" % vr(P, 4))
            a("buffer_store_dwordx4 %s, v12, s[24:27], s56 offen offset:32" % vr(P + 4, 4))
            if t == 0: a("s_add_u32 s56, s56, %d" % (32 * 2048))
    c.epilogue = epilogue
    c.vgpr = 128
    return c

def build(prof=False, kernels=(1,2,3,4,5,6), extra_head=""):
    G.prof = prof
    a = Asm()
    descs = []
    body = Asm()
    if 1 in kernels: descs.append(k1(body, 0))
    if 2 in kernels:
        c = k2_cfg(); gemm_kernel(body, c, 1); descs.append(dict(name=c.name, grid=256, block=512, lds=c.lds, vgpr=c.vgpr))
    if 3 in kernels: descs.append(k3(body, 2))
    for k, f in ((4, k4_cfg), (5, k5_cfg), (6, k6_cfg)):
        if k in kernels:
            c = f(); gemm_kernel(body, c, k - 1); descs.append(dict(name=c.name, grid=256, block=512, lds=c.lds, vgpr=c.vgpr))
    head = HEADER + extra_head
    for d in descs:
        head += "; @launch kernel=%s grid=(%d,1,1) block=(%d,1,1) lds=%d\n" % (d["name"], d["grid"], d["block"], d["lds"])
    txt = head + '.amdgcn_target "amdgcn-amd-amdhsa--gfx950"\n' + body.text()
    txt += '.section .rodata,"a"\n'
    for d in descs:
        txt += ".p2align 6\n" + kernel_desc(d["name"], d["vgpr"], 96)
    return txt

if __name__ == "__main__":
    import sys
    prof = "prof" in sys.argv
    out = sys.argv[1] if len(sys.argv) > 1 else "full.s"
    open(out, "w").write(build(prof=prof))
```

```python
from asmgen import *

WS_XN   = 0x0000000
WS_Q    = 0x0400000
WS_KVP  = 0x0800000
WS_ZP   = 0x0C00000
WS_O    = 0x1000000
WS_H    = 0x1400000
WS_HSTP = 0x1800000
WS_CS1P = 0x1900000
WS_F    = 0x2000000
WS_PROF = 0x4000000
SZ_ACT  = 2048*1024*2
SZ_F    = 2048*3584*2

KA = dict(x=0, wqkv=8, wphi=16, wo=24, w1=40, b1=48, w2=56, b2=64, out=72, dbg=80, ws=88)
LOG2E = 0x3fb8aa3b

class G:
    prof = False
    mode = 1
    no_dma = False
    no_mfma = False
    no_reads = False
    no_bar = False
    fake16 = False
    wrap = 0
    smallmap = (4, 8)
    touchD = 0
    rpg_small = 1
    st_sc1 = False
    pf1 = False
    pf2 = False
    pf2k2 = False
    pf_gran = 128

def ldptr(a, sdst, name):
    a("s_load_dwordx2 %s, s[0:1], %d" % (sr(sdst, 2), KA[name]))

def srd(a, d, p, off, size):
    if off:
        a("s_add_u32 s%d, s%d, 0x%x" % (d, p, off))
        a("s_addc_u32 s%d, s%d, 0" % (d + 1, p + 1))
    else:
        a("s_mov_b32 s%d, s%d" % (d, p))
        a("s_mov_b32 s%d, s%d" % (d + 1, p + 1))
    a("s_mov_b32 s%d, 0x%x" % (d + 2, size))
    a("s_mov_b32 s%d, 0x20000" % (d + 3))

def stamp(a, i):
    if G.prof:
        a("s_memrealtime s[%d:%d]" % (84 + 2*i, 85 + 2*i))

def cstamp(a, i):
    if G.prof:
        a("s_memtime s[%d:%d]" % (92 + 2*i, 93 + 2*i))

def prof_store(a, kidx, wsptr):
    if not G.prof: return
    a("s_waitcnt lgkmcnt(0)")
    srd(a, 76, wsptr, WS_PROF + kidx * 0x4000, 0x4000)
    a("v_mov_b32 v4, s84\nv_mov_b32 v5, s86\nv_mov_b32 v6, s88\nv_mov_b32 v7, s90")
    a("s_sub_u32 s80, s94, s92")
    a("v_mov_b32 v8, s80\nv_mov_b32 v9, 0\nv_mov_b32 v10, 0\nv_mov_b32 v11, 0")
    a("s_lshl_b32 s80, s2, 5")
    a("v_mov_b32 v2, s80")
    a("s_mov_b64 s[82:83], exec")
    a("s_mov_b64 exec, 1")
    a("buffer_store_dwordx4 v[4:7], v2, s[76:79], 0 offen")
    a("buffer_store_dwordx4 v[8:11], v2, s[76:79], 0 offen offset:16")
    a("s_mov_b64 exec, s[82:83]")

def tile_map(a, mx, nx):
    mgroups = 16 // mx
    import math
    lm = int(math.log2(mgroups)); lmx = int(math.log2(mx))
    a("s_and_b32 s6, s2, 7")
    a("s_lshr_b32 s7, s2, 3")
    a("s_and_b32 s4, s6, %d" % (mgroups - 1))
    a("s_lshr_b32 s5, s6, %d" % lm)
    a("s_mul_i32 s4, s4, %d" % mx)
    a("s_mul_i32 s5, s5, %d" % nx)
    a("s_and_b32 s6, s7, %d" % (mx - 1))
    a("s_add_u32 s4, s4, s6")
    a("s_lshr_b32 s6, s7, %d" % lmx)
    a("s_add_u32 s5, s5, s6")

class Cfg:
    pass

S_XOFF, S_WOFF, S_LDS, S_TMP, S_CNT, S_DELTA, S_BUF = 48, 49, 50, 51, 52, 53, 54
V_LANE = 1

def emit_issue(a, c):
    if c.xmode == "row":
        for j in range(4):
            a("s_add_u32 m0, s%d, %d" % (S_LDS, j * 1024))
            a("s_add_u32 s%d, s%d, %d" % (S_TMP, S_XOFF, j * 8 * c.ldx))
            a("buffer_load_dwordx4 v%d, s[8:11], s%d offen lds" % (2 + (j & 1), S_TMP))
        a("s_add_u32 s%d, s%d, 128" % (S_XOFF, S_XOFF))
    else:
        a("s_mov_b32 m0, s%d" % S_LDS)
        a("s_nop 0")
        for j in range(4):
            a("buffer_load_dwordx4 v2, s[8:11], s%d offen offset:%d lds" % (S_XOFF, j * 1024))
        a("s_add_u32 s%d, s%d, 4096" % (S_XOFF, S_XOFF))
    if c.wmode == "pair":
        NP = c.NB // 2
        for kpl in range(2):
            for np_ in range(NP):
                a("s_add_u32 m0, s55, %d" % ((kpl * NP + np_) * 1024))
                a("s_add_u32 s%d, s%d, %d" % (S_TMP, S_WOFF, kpl * 8 * c.ldw + c.strip[np_]))
                a("buffer_load_dwordx4 v4, s[12:15], s%d offen lds" % S_TMP)
    else:
        for t in range(7):
            a("s_add_u32 m0, s55, %d" % (t * 1024))
            a("s_nop 0")
            a("buffer_load_dwordx4 v%d, s[12:15], s%d offen lds" % (4 + t, S_WOFF))
    a("s_add_u32 s%d, s%d, %d" % (S_WOFF, S_WOFF, 64 * c.ldw))
    a("s_add_u32 s%d, s%d, 1" % (S_BUF, S_BUF))
    a("s_cmp_eq_u32 s%d, %d" % (S_BUF, c.NS))
    a("s_cselect_b32 s%d, s62, s61" % S_DELTA)
    a("s_cselect_b32 s%d, 0, s%d" % (S_BUF, S_BUF))
    a("s_add_u32 s%d, s%d, s%d" % (S_LDS, S_LDS, S_DELTA))
    a("s_add_u32 s55, s55, s%d" % S_DELTA)

def emit_loader(a, c):
    n = c.name
    a.label(n + "_loader")
    a("s_sub_u32 s3, s3, 4")
    if c.xmode == "row":
        a("v_lshrrev_b32 v10, 3, v1")
        a("v_mul_u32_u24 v10, %d, v10" % c.ldx)
        a("v_and_b32 v11, 7, v1")
        a("v_lshrrev_b32 v12, 4, v1")
        a("v_xor_b32 v13, v11, v12")
        a("v_lshl_add_u32 v2, v13, 4, v10")
        a("v_xor_b32 v13, 4, v13")
        a("v_lshl_add_u32 v3, v13, 4, v10")
        a("s_lshl_b32 s%d, s4, 7" % S_XOFF)
        a("s_lshl_b32 s%d, s3, 5" % S_TMP)
        a("s_add_u32 s%d, s%d, s%d" % (S_XOFF, S_XOFF, S_TMP))
        a("s_mul_i32 s%d, s%d, %d" % (S_XOFF, S_XOFF, c.ldx))
    else:
        a("v_lshlrev_b32 v2, 4, v1")
        a("s_lshl_b32 s%d, s4, 2" % S_XOFF)
        a("s_add_u32 s%d, s%d, s3" % (S_XOFF, S_XOFF))
        a("s_mul_i32 s%d, s%d, %d" % (S_XOFF, S_XOFF, c.K // 8 * 512))
    if c.wmode == "pair":
        a("v_lshrrev_b32 v10, 5, v1")
        a("v_lshlrev_b32 v10, 2, v10")
        a("v_bfe_u32 v11, v1, 2, 2")
        a("v_add_u32 v10, v10, v11")
        a("v_mul_u32_u24 v10, %d, v10" % c.ldw)
        a("v_bfe_u32 v11, v1, 4, 1")
        a("v_lshl_add_u32 v10, v11, 6, v10")
        a("v_and_b32 v11, 3, v1")
        a("v_lshl_add_u32 v4, v11, 4, v10")
        a("s_mul_i32 s%d, s3, %d" % (S_WOFF, 16 * c.ldw))
        a("s_mul_i32 s%d, s5, %d" % (S_TMP, c.ntile_bytes))
        a("s_add_u32 s%d, s%d, s%d" % (S_WOFF, S_WOFF, S_TMP))
        a("s_mul_i32 s55, s3, %d" % (2 * (c.NB // 2) * 1024))
    else:
        a("v_lshrrev_b32 v12, 4, v1")
        a("v_bfe_u32 v13, v1, 2, 2")
        a("v_and_b32 v14, 3, v1")
        a("v_lshlrev_b32 v14, 4, v14")
        for t in range(7):
            a("v_add_u32 v15, %d, v12" % (4 * t))
            a("v_mul_u32_u24 v16, 37, v15")
            a("v_lshrrev_b32 v16, 8, v16")
            a("v_mul_u32_u24 v17, 7, v16")
            a("v_sub_u32 v17, v15, v17")
            a("v_lshl_add_u32 v16, v16, 2, v13")
            a("v_mul_u32_u24 v16, %d, v16" % c.ldw)
            a("v_lshl_add_u32 v16, v17, 6, v16")
            a("v_add_u32 v%d, v16, v14" % (4 + t))
        a("s_mul_i32 s%d, s3, %d" % (S_WOFF, 16 * c.ldw))
        a("s_mul_i32 s%d, s5, %d" % (S_TMP, c.ntile_bytes))
        a("s_add_u32 s%d, s%d, s%d" % (S_WOFF, S_WOFF, S_TMP))
        a("s_mul_i32 s55, s3, 7168")
    a("s_add_u32 s55, s55, 16384")
    a("s_lshl_b32 s%d, s3, 12" % S_LDS)
    a("s_mov_b32 s%d, 0" % S_BUF)
    if c.loader_pre: c.loader_pre(a, c)
    npw = 4 + (c.NB * 4) // 4
    assert (c.NS - 1) * npw <= 63
    emit_issue(a, c)
    emit_issue(a, c)
    a("s_waitcnt vmcnt(%d)" % npw)
    a("s_barrier")
    for _ in range(2, c.NS): emit_issue(a, c)
    a("s_mov_b32 s%d, 0" % S_CNT)
    a.label(n + "_lloop")
    a("s_waitcnt vmcnt(%d)" % ((c.NS - 2) * npw))
    if not G.no_bar: a("s_barrier")
    if not G.no_dma: emit_issue(a, c)
    a("s_add_u32 s%d, s%d, 1" % (S_CNT, S_CNT))
    a("s_cmp_lt_u32 s%d, %d" % (S_CNT, c.NST - c.NS))
    a("s_cbranch_scc1 %s_lloop" % n)
    for i in range(c.NST - c.NS, c.NST):
        w = max(0, min(c.NS - 2, c.NST - 2 - i)) * npw
        a("s_waitcnt vmcnt(%d)" % w)
        if not G.no_bar: a("s_barrier")
    if c.loader_post: c.loader_post(a, c)
    a("s_endpgm")

def emit_reads(c, p, s):
    r = []
    xs = []
    for t in range(c.TBW):
        if c.xmode == "row":
            xs.append("ds_read_b128 %s, v%d offset:%d" % (vr(c.XF[p][t], 4), c.VXA + s, t * 4096))
        else:
            xs.append("ds_read_b128 %s, v%d offset:%d" % (vr(c.XF[p][t], 4), c.VXA, t * 4096 + s * 1024))
    ws = []
    for b in range(c.NBW):
        for e in range(2):
            if c.wmode == "pair":
                NP = c.NB // 2
                off = (2 * s * NP + b) * 1024 + e * 512
            else:
                off = ((4 * s + e) * 7 + b) * 256
            ws.append("ds_read_b64_tr_b16 %s, v%d offset:%d" % (vr(c.WF[p][b] + 2 * e, 2), c.VWA, 16384 + off))
    r = ws[:2] + xs + ws[2:]
    return r

def emit_compute_addr(a, c):
    if c.WN == 2:
        a("s_lshr_b32 s6, s3, 1")
        a("s_and_b32 s7, s3, 1")
    else:
        a("s_mov_b32 s6, s3")
        a("s_mov_b32 s7, 0")
    a("v_and_b32 v10, 31, v1")
    a("v_lshrrev_b32 v11, 5, v1")
    if c.xmode == "row":
        a("v_bfe_u32 v12, v10, 1, 3")
        a("v_xor_b32 v12, v12, v11")
        a("s_mul_i32 s56, s6, %d" % (c.TBW * 32 * 128))
        a("v_lshlrev_b32 v13, 7, v10")
        a("v_add_u32 v13, s56, v13")
        for s in range(4):
            a("v_xor_b32 v14, %d, v12" % (2 * s))
            a("v_lshl_add_u32 v%d, v14, 4, v13" % (c.VXA + s))
    else:
        a("s_mul_i32 s56, s6, %d" % (c.TBW * 4096))
        a("v_lshlrev_b32 v13, 4, v1")
        a("v_add_u32 v%d, s56, v13" % c.VXA)
    a("v_bfe_u32 v12, v1, 2, 2")
    a("v_lshlrev_b32 v12, 6, v12")
    a("v_bfe_u32 v13, v1, 4, 1")
    a("v_lshl_add_u32 v12, v13, 5, v12")
    a("v_and_b32 v13, 3, v1")
    a("v_lshl_add_u32 v12, v13, 3, v12")
    if c.wmode == "pair":
        a("v_mul_u32_u24 v13, %d, v11" % ((c.NB // 2) * 1024))
        a("s_lshl_b32 s56, s7, 8")
        a("v_add3_u32 v%d, v12, v13, s56" % c.VWA)
    else:
        a("v_mul_u32_u24 v13, %d, v11" % (2 * 7 * 256))
        a("v_add_u32 v%d, v12, v13" % c.VWA)

def emit_mainloop(a, c):
    n = c.name
    nx = 4 if c.xmode == "row" else 1
    for r in emit_reads(c, 0, 0): a(r)
    a("s_mov_b32 s%d, 0" % S_CNT)
    a("s_mov_b32 s%d, 0" % S_BUF)
    a.label(n + "_loop")
    if getattr(c, "loop_hook", None): c.loop_hook(a, c)
    for s in range(4):
        p = s & 1
        a("s_waitcnt lgkmcnt(0)")
        if s == 3:
            a("s_add_u32 s%d, s%d, 1" % (S_BUF, S_BUF))
            a("s_cmp_eq_u32 s%d, %d" % (S_BUF, c.NS))
            a("s_cselect_b32 s%d, s62, s61" % S_DELTA)
            a("s_cselect_b32 s%d, 0, s%d" % (S_BUF, S_BUF))
            for q in range(nx):
                a("v_add_u32 v%d, s%d, v%d" % (c.VXA + q, S_DELTA, c.VXA + q))
            a("v_add_u32 v%d, s%d, v%d" % (c.VWA, S_DELTA, c.VWA))
            if not G.no_bar: a("s_barrier")
        reads = emit_reads(c, 1 - p, (s + 1) & 3)
        mf = []
        for b in range(c.NBW):
            for t in range(c.TBW):
                acc = c.ACC[t][b]
                if c.orient[b] == "T":
                    mf.append("v_mfma_f32_32x32x16_bf16 %s, %s, %s, %s" % (vr(acc, 16), vr(c.WF[p][b], 4), vr(c.XF[p][t], 4), vr(acc, 16)))
                else:
                    mf.append("v_mfma_f32_32x32x16_bf16 %s, %s, %s, %s" % (vr(acc, 16), vr(c.XF[p][t], 4), vr(c.WF[p][b], 4), vr(acc, 16)))
        if G.fake16:
            mf = []
            for b in range(c.NBW):
                for t in range(c.TBW):
                    acc = c.ACC[t][b] + 8 * (s & 1)
                    for hh in range(2):
                        mf.append("v_mfma_f32_16x16x32_bf16 %s, %s, %s, %s" % (vr(acc + 4*hh, 4), vr(c.WF[p][b], 4), vr(c.XF[p][t], 4), vr(acc + 4*hh, 4)))
        if G.no_mfma: mf = ["s_nop 0"] * len(mf)
        if G.no_reads: reads = []
        per = c.reads_per_gap
        if G.fake16: per = (per + 1) // 2
        ri = 0
        for m in mf:
            a(m)
            for _ in range(per):
                if ri < len(reads): a(reads[ri]); ri += 1
        while ri < len(reads): a(reads[ri]); ri += 1
    a("s_add_u32 s%d, s%d, 1" % (S_CNT, S_CNT))
    a("s_cmp_lt_u32 s%d, %d" % (S_CNT, c.NST))
    a("s_cbranch_scc1 %s_loop" % n)
    a("s_waitcnt lgkmcnt(0)")

def gemm_kernel(a, c, kidx):
    n = c.name
    c.kidx = kidx
    kernel_begin(a, n)
    a("s_cmp_ge_u32 s2, 256")
    a("s_cbranch_scc1 %s_end" % n)
    stamp(a, 0)
    for i, pn in enumerate(c.ptrs): ldptr(a, 32 + 2 * i, pn)
    tile_map(a, *c.xcdmap)
    a("v_lshrrev_b32 v2, 6, v0")
    a("v_and_b32 v1, 63, v0")
    a("v_readfirstlane_b32 s3, v2")
    a("s_waitcnt lgkmcnt(0)")
    if G.mode == 2: stamp(a, 1)
    c.srds(a, c)
    a("s_mov_b32 s61, %d" % c.SS)
    a("s_mov_b32 s62, 0x%x" % ((-(c.NS - 1) * c.SS) & 0xffffffff))
    a("s_cmp_ge_u32 s3, 4")
    a("s_cbranch_scc1 %s_loader" % n)
    emit_compute_addr(a, c)
    for t in range(c.TBW):
        for b in range(c.NBW):
            for r in range(16): a("v_mov_b32 v%d, 0" % (c.ACC[t][b] + r))
    if c.compute_pre: c.compute_pre(a, c)
    a("s_waitcnt lgkmcnt(0)")
    a("s_barrier")
    if G.mode == 1: stamp(a, 1); cstamp(a, 0)
    emit_mainloop(a, c)
    if G.mode == 1: stamp(a, 2); cstamp(a, 1)
    c.epilogue(a, c)
    if G.prof and G.mode == 1:
        a("s_waitcnt vmcnt(0)")
        stamp(a, 3)
        a("s_cmp_lg_u32 s3, 0")
        a("s_cbranch_scc1 %s_end" % n)
        prof_store(a, kidx, c.wsptr)
    a("s_endpgm")
    emit_loader(a, c)
    a.label(n + "_end")
    a("s_endpgm")
```

```python
from gen import *

MF16 = "v_mfma_f32_16x16x32_bf16"

def emit_issue2(a, c):
    if c.xmode == "row":
        for j in range(4):
            a("s_add_u32 m0, s%d, %d" % (S_LDS, j * 1024))
            a("s_add_u32 s%d, s%d, %d" % (S_TMP, S_XOFF, j * 8 * c.ldx))
            a("buffer_load_dwordx4 v%d, s[8:11], s%d offen lds" % (2 + (j & 1), S_TMP))
        a("s_add_u32 s%d, s%d, 128" % (S_XOFF, S_XOFF))
    else:
        a("s_mov_b32 m0, s%d" % S_LDS)
        a("s_nop 0")
        for j in range(4):
            a("buffer_load_dwordx4 v2, s[8:11], s%d offen offset:%d lds" % (S_XOFF, j * 1024))
        a("s_add_u32 s%d, s%d, 4096" % (S_XOFF, S_XOFF))
    if c.wmode == "pair":
        NP = c.NB // 2
        for kpl in range(2):
            for np_ in range(NP):
                a("s_add_u32 m0, s55, %d" % ((kpl * NP + np_) * 1024))
                a("s_add_u32 s%d, s%d, %d" % (S_TMP, S_WOFF, kpl * 8 * c.ldw + c.strip[np_]))
                a("buffer_load_dwordx4 v%d, s[12:15], s%d offen lds" % (4 + kpl, S_TMP))
    else:
        for t in range(7):
            a("s_add_u32 m0, s55, %d" % (t * 1024))
            a("s_nop 0")
            a("buffer_load_dwordx4 v%d, s[12:15], s%d offen lds" % (4 + t, S_WOFF))
    a("s_add_u32 s%d, s%d, %d" % (S_WOFF, S_WOFF, 64 * c.ldw))
    a("s_add_u32 s%d, s%d, 1" % (S_BUF, S_BUF))
    a("s_cmp_eq_u32 s%d, %d" % (S_BUF, c.NS))
    a("s_cselect_b32 s%d, s62, s61" % S_DELTA)
    a("s_cselect_b32 s%d, 0, s%d" % (S_BUF, S_BUF))
    a("s_add_u32 s%d, s%d, s%d" % (S_LDS, S_LDS, S_DELTA))
    a("s_add_u32 s55, s55, s%d" % S_DELTA)
    if G.wrap:
        xs = 128 if c.xmode == "row" else 4096
        a("s_add_u32 s74, s74, 1")
        a("s_cmp_eq_u32 s74, %d" % G.wrap)
        a("s_cselect_b32 s75, %d, 0" % (G.wrap * xs))
        a("s_sub_u32 s%d, s%d, s75" % (S_XOFF, S_XOFF))
        a("s_cselect_b32 s75, %d, 0" % (G.wrap * 64 * c.ldw))
        a("s_cmp_eq_u32 s74, %d" % G.wrap)
        a("s_cselect_b32 s75, %d, 0" % (G.wrap * 64 * c.ldw))
        a("s_cselect_b32 s74, 0, s74")
        a("s_sub_u32 s%d, s%d, s75" % (S_WOFF, S_WOFF))

def emit_loader2(a, c):
    n = c.name
    a.label(n + "_loader")
    a("s_sub_u32 s3, s3, 4")
    if c.xmode == "row":
        a("v_lshrrev_b32 v10, 3, v1")
        a("v_mul_u32_u24 v10, %d, v10" % c.ldx)
        a("v_and_b32 v11, 7, v1")
        a("v_lshrrev_b32 v12, 4, v1")
        a("v_xor_b32 v13, v11, v12")
        a("v_lshl_add_u32 v2, v13, 4, v10")
        a("v_xor_b32 v13, 4, v13")
        a("v_lshl_add_u32 v3, v13, 4, v10")
        a("s_lshl_b32 s%d, s4, 7" % S_XOFF)
        a("s_lshl_b32 s%d, s3, 5" % S_TMP)
        a("s_add_u32 s%d, s%d, s%d" % (S_XOFF, S_XOFF, S_TMP))
        a("s_mul_i32 s%d, s%d, %d" % (S_XOFF, S_XOFF, c.ldx))
    else:
        a("v_lshlrev_b32 v2, 4, v1")
        a("s_lshl_b32 s%d, s4, 2" % S_XOFF)
        a("s_add_u32 s%d, s%d, s3" % (S_XOFF, S_XOFF))
        a("s_mul_i32 s%d, s%d, %d" % (S_XOFF, S_XOFF, c.KX // 8 * 512))
        if c.koff_x: c.koff_x(a, c)
    if c.wmode == "pair":
        a("v_lshrrev_b32 v10, 5, v1")
        a("v_lshlrev_b32 v10, 2, v10")
        a("v_bfe_u32 v11, v1, 2, 2")
        a("v_add_u32 v10, v10, v11")
        a("v_mul_u32_u24 v10, %d, v10" % c.ldw)
        a("v_bfe_u32 v11, v1, 4, 1")
        a("v_lshl_add_u32 v10, v11, 6, v10")
        a("v_and_b32 v11, 3, v1")
        a("v_lshl_add_u32 v4, v11, 4, v10")
        a("v_xor_b32 v11, 2, v11")
        a("v_lshl_add_u32 v5, v11, 4, v10")
        a("s_mul_i32 s%d, s3, %d" % (S_WOFF, 16 * c.ldw))
        a("s_mul_i32 s%d, s5, %d" % (S_TMP, c.ntile_bytes))
        a("s_add_u32 s%d, s%d, s%d" % (S_WOFF, S_WOFF, S_TMP))
        if c.koff_w: c.koff_w(a, c)
        a("s_mul_i32 s55, s3, %d" % (2 * (c.NB // 2) * 1024))
    else:
        a("v_lshrrev_b32 v12, 4, v1")
        a("v_bfe_u32 v13, v1, 2, 2")
        a("v_and_b32 v14, 3, v1")
        for t in range(7):
            a("v_add_u32 v15, %d, v12" % (4 * t))
            a("v_mul_u32_u24 v16, 37, v15")
            a("v_lshrrev_b32 v16, 8, v16")
            a("v_mul_u32_u24 v17, 7, v16")
            a("v_sub_u32 v17, v15, v17")
            a("v_and_b32 v18, 2, v16")
            a("v_xor_b32 v18, v18, v14")
            a("v_lshl_add_u32 v16, v16, 2, v13")
            a("v_mul_u32_u24 v16, %d, v16" % c.ldw)
            a("v_lshl_add_u32 v16, v17, 6, v16")
            a("v_lshl_add_u32 v%d, v18, 4, v16" % (4 + t))
        a("s_mul_i32 s%d, s3, %d" % (S_WOFF, 16 * c.ldw))
        a("s_mul_i32 s%d, s5, %d" % (S_TMP, c.ntile_bytes))
        a("s_add_u32 s%d, s%d, s%d" % (S_WOFF, S_WOFF, S_TMP))
        a("s_mul_i32 s55, s3, 7168")
    a("s_add_u32 s55, s55, 16384")
    a("s_lshl_b32 s%d, s3, 12" % S_LDS)
    a("s_mov_b32 s%d, 0" % S_BUF)
    npw = 4 + c.NB
    if G.wrap: a("s_mov_b32 s74, 0")
    assert (c.NS - 1) * npw <= 63
    npre = 0
    if c.loader_pre: npre = c.loader_pre(a, c) or 0
    emit_issue2(a, c)
    emit_issue2(a, c)
    a("s_waitcnt vmcnt(%d)" % npw)
    a("s_barrier")
    if c.NS > 2:
        a("s_mov_b32 s%d, 2" % S_CNT)
        a.label(n + "_lpro")
        emit_issue2(a, c)
        a("s_add_u32 s%d, s%d, 1" % (S_CNT, S_CNT))
        a("s_cmp_lt_u32 s%d, %d" % (S_CNT, c.NS))
        a("s_cbranch_scc1 %s_lpro" % n)
    a("s_mov_b32 s%d, 0" % S_CNT)
    a.label(n + "_lloop")
    a("s_waitcnt vmcnt(%d)" % ((c.NS - 2) * npw))
    if not G.no_bar: a("s_barrier")
    if not G.no_dma: emit_issue2(a, c)
    a("s_add_u32 s%d, s%d, 1" % (S_CNT, S_CNT))
    a("s_cmp_lt_u32 s%d, %d" % (S_CNT, c.NST - c.NS))
    a("s_cbranch_scc1 %s_lloop" % n)
    for i in range(c.NST - c.NS, c.NST):
        w = max(0, min(c.NS - 2, c.NST - 2 - i)) * npw
        a("s_waitcnt vmcnt(%d)" % w)
        if not G.no_bar: a("s_barrier")
    if c.loader_post: c.loader_post(a, c)
    a("s_endpgm")

def emit_reads2(c, p, s):
    xs = []
    for t in range(4):
        if c.xmode == "row":
            xs.append("ds_read_b128 %s, v%d offset:%d" % (vr(c.XF[p][t], 4), c.VXA + s, t * 2048))
        else:
            xs.append("ds_read_b128 %s, v%d offset:%d" % (vr(c.XF[p][t], 4), c.VXA, (t >> 1) * 4096 + (t & 1) * 256 + s * 2048))
    ws = []
    for b in range(c.TNI):
        nb, g, areg = c.wtile(b)
        for e in range(2):
            if c.wmode == "pair":
                NP = c.NB // 2
                off = s * 4 * NP * 1024 + (nb >> 1) * 1024 + e * 512 + (nb & 1) * 256
            else:
                off = ((8 * s + e) * 7 + nb) * 256
            ws.append("ds_read_b64_tr_b16 %s, v%d offset:%d" % (vr(c.WF[p][b] + 2 * e, 2), areg, 16384 + off))
    r = ws[:2] + xs + ws[2:]
    return r

def emit_compute_addr2(a, c):
    a("s_lshr_b32 s6, s3, 1")
    a("s_and_b32 s7, s3, 1")
    a("v_and_b32 v10, 15, v1")
    a("v_lshrrev_b32 v11, 4, v1")
    if c.xmode == "row":
        a("v_bfe_u32 v12, v10, 1, 3")
        a("v_xor_b32 v12, v12, v11")
        a("s_lshl_b32 s56, s6, 13")
        a("v_lshlrev_b32 v13, 7, v10")
        a("v_add_u32 v13, s56, v13")
        for s in range(2):
            a("v_xor_b32 v14, %d, v12" % (4 * s))
            a("v_lshl_add_u32 v%d, v14, 4, v13" % (c.VXA + s))
    else:
        a("s_lshl_b32 s56, s6, 13")
        a("v_lshlrev_b32 v13, 9, v11")
        a("v_lshl_add_u32 v13, v10, 4, v13")
        a("v_add_u32 v%d, s56, v13" % c.VXA)
    a("v_bfe_u32 v12, v1, 2, 2")
    a("v_lshlrev_b32 v12, 6, v12")
    a("v_and_b32 v13, 3, v1")
    a("v_lshl_add_u32 v12, v13, 3, v12")
    qstride = (c.NB // 2) * 1024 if c.wmode == "pair" else 2 * 7 * 256
    a("v_mul_u32_u24 v13, %d, v11" % qstride)
    a("v_add_u32 v12, v12, v13")
    a("v_and_b32 v13, 1, v11")
    a("v_lshl_add_u32 v12, v13, 5, v12")
    if c.wmode == "pair":
        a("s_mul_i32 s56, s7, %d" % c.wwave_off)
        a("v_add_u32 v%d, s56, v12" % c.VWA)
        a("v_xor_b32 v%d, 32, v%d" % (c.VWA + 1, c.VWA))
    else:
        a("s_lshl_b32 s56, s7, 5")
        a("v_xor_b32 v12, s56, v12")
        a("v_xor_b32 v13, 32, v12")
        a("s_mul_i32 s56, s7, 768")
        a("v_add_u32 v%d, s56, v12" % c.VWA)
        a("s_lshl_b32 s56, s7, 10")
        a("v_add_u32 v%d, s56, v13" % (c.VWA + 1))

def emit_touch_setup(a, c):
    NU = c.tu_x + c.tu_w
    assert NU in (16, 32)
    per = 128 // NU
    a("s_lshr_b32 s64, s2, 3")
    a("s_lshl_b32 s64, s64, 2")
    a("s_add_u32 s64, s64, s3")
    a("s_and_b32 s65, s64, %d" % (NU - 1))
    a("s_lshr_b32 s74, s64, %d" % (4 if NU == 16 else 5))
    a("s_cmp_lt_u32 s65, %d" % c.tu_x)
    a("s_cbranch_scc0 %s_tw" % c.name)
    a("s_mov_b32 s68, s8\ns_mov_b32 s69, s9\ns_mov_b32 s70, s10\ns_mov_b32 s71, 0x20000")
    a("s_and_b32 s66, s4, %d" % (~(c.tmx - 1) & 0xff))
    a("s_lshr_b32 s67, s65, 1")
    a("s_add_u32 s66, s66, s67")
    a("s_lshl_b32 s66, s66, 2")
    a("s_and_b32 s67, s65, 1")
    a("s_lshl_b32 s67, s67, 1")
    a("s_add_u32 s66, s66, s67")
    a("s_mul_i32 s72, s66, %d" % (c.KX // 8 * 512))
    a("v_lshrrev_b32 v%d, 5, v1" % c.VT)
    a("v_mul_u32_u24 v%d, %d, v%d" % (c.VT, c.KX // 8 * 512 // 64, c.VT))
    a("v_lshlrev_b32 v%d, 6, v%d" % (c.VT, c.VT))
    a("v_and_b32 v14, 31, v1")
    a("v_lshl_add_u32 v%d, v14, 7, v%d" % (c.VT, c.VT))
    a("s_mov_b32 s73, 4096")
    a("s_branch %s_td" % c.name)
    a.label(c.name + "_tw")
    rpu = 64 // c.tu_w; lpr = 64 // rpu
    import math
    a("s_mov_b32 s68, s12\ns_mov_b32 s69, s13\ns_mov_b32 s70, s14\ns_mov_b32 s71, 0x20000")
    a("s_sub_u32 s66, s65, %d" % c.tu_x)
    a("s_mul_i32 s72, s66, %d" % (rpu * c.ldw))
    a("s_and_b32 s67, s5, %d" % (~(c.tnx - 1) & 0xff))
    a("s_mul_i32 s67, s67, %d" % c.ntile_bytes)
    a("s_and_b32 s67, s67, 0xffffff80")
    a("s_add_u32 s72, s72, s67")
    a("v_lshrrev_b32 v%d, %d, v1" % (c.VT, int(math.log2(lpr))))
    a("v_mul_u32_u24 v%d, %d, v%d" % (c.VT, c.ldw, c.VT))
    a("v_and_b32 v14, %d, v1" % (lpr - 1))
    a("v_lshl_add_u32 v%d, v14, 7, v%d" % (c.VT, c.VT))
    a("s_mov_b32 s73, %d" % (64 * c.ldw))
    a.label(c.name + "_td")
    if c.touch_koff: c.touch_koff(a, c)
    a("s_mul_i32 s66, s73, %d" % c.tD)
    a("s_add_u32 s72, s72, s66")
    t0 = c.NS
    k = 0
    while t0 + per * k < c.tD:
        a("s_sub_u32 s66, %d, s74" % (c.tD - t0 - per * k))
        a("s_cmp_gt_i32 s66, 0")
        a("s_cbranch_scc0 %s_tb%d" % (c.name, k))
        a("s_mul_i32 s66, s66, s73")
        a("s_sub_u32 s66, s72, s66")
        a("buffer_load_dword v%d, v%d, s[68:71], s66 offen" % (c.VT + 1, c.VT))
        a.label("%s_tb%d" % (c.name, k))
        k += 1

def emit_touch(a, c):
    NU = c.tu_x + c.tu_w
    per = 128 // NU
    a("s_add_u32 s74, s74, 1")
    a("s_and_b32 s75, s74, %d" % (per - 1))
    a("s_cbranch_scc1 %s_tskip" % c.name)
    a("buffer_load_dword v%d, v%d, s[68:71], s72 offen" % (c.VT + 1, c.VT))
    a.label(c.name + "_tskip")
    a("s_add_u32 s72, s72, s73")

def emit_mainloop2(a, c):
    n = c.name
    nx = 2 if c.xmode == "row" else 1
    for r in emit_reads2(c, 0, 0): a(r)
    a("s_mov_b32 s%d, 0" % S_CNT)
    a("s_mov_b32 s%d, 0" % S_BUF)
    a.label(n + "_loop")
    for s in range(2):
        p = s
        a("s_waitcnt lgkmcnt(0)")
        if s == 0 and getattr(c, "tD", 0): emit_touch(a, c)
        if s == 1:
            a("s_add_u32 s%d, s%d, 1" % (S_BUF, S_BUF))
            a("s_cmp_eq_u32 s%d, %d" % (S_BUF, c.NS))
            a("s_cselect_b32 s%d, s62, s61" % S_DELTA)
            a("s_cselect_b32 s%d, 0, s%d" % (S_BUF, S_BUF))
            for q in range(nx):
                a("v_add_u32 v%d, s%d, v%d" % (c.VXA + q, S_DELTA, c.VXA + q))
            a("v_add_u32 v%d, s%d, v%d" % (c.VWA, S_DELTA, c.VWA))
            a("v_add_u32 v%d, s%d, v%d" % (c.VWA + 1, S_DELTA, c.VWA + 1))
            if not G.no_bar: a("s_barrier")
        reads = emit_reads2(c, 1 - p, 1 - s)
        mf = []
        for b in range(c.TNI):
            for t in range(4):
                acc = c.ACC[t][b]
                if c.orient[b] == "T":
                    mf.append("%s %s, %s, %s, %s" % (MF16, vr(acc, 4), vr(c.WF[p][b], 4), vr(c.XF[p][t], 4), vr(acc, 4)))
                else:
                    mf.append("%s %s, %s, %s, %s" % (MF16, vr(acc, 4), vr(c.XF[p][t], 4), vr(c.WF[p][b], 4), vr(acc, 4)))
        if G.no_mfma: mf = ["s_nop 0"] * len(mf)
        if G.no_reads: reads = []
        ri = 0
        for k, m in enumerate(mf):
            a(m)
            for _ in range(c.reads_per_gap):
                if ri < len(reads): a(reads[ri]); ri += 1
        while ri < len(reads): a(reads[ri]); ri += 1
    a("s_add_u32 s%d, s%d, 1" % (S_CNT, S_CNT))
    a("s_cmp_lt_u32 s%d, %d" % (S_CNT, c.NST))
    a("s_cbranch_scc1 %s_loop" % n)
    a("s_waitcnt lgkmcnt(0)")

def gemm_kernel2(a, c, kidx):
    n = c.name
    c.kidx = kidx
    kernel_begin(a, n)
    a("s_cmp_ge_u32 s2, 256")
    a("s_cbranch_scc1 %s_end" % n)
    stamp(a, 0)
    for i, pn in enumerate(c.ptrs): ldptr(a, 32 + 2 * i, pn)
    c.tmap(a, c)
    a("v_lshrrev_b32 v2, 6, v0")
    a("v_and_b32 v1, 63, v0")
    a("v_readfirstlane_b32 s3, v2")
    a("s_mov_b32 s61, %d" % c.SS)
    a("s_mov_b32 s62, 0x%x" % ((-(c.NS - 1) * c.SS) & 0xffffffff))
    a("s_waitcnt lgkmcnt(0)")
    c.srds(a, c)
    a("s_cmp_ge_u32 s3, 4")
    a("s_cbranch_scc1 %s_loader" % n)
    emit_compute_addr2(a, c)
    if getattr(c, "tD", 0): emit_touch_setup(a, c)
    if c.compute_pre: c.compute_pre(a, c)
    for t in range(4):
        for b in range(c.TNI):
            for r in range(4): a("v_mov_b32 v%d, 0" % (c.ACC[t][b] + r))
    if c.compute_pre2: c.compute_pre2(a, c)
    a("s_waitcnt lgkmcnt(0)")
    a("s_barrier")
    if G.mode == 1: stamp(a, 1); cstamp(a, 0)
    emit_mainloop2(a, c)
    if G.mode == 1: stamp(a, 2); cstamp(a, 1)
    c.epilogue(a, c)
    if G.prof and G.mode == 1:
        a("s_waitcnt vmcnt(0)")
        stamp(a, 3)
        a("s_cmp_lg_u32 s3, 0")
        a("s_cbranch_scc1 %s_end" % n)
        prof_store(a, kidx, c.wsptr)
    a("s_endpgm")
    emit_loader2(a, c)
    a.label(n + "_end")
    a("s_endpgm")

def pack_pair(a, accA, accB, P):
    a("v_cvt_pk_bf16_f32 v%d, v%d, v%d" % (P, accA, accA + 1))
    a("v_cvt_pk_bf16_f32 v%d, v%d, v%d" % (P + 1, accA + 2, accA + 3))
    a("v_cvt_pk_bf16_f32 v%d, v%d, v%d" % (P + 2, accB, accB + 1))
    a("v_cvt_pk_bf16_f32 v%d, v%d, v%d" % (P + 3, accB + 2, accB + 3))
    a("v_permlane16_swap_b32 v%d, v%d" % (P, P + 2))
    a("v_permlane16_swap_b32 v%d, v%d" % (P + 1, P + 3))

def xq_sum(a, v, t):
    a("v_mov_b32 v%d, v%d" % (t, v))
    a("v_permlane16_swap_b32 v%d, v%d" % (v, t))
    a("v_add_f32 v%d, v%d, v%d" % (v, v, t))
    a("v_mov_b32 v%d, v%d" % (t, v))
    a("v_permlane32_swap_b32 v%d, v%d" % (v, t))
    a("v_add_f32 v%d, v%d, v%d" % (v, v, t))
```

```python
from gen import *

S_L2E = 60

def pack_nat(a, acc, P):
    for g in range(4):
        a("v_cvt_pk_bf16_f32 v%d, v%d, v%d" % (P + 2*g, acc + 4*g, acc + 4*g + 1))
        a("v_cvt_pk_bf16_f32 v%d, v%d, v%d" % (P + 2*g + 1, acc + 4*g + 2, acc + 4*g + 3))
    for s in range(2):
        a("v_permlane32_swap_b32 v%d, v%d" % (P + 4*s, P + 4*s + 2))
        a("v_permlane32_swap_b32 v%d, v%d" % (P + 4*s + 1, P + 4*s + 3))

def pack_raw(a, acc, P):
    for g in range(4):
        a("v_cvt_pk_bf16_f32 v%d, v%d, v%d" % (P + 2*g, acc + 4*g, acc + 4*g + 1))
        a("v_cvt_pk_bf16_f32 v%d, v%d, v%d" % (P + 2*g + 1, acc + 4*g + 2, acc + 4*g + 3))

def xhalf(a, op, v, t):
    a("v_mov_b32 v%d, v%d" % (t, v))
    a("v_permlane32_swap_b32 v%d, v%d" % (v, t))
    a("%s v%d, v%d, v%d" % (op, v, v, t))

def wave_sum(a, v, t):
    for r in (8, 4, 2, 1):
        a("v_add_f32_dpp v%d, v%d, v%d row_ror:%d row_mask:0xf bank_mask:0xf" % (v, v, v, r))
    a("v_mov_b32 v%d, v%d" % (t, v))
    a("v_permlane16_swap_b32 v%d, v%d" % (v, t))
    a("v_add_f32 v%d, v%d, v%d" % (v, v, t))
    xhalf(a, "v_add_f32", v, t)

def softmax_dual(a, P, E, T, PP, PN):
    mx, mn, t0, t1, sp, sn = T, T+1, T+2, T+3, T+4, T+5
    a("v_max3_f32 v%d, v%d, v%d, v%d" % (mx, P, P+1, P+2))
    a("v_min3_f32 v%d, v%d, v%d, v%d" % (mn, P, P+1, P+2))
    for r in range(3, 15, 2):
        a("v_max3_f32 v%d, v%d, v%d, v%d" % (mx, mx, P+r, P+r+1))
        a("v_min3_f32 v%d, v%d, v%d, v%d" % (mn, mn, P+r, P+r+1))
    a("v_max_f32 v%d, v%d, v%d" % (mx, mx, P+15))
    a("v_min_f32 v%d, v%d, v%d" % (mn, mn, P+15))
    a("v_mov_b32 v%d, v%d" % (t0, mx))
    a("v_mov_b32 v%d, v%d" % (t1, mn))
    a("v_permlane32_swap_b32 v%d, v%d" % (mx, t0))
    a("v_permlane32_swap_b32 v%d, v%d" % (mn, t1))
    a("v_max_f32 v%d, v%d, v%d" % (mx, mx, t0))
    a("v_min_f32 v%d, v%d, v%d" % (mn, mn, t1))
    a("v_mul_f32 v%d, s%d, v%d" % (mx, S_L2E, mx))
    a("v_mul_f32 v%d, s%d, v%d" % (mn, S_L2E, mn))
    for r in range(16):
        a("v_fma_f32 v%d, v%d, s%d, -v%d" % (E+r, P+r, S_L2E, mx))
        a("v_fma_f32 v%d, -v%d, s%d, v%d" % (P+r, P+r, S_L2E, mn))
    for r in range(16):
        a("v_exp_f32 v%d, v%d" % (E+r, E+r))
        a("v_exp_f32 v%d, v%d" % (P+r, P+r))
    a("v_add_f32 v%d, v%d, v%d" % (sp, E, E+1))
    a("v_add_f32 v%d, v%d, v%d" % (sn, P, P+1))
    for r in range(2, 16):
        a("v_add_f32 v%d, v%d, v%d" % (sp, sp, E+r))
        a("v_add_f32 v%d, v%d, v%d" % (sn, sn, P+r))
    a("v_mov_b32 v%d, v%d" % (t0, sp))
    a("v_mov_b32 v%d, v%d" % (t1, sn))
    a("v_permlane32_swap_b32 v%d, v%d" % (sp, t0))
    a("v_permlane32_swap_b32 v%d, v%d" % (sn, t1))
    a("v_add_f32 v%d, v%d, v%d" % (sp, sp, t0))
    a("v_add_f32 v%d, v%d, v%d" % (sn, sn, t1))
    a("v_rcp_f32 v%d, v%d" % (sp, sp))
    a("v_rcp_f32 v%d, v%d" % (sn, sn))
    for r in range(16):
        a("v_mul_f32 v%d, v%d, v%d" % (E+r, E+r, sp))
        a("v_mul_f32 v%d, v%d, v%d" % (P+r, P+r, sn))
    pack_raw(a, E, PP)
    pack_raw(a, P, PN)

MF = "v_mfma_f32_32x32x16_bf16"
def mfma(a, d, x, y, c):
    a("%s %s, %s, %s, %s" % (MF, vr(d, 16), vr(x, 4), vr(y, 4), vr(c, 16) if c is not None else "0"))

def k1(a, kidx):
    n = "k1_kernel"
    kernel_begin(a, n)
    a("s_cmp_ge_u32 s2, 480")
    a("s_cbranch_scc1 k1_end")
    stamp(a, 0); cstamp(a, 0); cstamp(a, 1)
    ldptr(a, 32, "x"); ldptr(a, 34, "ws"); ldptr(a, 36, "w1"); ldptr(a, 38, "wqkv")
    a("v_lshrrev_b32 v2, 6, v0")
    a("v_and_b32 v1, 63, v0")
    a("v_readfirstlane_b32 s3, v2")
    a("s_waitcnt lgkmcnt(0)")
    a("s_cmp_ge_u32 s2, 256")
    a("s_cbranch_scc1 k1_cs")
    srd(a, 8, 32, 0, SZ_ACT)
    srd(a, 12, 34, WS_XN, SZ_ACT)
    a("s_lshl_b32 s4, s2, 3")
    a("s_add_u32 s4, s4, s3")
    a("s_lshl_b32 s4, s4, 11")
    a("v_lshlrev_b32 v2, 4, v1")
    a("buffer_load_dwordx4 v[4:7], v2, s[8:11], s4 offen")
    a("buffer_load_dwordx4 v[8:11], v2, s[8:11], s4 offen offset:1024")
    npf = 0
    if G.pf1:
        srd(a, 16, 38, 0, 1024*3072*2)
        gran = G.pf_gran
        per = 64 * gran
        tot = 1024*3072*2
        nw = tot // per
        a("s_lshl_b32 s20, s2, 3")
        a("s_add_u32 s20, s20, s3")
        a("s_mul_i32 s21, s20, %d" % per)
        a("v_mul_u32_u24 v3, %d, v1" % gran)
        k = (nw + 2047) // 2048
        for i in range(k):
            a("buffer_load_dword v%d, v3, s[16:19], s21 offen" % (40 + i))
            a("s_add_u32 s21, s21, %d" % (2048 * per))
        npf = k
    a("s_waitcnt vmcnt(%d)" % npf)
    X = 16
    for i in range(8):
        a("v_lshlrev_b32 v%d, 16, v%d" % (X + 2*i, 4 + i))
        a("v_and_b32 v%d, 0xffff0000, v%d" % (X + 2*i + 1, 4 + i))
    a("v_add_f32 v12, v%d, v%d" % (X, X+1))
    for i in range(2, 16): a("v_add_f32 v12, v12, v%d" % (X + i))
    wave_sum(a, 12, 13)
    a("v_mul_f32 v12, 0x3a800000, v12")
    for i in range(16): a("v_sub_f32 v%d, v%d, v12" % (X + i, X + i))
    a("v_mul_f32 v14, v%d, v%d" % (X, X))
    for i in range(1, 16): a("v_fmac_f32 v14, v%d, v%d" % (X + i, X + i))
    wave_sum(a, 14, 13)
    a("v_mov_b32 v15, 0x3727c5ac")
    a("v_fmac_f32 v15, 0x3a800000, v14")
    a("v_rsq_f32 v15, v15")
    for i in range(16): a("v_mul_f32 v%d, v%d, v15" % (X + i, X + i))
    for i in range(8): a("v_cvt_pk_bf16_f32 v%d, v%d, v%d" % (4 + i, X + 2*i, X + 2*i + 1))
    a("buffer_store_dwordx4 v[4:7], v2, s[12:15], s4 offen")
    a("buffer_store_dwordx4 v[8:11], v2, s[12:15], s4 offen offset:1024")
    if G.prof:
        stamp(a, 1); stamp(a, 2)
        a("s_waitcnt vmcnt(0)")
        stamp(a, 3)
        a("s_cmp_lg_u32 s3, 0")
        a("s_cbranch_scc1 k1_end")
        prof_store(a, kidx, 34)
    a("s_endpgm")
    a.label("k1_cs")
    srd(a, 8, 36, 0, 1024*3584*2)
    srd(a, 12, 34, WS_CS1P, 8*3584*4)
    a("s_sub_u32 s4, s2, 256")
    a("s_mul_hi_u32 s5, s4, 0x%x" % ((2**32 + 27)//28))
    a("s_mul_i32 s6, s5, 28")
    a("s_sub_u32 s6, s4, s6")
    a("v_lshrrev_b32 v2, 4, v0")
    a("v_mul_u32_u24 v2, 7168, v2")
    a("v_and_b32 v3, 15, v0")
    a("v_lshl_add_u32 v2, v3, 4, v2")
    a("s_mul_i32 s7, s5, %d" % (128*7168))
    a("s_lshl_b32 s16, s6, 8")
    a("s_add_u32 s7, s7, s16")
    for i in range(4):
        a("buffer_load_dwordx4 %s, v2, s[8:11], s7 offen" % vr(4 + 4*i, 4))
        if i < 3: a("s_add_u32 s7, s7, %d" % (32*7168))
    A = 24
    a("s_waitcnt vmcnt(0)")
    for d in range(4):
        a("v_lshlrev_b32 v%d, 16, v%d" % (A + 2*d, 4 + d))
        a("v_and_b32 v%d, 0xffff0000, v%d" % (A + 2*d + 1, 4 + d))
    for i in range(1, 4):
        for d in range(4):
            a("v_lshlrev_b32 v20, 16, v%d" % (4 + 4*i + d))
            a("v_and_b32 v21, 0xffff0000, v%d" % (4 + 4*i + d))
            a("v_add_f32 v%d, v%d, v20" % (A + 2*d, A + 2*d))
            a("v_add_f32 v%d, v%d, v21" % (A + 2*d + 1, A + 2*d + 1))
    for e in range(8):
        a("v_mov_b32 v20, v%d" % (A + e))
        a("v_permlane16_swap_b32 v%d, v20" % (A + e))
        a("v_add_f32 v%d, v%d, v20" % (A + e, A + e))
        xhalf(a, "v_add_f32", A + e, 20)
    a("v_and_b32 v3, 15, v1")
    a("v_lshlrev_b32 v3, 5, v3")
    a("s_lshl_b32 s16, s3, 9")
    a("v_add_u32 v3, s16, v3")
    a("ds_write_b128 v3, %s" % vr(A, 4))
    a("ds_write_b128 v3, %s offset:16" % vr(A + 4, 4))
    a("s_waitcnt lgkmcnt(0)")
    a("s_barrier")
    a("s_cmp_ge_u32 s3, 2")
    a("s_cbranch_scc1 k1_end")
    a("v_lshlrev_b32 v3, 2, v0")
    for w in range(8): a("ds_read_b32 v%d, v3 offset:%d" % (4 + w, w * 512))
    a("s_waitcnt lgkmcnt(0)")
    for w in range(1, 8): a("v_add_f32 v4, v4, v%d" % (4 + w))
    a("s_mul_i32 s7, s5, %d" % (3584*4))
    a("s_lshl_b32 s16, s6, 9")
    a("s_add_u32 s7, s7, s16")
    a("buffer_store_dword v4, v3, s[12:15], s7 offen")
    a.label("k1_end")
    a("s_endpgm")
    return dict(name=n, grid=480, block=512, lds=4096, vgpr=48)

def k2_cfg():
    c = Cfg()
    c.name = "k2_kernel"; c.NB = 6; c.WN = 2; c.TBW = 2; c.NBW = 3
    c.xmode = "row"; c.wmode = "pair"; c.K = 1024; c.NST = 16; c.NS = 3
    c.ldx = 2048; c.ldw = 6144; c.strip = [0, 2048, 4096]; c.ntile_bytes = 128
    c.SS = 16384 + 6 * 4096
    c.orient = ["T", "T", "N"]
    c.xcdmap = (8, 4)
    c.VXA = 2; c.VWA = 6
    c.ACC = [[16 + (t*3 + b)*16 for b in range(3)] for t in range(2)]
    c.XF = [[112 + p*8 + t*4 for t in range(2)] for p in range(2)]
    c.WF = [[128 + p*12 + b*4 for b in range(3)] for p in range(2)]
    c.reads_per_gap = 3
    c.ptrs = ["ws", "wqkv", "wphi", "wo", "w2"]
    c.wsptr = 32
    c.WPHI = 3 * c.SS
    c.lds = c.WPHI + 4096
    c.vgpr = 200
    def srds(a, c):
        srd(a, 8, 32, WS_XN, SZ_ACT)
        srd(a, 12, 34, 0, 1024*3072*2)
        srd(a, 16, 32, WS_Q, SZ_ACT)
        srd(a, 20, 32, WS_KVP, 16*32*8192)
        srd(a, 24, 32, WS_ZP, 16*32*256)
        srd(a, 28, 36, 0, 32*2048)
        srd(a, 64, 38, 0, 1024*1024*2)
        srd(a, 68, 40, 0, 3584*1024*2)
    c.srds = srds
    def loader_pre(a, c):
        a("v_lshlrev_b32 v20, 4, v1")
        a("s_lshl_b32 s56, s5, 12")
        a("s_lshl_b32 s57, s3, 10")
        a("s_add_u32 s56, s56, s57")
        a("s_add_u32 m0, s57, %d" % c.WPHI)
        a("s_nop 0")
        a("buffer_load_dwordx4 v20, s[28:31], s56 offen lds")
    c.loader_pre = loader_pre
    c.loader_post = None
    def compute_pre(a, c):
        if not G.pf2k2: return
        gran = G.pf_gran; per = 64 * gran
        a("s_lshl_b32 s63, s2, 2")
        a("s_add_u32 s63, s63, s3")
        a("s_mul_i32 s63, s63, %d" % per)
        a("v_mul_u32_u24 v200, %d, v1" % gran)
    def loop_hook(a, c):
        if not G.pf2k2: return
        for (it, sb) in ((3, 64), (6, 68)):
            a("s_cmp_lg_u32 s52, %d" % it)
            a("s_cbranch_scc1 k2_pf%d" % it)
            a("buffer_load_dword v201, v200, %s, s63 offen" % sr(sb, 4))
            a.label("k2_pf%d" % it)
    c.loop_hook = loop_hook
    c.compute_pre = compute_pre
    def epilogue(a, c):
        a("s_waitcnt vmcnt(0)")
        a("s_mov_b32 s%d, 0x%x" % (S_L2E, LOG2E))
        TMP = 112
        E = 152
        PP = 168; PN = 176
        T = 184
        KV = [112, 128]
        Z = [192, 208]
        WP = 144
        QP = 224
        ONES = 232
        VA = 236; VB = 237; VC = 238; VD = 239
        a("v_and_b32 v10, 31, v1")
        a("v_lshrrev_b32 v11, 5, v1")
        a("v_bfe_u32 v12, v1, 2, 2")
        a("v_lshlrev_b32 v12, 6, v12")
        a("v_bfe_u32 v13, v1, 4, 1")
        a("v_lshl_add_u32 v12, v13, 5, v12")
        a("v_and_b32 v13, 3, v1")
        a("v_lshl_add_u32 v12, v13, 3, v12")
        a("v_lshl_add_u32 v13, v11, 8, v12")
        a("s_lshl_b32 s56, s7, 11")
        a("s_add_u32 s56, s56, %d" % c.WPHI)
        a("v_add_u32 v13, s56, v13")
        for s in range(2):
            for e in range(2):
                a("ds_read_b64_tr_b16 %s, v13 offset:%d" % (vr(WP + 4*s + 2*e, 2), (4*s + 2*e) * 256))
        a("s_lshl_b32 s56, s4, 2")
        a("s_lshl_b32 s57, s6, 1")
        a("s_add_u32 s56, s56, s57")
        a("s_lshl_b32 s56, s56, 7")
        a("s_lshl_b32 s57, s5, 1")
        a("s_add_u32 s57, s57, s7")
        a("s_mov_b32 s58, s57")
        a("s_lshl_b32 s57, s57, 2")
        a("s_add_u32 s56, s56, s57")
        a("s_lshl_b32 s56, s56, 9")
        a("v_lshlrev_b32 v%d, 4, v1" % VA)
        for t in range(2):
            pack_nat(a, c.ACC[t][0], QP)
            a("buffer_store_dwordx4 %s, v%d, s[16:19], s56 offen" % (vr(QP, 4), VA))
            a("buffer_store_dwordx4 %s, v%d, s[16:19], s56 offen offset:1024" % (vr(QP + 4, 4), VA))
            if t == 0: a("s_add_u32 s56, s56, %d" % (128 * 512))
        a("s_lshl_b32 s56, s3, 13")
        a("v_bfe_u32 v12, v10, 1, 2")
        a("v_lshlrev_b32 v13, 6, v10")
        a("v_lshl_add_u32 v13, v11, 3, v13")
        a("v_add_u32 v13, s56, v13")
        for g in range(4):
            a("v_xor_b32 v14, %d, v12" % g)
            a("v_lshl_add_u32 v%d, v14, 4, v13" % (240 + g))
        a("v_bfe_u32 v12, v1, 2, 2")
        a("v_lshlrev_b32 v14, 2, v11")
        a("v_add_u32 v14, v14, v12")
        a("v_lshrrev_b32 v15, 1, v14")
        a("v_and_b32 v15, 3, v15")
        a("v_bfe_u32 v12, v1, 4, 1")
        a("v_lshlrev_b32 v12, 1, v12")
        a("v_bfe_u32 v9, v1, 1, 1")
        a("v_add_u32 v12, v12, v9")
        a("v_xor_b32 v12, v12, v15")
        a("v_lshlrev_b32 v12, 4, v12")
        a("v_lshl_add_u32 v12, v14, 6, v12")
        a("v_and_b32 v9, 1, v1")
        a("v_lshl_add_u32 v12, v9, 3, v12")
        a("v_add_u32 v%d, s56, v12" % VB)
        for r in range(4): a("v_mov_b32 v%d, 0x3f803f80" % (ONES + r))
        a("s_waitcnt lgkmcnt(0)")
        PK = 128
        KP = 112
        PHI = 244
        VP = 120
        for t in range(2):
            pack_raw(a, c.ACC[t][1], KP)
            mfma(a, PK, WP, KP, None)
            mfma(a, PK, WP + 4, KP + 4, PK)
            softmax_dual(a, PK, E, T, PP, PN)
            for sg, PX in enumerate((PP, PN)):
                for g in range(4):
                    a("ds_write_b64 v%d, %s offset:%d" % (240 + g, vr(PX + 2*g, 2), t * 4096 + sg * 2048))
            pack_raw(a, c.ACC[t][2], VP)
            for sg in range(2):
                kvacc = c.ACC[sg][0]
                for s in range(2):
                    for e in range(2):
                        a("ds_read_b64_tr_b16 %s, v%d offset:%d" % (vr(PHI + 4*s + 2*e, 2), VB, t * 4096 + sg * 2048 + (2*s + e) * 512))
                a("s_waitcnt lgkmcnt(0)")
                for s in range(2):
                    first = (t == 0 and s == 0)
                    mfma(a, kvacc, PHI + 4*s, VP + 4*s, None if first else kvacc)
                    mfma(a, Z[sg], PHI + 4*s, ONES, None if first else Z[sg])
        a("s_lshl_b32 s56, s3, 13")
        a("s_add_u32 s56, s56, 65536")
        a("v_add_u32 v%d, s56, v%d" % (VC, VA))
        a("s_xor_b32 s57, s3, 2")
        a("s_lshl_b32 s57, s57, 13")
        a("s_add_u32 s57, s57, 65536")
        a("v_add_u32 v%d, s57, v%d" % (VD, VA))
        kv = [c.ACC[0][0], c.ACC[1][0]]
        a("s_cmp_eq_u32 s6, 0")
        a("s_cbranch_scc1 k2_i0")
        for keep, lab in ((1, None), (0, "k2_i0")):
            if lab: a.label(lab)
            send = 1 - keep
            for q in range(4):
                a("ds_write_b128 v%d, %s offset:%d" % (VC, vr(kv[send] + 4*q, 4), q * 1024))
                a("ds_write_b128 v%d, %s offset:%d" % (VC, vr(Z[send] + 4*q, 4), 4096 + q * 1024))
            a("s_waitcnt lgkmcnt(0)")
            a("s_barrier")
            R = 112
            for q in range(4):
                a("ds_read_b128 %s, v%d offset:%d" % (vr(R + 4*q, 4), VD, q * 1024))
                a("ds_read_b128 %s, v%d offset:%d" % (vr(R + 16 + 4*q, 4), VD, 4096 + q * 1024))
            a("s_waitcnt lgkmcnt(0)")
            for r in range(16):
                a("v_add_f32 v%d, v%d, v%d" % (kv[keep] + r, kv[keep] + r, R + r))
                a("v_add_f32 v%d, v%d, v%d" % (Z[keep] + r, Z[keep] + r, R + 16 + r))
            a("s_lshl_b32 s56, s4, 5")
            a("s_add_u32 s56, s56, s58")
            a("s_lshl_b32 s57, s56, 8")
            a("s_lshl_b32 s56, s56, 13")
            a("s_add_u32 s56, s56, %d" % (keep * 4096))
            for q in range(4):
                a("buffer_store_dwordx4 %s, v%d, s[20:23], s56 offen offset:%d" % (vr(kv[keep] + 4*q, 4), VA, q * 1024))
            a("v_lshlrev_b32 v12, 6, v11")
            a("s_add_u32 s57, s57, %d" % (keep * 128))
            a("s_mov_b32 exec_lo, 1")
            a("s_mov_b32 exec_hi, 1")
            for q in range(4):
                a("buffer_store_dwordx4 %s, v12, s[24:27], s57 offen offset:%d" % (vr(Z[keep] + 4*q, 4), q * 16))
            a("s_mov_b64 exec, -1")
            if keep == 1: a("s_branch k2_done")
        a.label("k2_done")
    c.epilogue = epilogue
    c.vgpr = 256
    return c

def k3(a, kidx):
    n = "k3_kernel"
    kernel_begin(a, n)
    a("s_cmp_ge_u32 s2, 256")
    a("s_cbranch_scc1 k3_end")
    stamp(a, 0); cstamp(a, 0); cstamp(a, 1)
    ldptr(a, 32, "ws"); ldptr(a, 34, "wphi"); ldptr(a, 36, "wo"); ldptr(a, 38, "w2")
    a("s_and_b32 s6, s2, 7")
    a("s_lshr_b32 s7, s2, 3")
    a("s_lshl_b32 s4, s6, 2")
    a("s_lshr_b32 s5, s7, 3")
    a("s_add_u32 s4, s4, s5")
    a("s_and_b32 s5, s7, 7")
    a("v_lshrrev_b32 v2, 6, v0")
    a("v_and_b32 v1, 63, v0")
    a("v_readfirstlane_b32 s3, v2")
    a("s_waitcnt lgkmcnt(0)")
    srd(a, 8, 32, WS_Q, SZ_ACT)
    srd(a, 12, 32, WS_KVP, 16*32*8192)
    srd(a, 16, 32, WS_ZP, 16*32*256)
    srd(a, 20, 32, WS_O, SZ_ACT)
    srd(a, 24, 34, 0, 32*2048)
    a("s_mov_b32 s%d, 0x%x" % (S_L2E, LOG2E))
    VA = 2
    a("v_lshlrev_b32 v%d, 4, v1" % VA)
    a("s_lshl_b32 s40, s4, 11")
    a("s_lshl_b32 s41, s3, 11")
    a("s_add_u32 m0, s41, 8192")
    a("s_nop 0")
    a("buffer_load_dwordx4 v%d, s[24:27], s40 offen lds" % VA)
    a("buffer_load_dwordx4 v%d, s[24:27], s40 offen offset:1024 lds" % VA)
    a("s_lshl_b32 s42, s5, 3")
    a("s_add_u32 s42, s42, s3")
    a("s_lshl_b32 s42, s42, 7")
    a("s_lshl_b32 s43, s4, 2")
    a("s_add_u32 s42, s42, s43")
    a("s_lshl_b32 s42, s42, 9")
    QF = 4
    a("buffer_load_dwordx4 %s, v%d, s[8:11], s42 offen" % (vr(QF, 4), VA))
    a("buffer_load_dwordx4 %s, v%d, s[8:11], s42 offen offset:1024" % (vr(QF + 4, 4), VA))
    L = 64
    a("s_lshl_b32 s44, s4, 13")
    a("s_lshl_b32 s45, s3, 10")
    a("s_add_u32 s44, s44, s45")
    for m in range(16):
        a("buffer_load_dwordx4 %s, v%d, s[12:15], s44 offen" % (vr(L + 4*m, 4), VA))
        if m < 15: a("s_add_u32 s44, s44, %d" % (32 * 8192))
    ZL = 128
    a("s_cmp_lg_u32 s3, 0")
    a("s_cbranch_scc1 k3_noz")
    a("v_lshlrev_b32 v3, 2, v1")
    a("s_lshl_b32 s46, s4, 8")
    for m in range(16):
        a("buffer_load_dword v%d, v3, s[16:19], s46 offen" % (ZL + m))
        if m < 15: a("s_add_u32 s46, s46, %d" % (32 * 256))
    a("s_waitcnt vmcnt(0)")
    for m in range(1, 16): a("v_add_f32 v%d, v%d, v%d" % (ZL, ZL, ZL + m))
    a("v_cvt_pk_bf16_f32 v%d, v%d, v%d" % (ZL, ZL, ZL))
    a("v_lshlrev_b32 v3, 1, v1")
    a("ds_write_b16 v3, v%d offset:4096" % ZL)
    a.label("k3_noz")
    if G.pf2:
        srd(a, 64, 36, 0, 1024*1024*2)
        srd(a, 68, 38, 0, 3584*1024*2)
        a("s_lshl_b32 s63, s2, 3")
        a("s_add_u32 s63, s63, s3")
        a("s_mul_i32 s63, s63, 8192")
        a("v_lshlrev_b32 v160, 7, v1")
        a("s_cmp_lt_u32 s63, %d" % (1024*1024*2))
        a("s_cbranch_scc0 k3_pfw2")
        a("buffer_load_dword v161, v160, s[64:67], s63 offen")
        a("s_branch k3_pfd")
        a.label("k3_pfw2")
        a("s_sub_u32 s63, s63, %d" % (1024*1024*2))
        a("buffer_load_dword v161, v160, s[68:71], s63 offen")
        a.label("k3_pfd")
    a("v_lshrrev_b32 v15, 5, v1")
    a("v_bfe_u32 v12, v1, 2, 2")
    a("v_lshlrev_b32 v12, 6, v12")
    a("v_bfe_u32 v13, v1, 4, 1")
    a("v_lshl_add_u32 v12, v13, 5, v12")
    a("v_and_b32 v13, 3, v1")
    a("v_lshl_add_u32 v12, v13, 3, v12")
    a("v_lshl_add_u32 v13, v15, 9, v12")
    a("s_add_u32 s41, s41, 8192")
    a("v_add_u32 v13, s41, v13")
    a("s_waitcnt vmcnt(%d)" % (19 if G.pf2 else 18))
    WP = 16
    for s in range(2):
        for e in range(2):
            a("ds_read_b64_tr_b16 %s, v13 offset:%d" % (vr(WP + 4*s + 2*e, 2), (4*s + e) * 256))
    a("s_waitcnt vmcnt(%d) lgkmcnt(0)" % (17 if G.pf2 else 16))
    PK = 24; E = 40; T = 56
    PP = 144; PN = 152
    mfma(a, PK, WP, QF, None)
    mfma(a, PK, WP + 4, QF + 4, PK)
    softmax_dual(a, PK, E, T, PP, PN)
    a("s_waitcnt vmcnt(%d)" % (1 if G.pf2 else 0))
    for m in range(1, 16):
        for r in range(4): a("v_add_f32 v%d, v%d, v%d" % (L + r, L + r, L + 4*m + r))
    a("v_cvt_pk_bf16_f32 v%d, v%d, v%d" % (L, L, L + 1))
    a("v_cvt_pk_bf16_f32 v%d, v%d, v%d" % (L + 1, L + 2, L + 3))
    a("s_lshr_b32 s46, s3, 1")
    a("s_lshl_b32 s46, s46, 10")
    a("s_and_b32 s47, s3, 1")
    a("s_lshl_b32 s47, s47, 3")
    a("s_add_u32 s46, s46, s47")
    a("v_add_u32 v3, s46, v%d" % VA)
    a("ds_write_b64 v3, %s" % vr(L, 2))
    a("s_waitcnt lgkmcnt(0)")
    a("s_barrier")
    KF = 64; ZF = 80
    for sg in range(2):
        for s in range(2):
            a("ds_read_b128 %s, v%d offset:%d" % (vr(KF + (sg*2 + s)*4, 4), VA, (sg*2 + s) * 1024))
    a("v_lshlrev_b32 v3, 5, v15")
    for sg in range(2):
        for s in range(2):
            a("ds_read_b128 %s, v3 offset:%d" % (vr(ZF + (sg*2 + s)*4, 4), 4096 + sg * 64 + s * 16))
    a("s_waitcnt lgkmcnt(0)")
    NUM = 96; DEN = 112
    first = True
    for sg, PX in enumerate((PP, PN)):
        for s in range(2):
            mfma(a, NUM, KF + (sg*2 + s)*4, PX + 4*s, None if first else NUM)
            mfma(a, DEN, ZF + (sg*2 + s)*4, PX + 4*s, None if first else DEN)
            first = False
    a("v_add_f32 v3, 0x358637bd, v%d" % DEN)
    a("v_rcp_f32 v3, v3")
    for r in range(16): a("v_mul_f32 v%d, v%d, v3" % (NUM + r, NUM + r))
    OP = 128
    pack_nat(a, NUM, OP)
    a("buffer_store_dwordx4 %s, v%d, s[20:23], s42 offen" % (vr(OP, 4), VA))
    a("buffer_store_dwordx4 %s, v%d, s[20:23], s42 offen offset:1024" % (vr(OP + 4, 4), VA))
    if G.prof:
        stamp(a, 1); stamp(a, 2)
        a("s_waitcnt vmcnt(0)")
        stamp(a, 3)
        a("s_cmp_lg_u32 s3, 0")
        a("s_cbranch_scc1 k3_end")
        prof_store(a, kidx, 32)
    a.label("k3_end")
    a("s_endpgm")
    return dict(name=n, grid=256, block=512, lds=8192 + 16384, vgpr=168)

def small_cfg(name, K, NS):
    c = Cfg()
    c.name = name; c.NB = 2; c.WN = 2; c.TBW = 2; c.NBW = 1
    c.xmode = "blk"; c.wmode = "pair"; c.K = K; c.NST = K // 64; c.NS = NS
    c.ldw = 2048; c.strip = [0]; c.ntile_bytes = 128
    c.SS = 16384 + 2 * 4096
    c.orient = ["T"]
    c.xcdmap = (4, 8)
    c.VXA = 2; c.VWA = 6
    c.ACC = [[16], [32]]
    c.XF = [[48 + p*8 + t*4 for t in range(2)] for p in range(2)]
    c.WF = [[64 + p*4] for p in range(2)]
    c.reads_per_gap = 2
    return c

def k4_cfg():
    c = small_cfg("k4_kernel", 1024, 5)
    c.ptrs = ["ws", "wo", "x"]
    c.wsptr = 32
    c.XT = c.NS * c.SS
    c.lds = c.XT + 16384
    def srds(a, c):
        srd(a, 8, 32, WS_O, SZ_ACT)
        srd(a, 12, 34, 0, 1024*1024*2)
        srd(a, 16, 32, WS_H, SZ_ACT)
        srd(a, 20, 32, WS_HSTP, 32*2048*8)
        srd(a, 24, 36, 0, SZ_ACT)
    c.srds = srds
    def loader_pre(a, c):
        a("v_lshrrev_b32 v10, 3, v1")
        a("v_lshlrev_b32 v10, 11, v10")
        a("v_and_b32 v11, 7, v1")
        a("v_lshrrev_b32 v12, 4, v1")
        a("v_xor_b32 v13, v11, v12")
        a("v_lshl_add_u32 v20, v13, 4, v10")
        a("v_xor_b32 v13, 4, v13")
        a("v_lshl_add_u32 v21, v13, 4, v10")
        a("s_lshl_b32 s56, s4, 7")
        a("s_lshl_b32 s57, s3, 5")
        a("s_add_u32 s56, s56, s57")
        a("s_lshl_b32 s56, s56, 11")
        a("s_lshl_b32 s57, s5, 7")
        a("s_add_u32 s56, s56, s57")
        a("s_lshl_b32 s57, s3, 12")
        a("s_add_u32 s57, s57, %d" % c.XT)
        for j in range(4):
            a("s_add_u32 m0, s57, %d" % (j * 1024))
            a("s_add_u32 s%d, s56, %d" % (S_TMP, j * 8 * 2048))
            a("buffer_load_dwordx4 v%d, s[24:27], s%d offen lds" % (20 + (j & 1), S_TMP))
    c.loader_pre = loader_pre
    c.loader_post = None
    c.compute_pre = None
    def epilogue(a, c):
        a("v_and_b32 v10, 31, v1")
        a("v_lshrrev_b32 v11, 5, v1")
        a("v_bfe_u32 v12, v10, 1, 3")
        a("s_lshl_b32 s56, s7, 2")
        a("v_xor_b32 v12, s56, v12")
        a("s_lshl_b32 s56, s6, 13")
        a("s_add_u32 s56, s56, %d" % c.XT)
        a("v_lshlrev_b32 v13, 7, v10")
        a("v_lshl_add_u32 v13, v11, 3, v13")
        a("v_add_u32 v13, s56, v13")
        for g in range(4):
            a("v_xor_b32 v14, %d, v12" % g)
            a("v_lshl_add_u32 v%d, v14, 4, v13" % (72 + g))
        XR = 80
        for t in range(2):
            for g in range(4):
                a("ds_read_b64 %s, v%d offset:%d" % (vr(XR + t*8 + 2*g, 2), 72 + g, t * 4096))
        a("v_lshlrev_b32 v15, 4, v1")
        a("s_lshl_b32 s56, s4, 2")
        a("s_lshl_b32 s57, s6, 1")
        a("s_add_u32 s56, s56, s57")
        a("s_mov_b32 s58, s56")
        a("s_lshl_b32 s56, s56, 7")
        a("s_lshl_b32 s57, s5, 3")
        a("s_add_u32 s56, s56, s57")
        a("s_lshl_b32 s57, s7, 2")
        a("s_add_u32 s56, s56, s57")
        a("s_lshl_b32 s56, s56, 9")
        a("s_lshl_b32 s57, s5, 1")
        a("s_add_u32 s57, s57, s7")
        a("s_lshl_b32 s57, s57, 11")
        a("s_lshl_b32 s59, s58, 5")
        a("s_add_u32 s57, s57, s59")
        a("s_lshl_b32 s57, s57, 3")
        a("v_lshlrev_b32 v9, 3, v10")
        a("v_lshl_add_u32 v9, v11, 2, v9")
        a("v_cmp_eq_u32 vcc, 0, v11")
        a("s_waitcnt lgkmcnt(0)")
        P = 100
        for t in range(2):
            acc = c.ACC[t][0]
            for g in range(4):
                for d in range(2):
                    x = XR + t*8 + 2*g + d
                    a("v_lshlrev_b32 v96, 16, v%d" % x)
                    a("v_and_b32 v97, 0xffff0000, v%d" % x)
                    a("v_add_f32 v%d, v%d, v96" % (acc + 4*g + 2*d, acc + 4*g + 2*d))
                    a("v_add_f32 v%d, v%d, v97" % (acc + 4*g + 2*d + 1, acc + 4*g + 2*d + 1))
            a("v_add_f32 v96, v%d, v%d" % (acc, acc + 1))
            a("v_mul_f32 v97, v%d, v%d" % (acc, acc))
            a("v_fmac_f32 v97, v%d, v%d" % (acc + 1, acc + 1))
            for r in range(2, 16):
                a("v_add_f32 v96, v96, v%d" % (acc + r))
                a("v_fmac_f32 v97, v%d, v%d" % (acc + r, acc + r))
            xhalf(a, "v_add_f32", 96, 98)
            xhalf(a, "v_add_f32", 97, 98)
            a("v_cndmask_b32 v96, v97, v96, vcc")
            a("buffer_store_dword v96, v9, s[20:23], s57 offen")
            pack_nat(a, acc, P)
            a("buffer_store_dwordx4 %s, v15, s[16:19], s56 offen" % vr(P, 4))
            a("buffer_store_dwordx4 %s, v15, s[16:19], s56 offen offset:1024" % vr(P + 4, 4))
            if t == 0:
                a("s_add_u32 s56, s56, %d" % (128 * 512))
                a("s_add_u32 s57, s57, %d" % (32 * 8))
    c.epilogue = epilogue
    c.vgpr = 112
    return c

def k5_cfg():
    c = Cfg()
    c.name = "k5_kernel"; c.NB = 7; c.WN = 1; c.TBW = 1; c.NBW = 7
    c.xmode = "blk"; c.wmode = "lin7"; c.K = 1024; c.NST = 16; c.NS = 3
    c.ldw = 7168; c.ntile_bytes = 448
    c.SS = 16384 + 7 * 4096
    c.orient = ["T"] * 7
    c.xcdmap = (8, 4)
    c.VXA = 2; c.VWA = 6
    c.ACC = [[16 + b*16 for b in range(7)]]
    c.XF = [[128 + p*4] for p in range(2)]
    c.WF = [[136 + p*28 + b*4 for b in range(7)] for p in range(2)]
    c.reads_per_gap = 3
    c.ptrs = ["ws", "w1", "b1"]
    c.wsptr = 32
    c.TAB = c.NS * c.SS
    c.lds = c.TAB + 2048
    def srds(a, c):
        srd(a, 8, 32, WS_H, SZ_ACT)
        srd(a, 12, 34, 0, 1024*3584*2)
        srd(a, 16, 32, WS_F, SZ_F)
        srd(a, 20, 32, WS_HSTP, 32*2048*8)
        srd(a, 24, 32, WS_CS1P, 8*3584*4)
        srd(a, 28, 36, 0, 3584*2)
    c.srds = srds
    c.loader_pre = None
    c.loader_post = None
    def compute_pre(a, c):
        L = 192
        a("v_lshlrev_b32 v10, 2, v1")
        a("s_lshl_b32 s56, s4, 7")
        a("s_lshl_b32 s57, s3, 5")
        a("s_add_u32 s56, s56, s57")
        a("s_lshl_b32 s56, s56, 3")
        for p in range(32):
            a("buffer_load_dword v%d, v10, s[20:23], s56 offen" % (L + p))
            if p < 31: a("s_add_u32 s56, s56, %d" % (2048 * 8))
        a("v_lshlrev_b32 v11, 2, v0")
        a("s_mul_i32 s57, s5, %d" % (224 * 4))
        C = 224
        for k in range(8):
            a("buffer_load_dword v%d, v11, s[24:27], s57 offen" % (C + k))
            if k < 7: a("s_add_u32 s57, s57, %d" % (3584 * 4))
        a("v_lshlrev_b32 v12, 1, v0")
        a("s_mul_i32 s57, s5, 448")
        a("buffer_load_ushort v%d, v12, s[28:31], s57 offen" % (C + 8))
        a("s_waitcnt vmcnt(9)")
        for p in range(1, 32): a("v_add_f32 v%d, v%d, v%d" % (L, L, L + p))
        a("v_mov_b32_dpp v%d, v%d quad_perm:[0,0,2,2] row_mask:0xf bank_mask:0xf" % (L + 1, L))
        a("v_mov_b32_dpp v%d, v%d quad_perm:[1,1,3,3] row_mask:0xf bank_mask:0xf" % (L + 2, L))
        a("v_mul_f32 v%d, 0x3a800000, v%d" % (L + 1, L + 1))
        a("v_mul_f32 v%d, 0x3a800000, v%d" % (L + 2, L + 2))
        a("v_fma_f32 v%d, -v%d, v%d, v%d" % (L + 2, L + 1, L + 1, L + 2))
        a("v_max_f32 v%d, 0, v%d" % (L + 2, L + 2))
        a("v_add_f32 v%d, 0x3727c5ac, v%d" % (L + 2, L + 2))
        a("v_rsq_f32 v%d, v%d" % (L + 2, L + 2))
        a("v_mul_f32 v%d, v%d, v%d" % (L + 1, L + 1, L + 2))
        a("v_sub_f32 v%d, 0, v%d" % (L + 1, L + 1))
        a("v_and_b32 v13, 31, v1")
        a("v_lshlrev_b32 v13, 3, v13")
        a("ds_bpermute_b32 v8, v13, v%d" % (L + 2))
        a("ds_bpermute_b32 v9, v13, v%d" % (L + 1))
        a("s_waitcnt vmcnt(0)")
        for k in range(1, 8): a("v_add_f32 v%d, v%d, v%d" % (C, C, C + k))
        a("v_lshlrev_b32 v%d, 16, v%d" % (C + 8, C + 8))
        a("v_cmp_gt_u32 vcc, 224, v0")
        a("s_and_saveexec_b64 s[58:59], vcc")
        a("v_add_u32 v11, %d, v11" % c.TAB)
        a("ds_write_b32 v11, v%d" % C)
        a("ds_write_b32 v11, v%d offset:1024" % (C + 8))
        a("s_mov_b64 exec, s[58:59]")
    c.compute_pre = compute_pre
    def epilogue(a, c):
        a("v_lshrrev_b32 v11, 5, v1")
        a("v_lshlrev_b32 v12, 4, v11")
        a("v_add_u32 v12, %d, v12" % c.TAB)
        a("v_lshlrev_b32 v15, 4, v1")
        a("s_lshl_b32 s56, s4, 2")
        a("s_add_u32 s56, s56, s3")
        a("s_mul_i32 s56, s56, 448")
        a("s_mul_i32 s57, s5, 28")
        a("s_add_u32 s56, s56, s57")
        a("s_lshl_b32 s56, s56, 9")
        CS = 128; B1 = 144; P = 160
        for b in range(7):
            acc = c.ACC[0][b]
            q = b & 1
            cs = CS + q * 64; b1 = cs + 16; pk = P + q * 64
            cs = (128 if q == 0 else 192); b1 = cs + 16; pk = cs + 32
            for g in range(4):
                a("ds_read_b128 %s, v12 offset:%d" % (vr(cs + 4*g, 4), (32*b + 8*g) * 4))
                a("ds_read_b128 %s, v12 offset:%d" % (vr(b1 + 4*g, 4), 1024 + (32*b + 8*g) * 4))
            a("s_waitcnt lgkmcnt(0)")
            for r in range(16):
                a("v_fma_f32 v%d, v9, v%d, v%d" % (b1 + r, cs + r, b1 + r))
            for r in range(16):
                a("v_fma_f32 v%d, v8, v%d, v%d" % (acc + r, acc + r, b1 + r))
            for r in range(16):
                a("v_max_f32 v%d, 0, v%d" % (acc + r, acc + r))
            for r in range(16):
                a("v_mul_f32 v%d, v%d, v%d" % (acc + r, acc + r, acc + r))
            pack_nat(a, acc, pk)
            a("buffer_store_dwordx4 %s, v15, s[16:19], s56 offen" % vr(pk, 4))
            a("buffer_store_dwordx4 %s, v15, s[16:19], s56 offen offset:1024" % vr(pk + 4, 4))
            if b < 6: a("s_add_u32 s56, s56, 2048")
    c.epilogue = epilogue
    c.vgpr = 256
    return c

def k6_cfg():
    c = small_cfg("k6_kernel", 3584, 6)
    c.ptrs = ["ws", "w2", "b2", "out"]
    c.wsptr = 32
    c.lds = c.NS * c.SS
    def srds(a, c):
        srd(a, 8, 32, WS_F, SZ_F)
        srd(a, 12, 34, 0, 3584*1024*2)
        srd(a, 16, 32, WS_H, SZ_ACT)
        srd(a, 20, 36, 0, 2048)
        srd(a, 24, 38, 0, SZ_ACT)
    c.srds = srds
    c.loader_pre = None
    c.loader_post = None
    HR = 80; BR = 96
    def compute_pre(a, c):
        a("v_and_b32 v10, 31, v1")
        a("v_lshrrev_b32 v11, 5, v1")
        a("v_lshlrev_b32 v12, 4, v10")
        a("v_lshl_add_u32 v12, v11, 3, v12")
        a("s_lshl_b32 s56, s4, 2")
        a("s_lshl_b32 s57, s6, 1")
        a("s_add_u32 s56, s56, s57")
        a("s_lshl_b32 s56, s56, 7")
        a("s_lshl_b32 s57, s5, 3")
        a("s_add_u32 s56, s56, s57")
        a("s_lshl_b32 s57, s7, 2")
        a("s_add_u32 s56, s56, s57")
        a("s_lshl_b32 s56, s56, 9")
        for t in range(2):
            for g in range(4):
                a("buffer_load_dwordx2 %s, v12, s[16:19], s56 offen offset:%d" % (vr(HR + t*8 + 2*g, 2), g * 512))
            if t == 0: a("s_add_u32 s56, s56, %d" % (128 * 512))
        a("v_lshlrev_b32 v13, 3, v11")
        a("s_lshl_b32 s56, s5, 7")
        a("s_lshl_b32 s57, s7, 6")
        a("s_add_u32 s56, s56, s57")
        for g in range(4):
            a("buffer_load_dwordx2 %s, v13, s[20:23], s56 offen offset:%d" % (vr(BR + 2*g, 2), g * 16))
    c.compute_pre = compute_pre
    def epilogue(a, c):
        a("v_and_b32 v10, 31, v1")
        a("v_lshrrev_b32 v11, 5, v1")
        a("v_lshlrev_b32 v12, 11, v10")
        a("v_lshl_add_u32 v12, v11, 4, v12")
        a("s_lshl_b32 s56, s4, 7")
        a("s_lshl_b32 s57, s6, 6")
        a("s_add_u32 s56, s56, s57")
        a("s_lshl_b32 s56, s56, 11")
        a("s_lshl_b32 s57, s5, 7")
        a("s_add_u32 s56, s56, s57")
        a("s_lshl_b32 s57, s7, 6")
        a("s_add_u32 s56, s56, s57")
        a("s_waitcnt vmcnt(0)")
        BF = 104
        for g in range(4):
            for d in range(2):
                a("v_lshlrev_b32 v%d, 16, v%d" % (BF + 4*g + 2*d, BR + 2*g + d))
                a("v_and_b32 v%d, 0xffff0000, v%d" % (BF + 4*g + 2*d + 1, BR + 2*g + d))
        P = 120
        for t in range(2):
            acc = c.ACC[t][0]
            for g in range(4):
                for d in range(2):
                    x = HR + t*8 + 2*g + d
                    r = 4*g + 2*d
                    a("v_lshlrev_b32 v76, 16, v%d" % x)
                    a("v_and_b32 v77, 0xffff0000, v%d" % x)
                    a("v_add_f32 v%d, v%d, v%d" % (acc + r, acc + r, BF + r))
                    a("v_add_f32 v%d, v%d, v%d" % (acc + r + 1, acc + r + 1, BF + r + 1))
                    a("v_add_f32 v%d, v%d, v76" % (acc + r, acc + r))
                    a("v_add_f32 v%d, v%d, v77" % (acc + r + 1, acc + r + 1))
            pack_nat(a, acc, P)
            a("buffer_store_dwordx4 %s, v12, s[24:27], s56 offen" % vr(P, 4))
            a("buffer_store_dwordx4 %s, v12, s[24:27], s56 offen offset:32" % vr(P + 4, 4))
            if t == 0: a("s_add_u32 s56, s56, %d" % (32 * 2048))
    c.epilogue = epilogue
    c.vgpr = 128
    return c

def build(prof=False, kernels=(1,2,3,4,5,6), extra_head=""):
    G.prof = prof
    a = Asm()
    descs = []
    body = Asm()
    if 1 in kernels: descs.append(k1(body, 0))
    if 2 in kernels:
        c = k2_cfg(); gemm_kernel(body, c, 1); descs.append(dict(name=c.name, grid=256, block=512, lds=c.lds, vgpr=c.vgpr))
    if 3 in kernels: descs.append(k3(body, 2))
    for k, f in ((4, k4_cfg), (5, k5_cfg), (6, k6_cfg)):
        if k in kernels:
            c = f(); gemm_kernel(body, c, k - 1); descs.append(dict(name=c.name, grid=256, block=512, lds=c.lds, vgpr=c.vgpr))
    head = HEADER + extra_head
    for d in descs:
        head += "; @launch kernel=%s grid=(%d,1,1) block=(%d,1,1) lds=%d\n" % (d["name"], d["grid"], d["block"], d["lds"])
    txt = head + '.amdgcn_target "amdgcn-amd-amdhsa--gfx950"\n' + body.text()
    txt += '.section .rodata,"a"\n'
    for d in descs:
        txt += ".p2align 6\n" + kernel_desc(d["name"], d["vgpr"], 96)
    return txt

if __name__ == "__main__":
    import sys
    prof = "prof" in sys.argv
    if "mode2" in sys.argv: G.mode = 2
    for k in ("no_dma", "no_mfma", "no_reads", "no_bar", "fake16"):
        if k in sys.argv: setattr(G, k, True)
    out = sys.argv[1] if len(sys.argv) > 1 else "full.s"
    open(out, "w").write(build(prof=prof))
```

```python
from gen2 import *
import kernels as K1
from kernels import k1, k2_cfg, k3, S_L2E

def tmap_std(mx, nx):
    def f(a, c): tile_map(a, mx, nx)
    return f

def touch(a, srd_s, total_bytes, gran, tmpv, nwaves_total, waveid_s, dst0, extra_off=0):
    per_instr = 64 * gran
    ninstr_total = (total_bytes + per_instr - 1) // per_instr
    n = (ninstr_total + nwaves_total - 1) // nwaves_total
    a("v_mul_u32_u24 v%d, %d, v1" % (tmpv, gran))
    a("s_mul_i32 s63, s%d, %d" % (waveid_s, n * per_instr))
    for i in range(n):
        a("buffer_load_dword v%d, v%d, %s, s63 offen" % (dst0 + i, tmpv, sr(srd_s, 4)))
        if i < n - 1: a("s_add_u32 s63, s63, %d" % per_instr)
    return n

def small_cfg2(name, K, NS):
    c = Cfg()
    c.name = name; c.NB = 2; c.TNI = 2
    c.xmode = "blk"; c.wmode = "pair"; c.KX = K; c.NST = K // 64; c.NS = NS
    c.ldw = 2048; c.strip = [0]; c.ntile_bytes = 128
    c.SS = 16384 + 2 * 4096
    c.orient = ["T"] * 2
    c.tmap = tmap_std(*G.smallmap)
    c.VXA = 2; c.VWA = 6
    c.wwave_off = 256
    c.wtile = lambda b: (0, b & 1, c.VWA + (b & 1))
    c.ACC = [[16 + (t * 2 + b) * 4 for b in range(2)] for t in range(4)]
    c.XF = [[48 + p * 16 + t * 4 for t in range(4)] for p in range(2)]
    c.WF = [[80 + p * 8 + b * 4 for b in range(2)] for p in range(2)]
    c.reads_per_gap = G.rpg_small
    c.koff_x = None; c.koff_w = None
    c.compute_pre2 = None; c.loader_pre = None; c.loader_post = None; c.compute_pre = None
    c.tD = G.touchD; c.tu_x = 8; c.tu_w = 8; c.tmx = 4; c.tnx = 8; c.VT = 4; c.touch_koff = None
    return c

def k4_cfg2():
    c = small_cfg2("k4_kernel", 1024, 5)
    c.ptrs = ["ws", "wo", "x"]
    c.wsptr = 32
    c.XT = c.NS * c.SS
    c.lds = c.XT + 16384
    def srds(a, c):
        srd(a, 8, 32, WS_O, SZ_ACT)
        srd(a, 12, 34, 0, 1024*1024*2)
        srd(a, 16, 32, WS_H, SZ_ACT)
        srd(a, 20, 32, WS_HSTP, 32*2048*8)
        srd(a, 24, 36, 0, SZ_ACT)
    c.srds = srds
    def loader_post(a, c):
        pass
    def loader_pre(a, c):
        a("v_lshrrev_b32 v10, 3, v1")
        a("v_lshlrev_b32 v10, 11, v10")
        a("v_and_b32 v11, 7, v1")
        a("v_lshrrev_b32 v12, 4, v1")
        a("v_xor_b32 v13, v11, v12")
        a("v_lshl_add_u32 v20, v13, 4, v10")
        a("v_xor_b32 v13, 4, v13")
        a("v_lshl_add_u32 v21, v13, 4, v10")
        a("s_lshl_b32 s56, s4, 7")
        a("s_lshl_b32 s57, s3, 5")
        a("s_add_u32 s56, s56, s57")
        a("s_lshl_b32 s56, s56, 11")
        a("s_lshl_b32 s57, s5, 7")
        a("s_add_u32 s56, s56, s57")
        a("s_lshl_b32 s57, s3, 12")
        a("s_add_u32 s57, s57, %d" % c.XT)
        for j in range(4):
            a("s_add_u32 m0, s57, %d" % (j * 1024))
            a("s_add_u32 s%d, s56, %d" % (S_TMP, j * 8 * 2048))
            a("buffer_load_dwordx4 v%d, s[24:27], s%d offen lds" % (20 + (j & 1), S_TMP))
        return 4
    c.loader_pre = loader_pre
    def epilogue(a, c):
        a("v_and_b32 v10, 15, v1")
        a("v_lshrrev_b32 v11, 4, v1")
        a("v_bfe_u32 v12, v10, 1, 3")
        a("v_lshrrev_b32 v13, 1, v11")
        a("s_lshl_b32 s56, s7, 2")
        a("v_add_u32 v13, s56, v13")
        a("v_xor_b32 v12, v12, v13")
        a("s_lshl_b32 s56, s6, 13")
        a("s_add_u32 s56, s56, %d" % c.XT)
        a("v_lshlrev_b32 v13, 7, v10")
        a("v_and_b32 v14, 1, v11")
        a("v_lshl_add_u32 v13, v14, 3, v13")
        a("v_add_u32 v13, s56, v13")
        a("v_lshl_add_u32 v96, v12, 4, v13")
        a("v_xor_b32 v12, 2, v12")
        a("v_lshl_add_u32 v97, v12, 4, v13")
        XR = 100
        for t in range(4):
            for b in range(2):
                a("ds_read_b64 %s, v%d offset:%d" % (vr(XR + (t*2 + b)*2, 2), 96 + b, t * 2048))
        a("v_lshlrev_b32 v15, 4, v1")
        a("s_lshl_b32 s56, s4, 2")
        a("s_lshl_b32 s57, s6, 1")
        a("s_add_u32 s56, s56, s57")
        a("s_mov_b32 s58, s56")
        a("s_lshl_b32 s56, s56, 7")
        a("s_lshl_b32 s57, s5, 3")
        a("s_add_u32 s56, s56, s57")
        a("s_lshl_b32 s57, s7, 2")
        a("s_add_u32 s56, s56, s57")
        a("s_lshl_b32 s56, s56, 9")
        a("s_lshl_b32 s57, s5, 1")
        a("s_add_u32 s57, s57, s7")
        a("s_lshl_b32 s57, s57, 11")
        a("s_lshl_b32 s59, s58, 5")
        a("s_add_u32 s57, s57, s59")
        a("s_lshl_b32 s57, s57, 3")
        a("v_lshlrev_b32 v9, 3, v10")
        a("v_and_b32 v14, 1, v11")
        a("v_lshl_add_u32 v9, v14, 2, v9")
        a("v_lshrrev_b32 v14, 1, v11")
        a("v_lshl_add_u32 v9, v14, 7, v9")
        a("v_and_b32 v14, 1, v11")
        a("v_cmp_eq_u32 s[64:65], 0, v14")
        a("v_cmp_gt_u32 s[66:67], 2, v11")
        a("s_waitcnt lgkmcnt(0)")
        S = 120
        P = 128
        for u in range(2):
            for tt in range(2):
                t = 2*u + tt
                for b in range(2):
                    acc = c.ACC[t][b]
                    for d in range(2):
                        x = XR + (t*2 + b)*2 + d
                        a("v_lshlrev_b32 v124, 16, v%d" % x)
                        a("v_and_b32 v125, 0xffff0000, v%d" % x)
                        a("v_add_f32 v%d, v%d, v124" % (acc + 2*d, acc + 2*d))
                        a("v_add_f32 v%d, v%d, v125" % (acc + 2*d + 1, acc + 2*d + 1))
                s1 = S + 2*tt; s2 = s1 + 1
                A0 = c.ACC[t][0]
                a("v_add_f32 v%d, v%d, v%d" % (s1, A0, A0 + 1))
                a("v_mul_f32 v%d, v%d, v%d" % (s2, A0, A0))
                a("v_fmac_f32 v%d, v%d, v%d" % (s2, A0 + 1, A0 + 1))
                for r in range(2, 8):
                    a("v_add_f32 v%d, v%d, v%d" % (s1, s1, A0 + r))
                    a("v_fmac_f32 v%d, v%d, v%d" % (s2, A0 + r, A0 + r))
                xq_sum(a, s1, 124)
                xq_sum(a, s2, 125)
            a("v_cndmask_b32 v124, v%d, v%d, s[64:65]" % (S + 1, S))
            a("v_cndmask_b32 v125, v%d, v%d, s[64:65]" % (S + 3, S + 2))
            a("v_cndmask_b32 v124, v125, v124, s[66:67]")
            a("buffer_store_dword v124, v9, s[20:23], s57 offen")
            for b in range(2):
                pack_pair(a, c.ACC[2*u][b], c.ACC[2*u + 1][b], P + 4*b)
                a("buffer_store_dwordx4 %s, v15, s[16:19], s56 offen offset:%d" % (vr(P + 4*b, 4), b * 1024))
            if u == 0:
                a("s_add_u32 s56, s56, %d" % (128 * 512))
                a("s_add_u32 s57, s57, %d" % (32 * 8))
    c.epilogue = epilogue
    c.vgpr = 136
    return c

def k5_cfg2():
    c = Cfg()
    c.name = "k5_kernel"; c.NB = 7; c.TNI = 7
    c.xmode = "blk"; c.wmode = "lin7"; c.KX = 1024; c.NST = 16; c.NS = 3
    c.ldw = 7168; c.ntile_bytes = 448
    c.SS = 16384 + 7 * 4096
    c.orient = ["T"] * 7
    c.tmap = tmap_std(8, 4)
    c.VXA = 2; c.VWA = 6
    c.wtile = lambda b: (b >> 1, b & 1, c.VWA + (b & 1))
    c.ACC = [[16 + (t * 7 + b) * 4 for b in range(7)] for t in range(4)]
    c.XF = [[128 + p * 16 + t * 4 for t in range(4)] for p in range(2)]
    c.WF = [[160 + p * 28 + b * 4 for b in range(7)] for p in range(2)]
    c.reads_per_gap = 1
    c.koff_x = None; c.koff_w = None
    c.ptrs = ["ws", "w1", "b1"]
    c.wsptr = 32
    c.TAB = c.NS * c.SS
    c.lds = c.TAB + 4096
    def srds(a, c):
        srd(a, 8, 32, WS_H, SZ_ACT)
        srd(a, 12, 34, 0, 1024*3584*2)
        srd(a, 16, 32, WS_F, SZ_F)
        srd(a, 20, 32, WS_HSTP, 32*2048*8)
        srd(a, 24, 32, WS_CS1P, 8*3584*4)
        srd(a, 28, 36, 0, 3584*2)
    c.srds = srds
    c.loader_pre = None; c.loader_post = None
    L = 216; C = 128
    def compute_pre(a, c):
        a("v_lshlrev_b32 v10, 2, v1")
        a("s_lshl_b32 s56, s4, 7")
        a("s_lshl_b32 s57, s3, 5")
        a("s_add_u32 s56, s56, s57")
        a("s_lshl_b32 s56, s56, 3")
        for p in range(32):
            a("buffer_load_dword v%d, v10, s[20:23], s56 offen" % (L + p))
            if p < 31: a("s_add_u32 s56, s56, %d" % (2048 * 8))
        a("v_lshlrev_b32 v11, 2, v0")
        a("s_mul_i32 s57, s5, %d" % (224 * 4))
        for k in range(8):
            a("buffer_load_dword v%d, v11, s[24:27], s57 offen" % (C + k))
            if k < 7: a("s_add_u32 s57, s57, %d" % (3584 * 4))
        a("v_lshlrev_b32 v12, 1, v0")
        a("s_mul_i32 s57, s5, 448")
        a("buffer_load_ushort v%d, v12, s[28:31], s57 offen" % (C + 8))
    def compute_pre2(a, c):
        a("s_waitcnt vmcnt(9)")
        for p in range(1, 32): a("v_add_f32 v%d, v%d, v%d" % (L, L, L + p))
        a("v_mov_b32_dpp v%d, v%d quad_perm:[0,0,2,2] row_mask:0xf bank_mask:0xf" % (L + 1, L))
        a("v_mov_b32_dpp v%d, v%d quad_perm:[1,1,3,3] row_mask:0xf bank_mask:0xf" % (L + 2, L))
        a("v_mul_f32 v%d, 0x3a800000, v%d" % (L + 1, L + 1))
        a("v_mul_f32 v%d, 0x3a800000, v%d" % (L + 2, L + 2))
        a("v_fma_f32 v%d, -v%d, v%d, v%d" % (L + 2, L + 1, L + 1, L + 2))
        a("v_max_f32 v%d, 0, v%d" % (L + 2, L + 2))
        a("v_add_f32 v%d, 0x3727c5ac, v%d" % (L + 2, L + 2))
        a("v_rsq_f32 v%d, v%d" % (L + 2, L + 2))
        a("v_mul_f32 v%d, v%d, v%d" % (L + 1, L + 1, L + 2))
        a("v_sub_f32 v%d, 0, v%d" % (L + 1, L + 1))
        a("v_and_b32 v13, 1, v1")
        a("v_cmp_eq_u32 vcc, 0, v13")
        a("v_cndmask_b32 v%d, v%d, v%d, vcc" % (L, L + 1, L + 2))
        a("s_lshl_b32 s56, s3, 8")
        a("s_add_u32 s56, s56, %d" % (c.TAB + 2048))
        a("v_add_u32 v10, s56, v10")
        a("ds_write_b32 v10, v%d" % L)
        a("s_waitcnt vmcnt(0)")
        for k in range(1, 8): a("v_add_f32 v%d, v%d, v%d" % (C, C, C + k))
        a("v_lshlrev_b32 v%d, 16, v%d" % (C + 8, C + 8))
        a("v_cmp_gt_u32 vcc, 224, v0")
        a("s_and_saveexec_b64 s[58:59], vcc")
        a("v_add_u32 v11, %d, v11" % c.TAB)
        a("ds_write_b32 v11, v%d" % C)
        a("ds_write_b32 v11, v%d offset:1024" % (C + 8))
        a("s_mov_b64 exec, s[58:59]")
    c.compute_pre = compute_pre
    c.compute_pre2 = compute_pre2
    def epilogue(a, c):
        a("v_and_b32 v10, 15, v1")
        a("v_lshrrev_b32 v11, 4, v1")
        a("s_mul_i32 s56, s7, 448")
        a("s_add_u32 s56, s56, %d" % c.TAB)
        a("v_lshlrev_b32 v12, 4, v11")
        a("v_add_u32 v12, s56, v12")
        a("s_lshl_b32 s56, s6, 9")
        a("s_add_u32 s56, s56, %d" % (c.TAB + 2048))
        a("v_lshlrev_b32 v13, 3, v10")
        a("v_add_u32 v13, s56, v13")
        ST = 128
        for t in range(4):
            a("ds_read_b64 %s, v13 offset:%d" % (vr(ST + 2*t, 2), t * 128))
        a("v_lshlrev_b32 v15, 4, v1")
        a("s_lshl_b32 s56, s4, 2")
        a("s_lshl_b32 s57, s6, 1")
        a("s_add_u32 s56, s56, s57")
        a("s_mul_i32 s56, s56, 448")
        a("s_mul_i32 s57, s5, 28")
        a("s_add_u32 s56, s56, s57")
        a("s_mul_i32 s57, s7, 14")
        a("s_add_u32 s56, s56, s57")
        a("s_lshl_b32 s56, s56, 9")
        a("s_add_u32 s57, s56, %d" % (448 * 512))
        TB = 136
        for b in range(7):
            a("ds_read_b128 %s, v12 offset:%d" % (vr(TB + 8*b, 4), 64 * b))
            a("ds_read_b128 %s, v12 offset:%d" % (vr(TB + 8*b + 4, 4), 1024 + 64 * b))
        a("s_waitcnt lgkmcnt(0)")
        T = 192
        P = 208
        for b in range(7):
            cs = TB + 8*b; b1 = cs + 4
            for t in range(4):
                acc = c.ACC[t][b]; tmp = T + 4*t
                for r in range(4):
                    a("v_fma_f32 v%d, v%d, v%d, v%d" % (tmp + r, ST + 2*t + 1, cs + r, b1 + r))
                for r in range(4):
                    a("v_fma_f32 v%d, v%d, v%d, v%d" % (acc + r, ST + 2*t, acc + r, tmp + r))
            for t in range(4):
                acc = c.ACC[t][b]
                for r in range(4): a("v_max_f32 v%d, 0, v%d" % (acc + r, acc + r))
                for r in range(4): a("v_mul_f32 v%d, v%d, v%d" % (acc + r, acc + r, acc + r))
            for u in range(2):
                pk = P + 4*u + 8*(b & 1)
                pack_pair(a, c.ACC[2*u][b], c.ACC[2*u + 1][b], pk)
                off = b * 1024
                so = "s56" if u == 0 else "s57"
                if off < 4096:
                    a("buffer_store_dwordx4 %s, v15, s[16:19], %s offen offset:%d" % (vr(pk, 4), so, off))
                else:
                    a("buffer_store_dwordx4 %s, v14, s[16:19], %s offen offset:%d" % (vr(pk, 4), so, off - 4096))
            if b == 3: a("v_add_u32 v14, 4096, v15")
    c.epilogue = epilogue
    c.vgpr = 256
    return c

def k6_cfg2():
    c = small_cfg2("k6_kernel", 3584, 6)
    c.ptrs = ["ws", "w2", "b2", "out"]
    c.wsptr = 32
    c.lds = c.NS * c.SS
    def srds(a, c):
        srd(a, 8, 32, WS_F, SZ_F)
        srd(a, 12, 34, 0, 3584*1024*2)
        srd(a, 16, 32, WS_H, SZ_ACT)
        srd(a, 20, 36, 0, 2048)
        srd(a, 24, 38, 0, SZ_ACT)
    c.srds = srds
    HR = 96; BR = 112
    def compute_pre(a, c):
        a("v_and_b32 v10, 15, v1")
        a("v_lshrrev_b32 v11, 4, v1")
        a("v_lshlrev_b32 v12, 4, v10")
        a("v_lshrrev_b32 v13, 1, v11")
        a("v_lshl_add_u32 v12, v13, 9, v12")
        a("v_and_b32 v13, 1, v11")
        a("v_lshl_add_u32 v12, v13, 3, v12")
        a("s_lshl_b32 s56, s4, 2")
        a("s_lshl_b32 s57, s6, 1")
        a("s_add_u32 s56, s56, s57")
        a("s_lshl_b32 s56, s56, 7")
        a("s_lshl_b32 s57, s5, 3")
        a("s_add_u32 s56, s56, s57")
        a("s_lshl_b32 s57, s7, 2")
        a("s_add_u32 s56, s56, s57")
        a("s_lshl_b32 s56, s56, 9")
        for t in range(4):
            for b in range(2):
                a("buffer_load_dwordx2 %s, v12, s[16:19], s56 offen offset:%d" % (vr(HR + (t*2 + b)*2, 2), b * 1024 + (t & 1) * 256))
            if t == 1: a("s_add_u32 s56, s56, %d" % (128 * 512))
        a("v_lshlrev_b32 v13, 3, v11")
        a("s_lshl_b32 s56, s5, 7")
        a("s_lshl_b32 s57, s7, 6")
        a("s_add_u32 s56, s56, s57")
        for b in range(2):
            a("buffer_load_dwordx2 %s, v13, s[20:23], s56 offen offset:%d" % (vr(BR + 2*b, 2), b * 32))
    c.compute_pre = compute_pre
    def epilogue(a, c):
        a("v_and_b32 v10, 15, v1")
        a("v_lshrrev_b32 v11, 4, v1")
        a("v_and_b32 v13, 1, v11")
        a("v_lshl_add_u32 v12, v13, 4, v10")
        a("v_lshlrev_b32 v12, 11, v12")
        a("v_lshrrev_b32 v13, 1, v11")
        a("v_lshl_add_u32 v12, v13, 4, v12")
        a("s_lshl_b32 s56, s4, 7")
        a("s_lshl_b32 s57, s6, 6")
        a("s_add_u32 s56, s56, s57")
        a("s_lshl_b32 s56, s56, 11")
        a("s_lshl_b32 s57, s5, 7")
        a("s_add_u32 s56, s56, s57")
        a("s_lshl_b32 s57, s7, 6")
        a("s_add_u32 s56, s56, s57")
        a("s_waitcnt vmcnt(0)")
        BF = 116
        for b in range(2):
            for d in range(2):
                a("v_lshlrev_b32 v%d, 16, v%d" % (BF + 4*b + 2*d, BR + 2*b + d))
                a("v_and_b32 v%d, 0xffff0000, v%d" % (BF + 4*b + 2*d + 1, BR + 2*b + d))
        P = 124
        for u in range(2):
            for tt in range(2):
                t = 2*u + tt
                for b in range(2):
                    acc = c.ACC[t][b]
                    for d in range(2):
                        x = HR + (t*2 + b)*2 + d
                        a("v_lshlrev_b32 v8, 16, v%d" % x)
                        a("v_and_b32 v9, 0xffff0000, v%d" % x)
                        a("v_add_f32 v%d, v%d, v%d" % (acc + 2*d, acc + 2*d, BF + 4*b + 2*d))
                        a("v_add_f32 v%d, v%d, v%d" % (acc + 2*d + 1, acc + 2*d + 1, BF + 4*b + 2*d + 1))
                        a("v_add_f32 v%d, v%d, v8" % (acc + 2*d, acc + 2*d))
                        a("v_add_f32 v%d, v%d, v9" % (acc + 2*d + 1, acc + 2*d + 1))
            for b in range(2):
                pack_pair(a, c.ACC[2*u][b], c.ACC[2*u + 1][b], P + 4*b)
                a("buffer_store_dwordx4 %s, v12, s[24:27], s56 offen offset:%d" % (vr(P + 4*b, 4), b * 32))
            if u == 0: a("s_add_u32 s56, s56, %d" % (32 * 2048))
    c.epilogue = epilogue
    c.vgpr = 136
    return c

def build(prof=False, kernels=(1,2,3,4,5,6)):
    G.prof = prof
    descs = []
    body = Asm()
    if 1 in kernels: descs.append(k1(body, 0))
    if 2 in kernels:
        c = k2_cfg(); gemm_kernel(body, c, 1); descs.append(dict(name=c.name, grid=256, block=512, lds=c.lds, vgpr=c.vgpr))
    if 3 in kernels: descs.append(k3(body, 2))
    for k, f in ((4, k4_cfg2), (5, k5_cfg2), (6, k6_cfg2)):
        if k in kernels:
            c = f(); gemm_kernel2(body, c, k - 1); descs.append(dict(name=c.name, grid=256, block=512, lds=c.lds, vgpr=c.vgpr))
    head = HEADER
    for d in descs:
        head += "; @launch kernel=%s grid=(%d,1,1) block=(%d,1,1) lds=%d\n" % (d["name"], d["grid"], d["block"], d["lds"])
    btxt = body.text()
    if G.st_sc1:
        btxt = "\n".join((l + " sc1") if (l.startswith("buffer_store") and "s[76:79]" not in l) else l for l in btxt.split("\n"))
    txt = head + '.amdgcn_target "amdgcn-amd-amdhsa--gfx950"\n' + btxt
    txt += '.section .rodata,"a"\n'
    for d in descs:
        txt += ".p2align 6\n" + kernel_desc(d["name"], d["vgpr"], 96)
    return txt

if __name__ == "__main__":
    import sys
    prof = "prof" in sys.argv
    if "mode2" in sys.argv: G.mode = 2
    for k in ("no_dma", "no_mfma", "no_reads", "no_bar", "fake16", "pf1", "pf2", "st_sc1"):
        if k in sys.argv: setattr(G, k, True)
    if "gran64" in sys.argv: G.pf_gran = 64
    for x in sys.argv:
        if x.startswith("wrap"): G.wrap = int(x[4:])
        if x.startswith("rpg"): G.rpg_small = int(x[3:])
        if x.startswith("touch"): G.touchD = int(x[5:])
        if x.startswith("map"): G.smallmap = (int(x[3:]), 32 // int(x[3:]))
    out = sys.argv[1]
    open(out, "w").write(build(prof=prof))
```

```python
from asmgen import *

WS_XN   = 0x0000000
WS_KVP  = 0x0400000
WS_ZP   = 0x0700000
WS_O    = 0x0800000
WS_H    = 0x0C00000
WS_HSTP = 0x1000000
WS_CS1P = 0x1100000
WS_FLAG = 0x1200000
WS_NONCE= 0x1280000
WS_F    = 0x1400000
WS_PX   = 0x2400000
WS_PROF = 0x4000000
SZ_ACT  = 2048*1024*2
SZ_F    = 2048*3584*2
FL_A, FL_B, FL_C, FL_D, FL_X = 0x0000, 0x1000, 0x2000, 0x3000, 0x4000
FLAG_SZ = 0x8000

KA = dict(x=0, wqkv=8, wphi=16, wo=24, w1=40, b1=48, w2=56, b2=64, out=72, dbg=80, ws=88)
P_WS, P_X, P_WQKV, P_WPHI, P_WO, P_W1, P_B1, P_W2, P_B2, P_OUT = 8, 10, 12, 14, 16, 18, 20, 22, 24, 26
S_NONCE = 28
SX, SW, SA, SB, SC, SD, SF = 32, 36, 40, 44, 48, 52, 56
S_XOFF, S_WOFF, S_LDSX, S_LDSW, S_TMP, S_CNT, S_DELTA, S_BUF, S_SS, S_NEG = 60, 61, 62, 63, 64, 65, 66, 67, 68, 69
S_L2E = 83
LOG2E = 0x3fb8aa3b
MF16 = "v_mfma_f32_16x16x32_bf16"

class G:
    prof = False
    stop_after = 5
    nstamp = 0

def srd(a, d, p, off, size):
    if off:
        a("s_add_u32 s%d, s%d, 0x%x" % (d, p, off))
        a("s_addc_u32 s%d, s%d, 0" % (d + 1, p + 1))
    else:
        a("s_mov_b32 s%d, s%d" % (d, p))
        a("s_mov_b32 s%d, s%d" % (d + 1, p + 1))
    a("s_mov_b32 s%d, 0x%x" % (d + 2, size))
    a("s_mov_b32 s%d, 0x20000" % (d + 3))

def S(b): return sr(b, 4)

def stamp(a, k):
    if G.prof:
        a("s_memrealtime s[98:99]")
        a("s_waitcnt lgkmcnt(0)")
        a("v_writelane_b32 v255, s98, %d" % k)

def cstamp(a, k):
    if G.prof:
        a("s_memtime s[98:99]")
        a("s_waitcnt lgkmcnt(0)")
        a("v_writelane_b32 v255, s98, %d" % k)

class Role:
    def __init__(self, a): self.a = a; self.nb = 0
    def bar(self, n=1):
        self.a("s_barrier"); self.nb += n

def tile_map(a, mx, nx):
    import math
    mgroups = 16 // mx
    lm = int(math.log2(mgroups)); lmx = int(math.log2(mx))
    a("s_and_b32 s4, s30, %d" % (mgroups - 1))
    a("s_lshr_b32 s5, s30, %d" % lm)
    a("s_mul_i32 s4, s4, %d" % mx)
    a("s_mul_i32 s5, s5, %d" % nx)
    a("s_and_b32 s%d, s31, %d" % (S_TMP, mx - 1))
    a("s_add_u32 s4, s4, s%d" % S_TMP)
    a("s_lshr_b32 s%d, s31, %d" % (S_TMP, lmx))
    a("s_add_u32 s5, s5, s%d" % S_TMP)

class Cfg: pass

def loader_setup(a, c):
    if c.xmode == "row":
        a("v_lshrrev_b32 v10, 3, v1")
        a("v_mul_u32_u24 v10, %d, v10" % c.ldx)
        a("v_and_b32 v11, 7, v1")
        a("v_lshrrev_b32 v12, 4, v1")
        a("v_xor_b32 v13, v11, v12")
        a("v_lshl_add_u32 v2, v13, 4, v10")
        a("v_xor_b32 v13, 4, v13")
        a("v_lshl_add_u32 v3, v13, 4, v10")
        a("s_lshl_b32 s%d, s4, 7" % S_XOFF)
        a("s_lshl_b32 s%d, s7, 6" % S_TMP)
        a("s_add_u32 s%d, s%d, s%d" % (S_XOFF, S_XOFF, S_TMP))
        a("s_mul_i32 s%d, s%d, %d" % (S_XOFF, S_XOFF, c.ldx))
    else:
        a("v_lshlrev_b32 v2, 4, v1")
        a("s_lshl_b32 s%d, s4, 2" % S_XOFF)
        a("s_lshl_b32 s%d, s7, 1" % S_TMP)
        a("s_add_u32 s%d, s%d, s%d" % (S_XOFF, S_XOFF, S_TMP))
        a("s_mul_i32 s%d, s%d, %d" % (S_XOFF, S_XOFF, c.KX // 8 * 512))
    if c.wmode == "pair":
        a("v_lshrrev_b32 v10, 5, v1")
        a("v_lshlrev_b32 v10, 2, v10")
        a("v_bfe_u32 v11, v1, 2, 2")
        a("v_add_u32 v10, v10, v11")
        a("v_mul_u32_u24 v10, %d, v10" % c.ldw)
        a("v_bfe_u32 v11, v1, 4, 1")
        a("v_lshl_add_u32 v10, v11, 6, v10")
        a("v_and_b32 v11, 3, v1")
        a("v_lshl_add_u32 v4, v11, 4, v10")
        a("v_xor_b32 v11, 2, v11")
        a("v_lshl_add_u32 v5, v11, 4, v10")
        a("s_mul_i32 s%d, s7, %d" % (S_WOFF, 32 * c.ldw))
        a("s_mul_i32 s%d, s5, %d" % (S_TMP, c.ntile_bytes))
        a("s_add_u32 s%d, s%d, s%d" % (S_WOFF, S_WOFF, S_TMP))
        a("s_mul_i32 s%d, s7, %d" % (S_LDSW, 4 * (c.NB // 2) * 1024))
    else:
        a("v_lshrrev_b32 v12, 4, v1")
        a("v_bfe_u32 v13, v1, 2, 2")
        a("v_and_b32 v14, 3, v1")
        for t in range(7):
            a("v_add_u32 v15, %d, v12" % (4 * t))
            a("v_mul_u32_u24 v16, 37, v15")
            a("v_lshrrev_b32 v16, 8, v16")
            a("v_mul_u32_u24 v17, 7, v16")
            a("v_sub_u32 v17, v15, v17")
            a("v_and_b32 v18, 2, v16")
            a("v_xor_b32 v18, v18, v14")
            a("v_lshl_add_u32 v16, v16, 2, v13")
            a("v_mul_u32_u24 v16, %d, v16" % c.ldw)
            a("v_lshl_add_u32 v16, v17, 6, v16")
            a("v_lshl_add_u32 v%d, v18, 4, v16" % (4 + t))
        a("s_mul_i32 s%d, s7, %d" % (S_WOFF, 32 * c.ldw))
        a("s_mul_i32 s%d, s5, %d" % (S_TMP, c.ntile_bytes))
        a("s_add_u32 s%d, s%d, s%d" % (S_WOFF, S_WOFF, S_TMP))
        a("s_mul_i32 s%d, s7, 14336" % S_LDSW)
    if c.koff: c.koff(a, c)
    a("s_add_u32 s%d, s%d, %d" % (S_LDSW, S_LDSW, c.LB + 16384))
    a("s_lshl_b32 s%d, s7, 13" % S_LDSX)
    if c.LB: a("s_add_u32 s%d, s%d, %d" % (S_LDSX, S_LDSX, c.LB))
    a("s_mov_b32 s%d, %d" % (S_SS, c.SS))
    a("s_mov_b32 s%d, 0x%x" % (S_NEG, (-(c.NS - 1) * c.SS) & 0xffffffff))

def nX(c): return 8
def nW(c): return c.NB * 2

def issue_x(a, c, ldsoff=0):
    if c.xmode == "row":
        for j in range(8):
            a("s_add_u32 m0, s%d, %d" % (S_LDSX, ldsoff + j * 1024))
            a("s_add_u32 s%d, s%d, %d" % (S_TMP, S_XOFF, j * 8 * c.ldx))
            a("buffer_load_dwordx4 v%d, %s, s%d offen lds" % (2 + (j & 1), S(SX), S_TMP))
        a("s_add_u32 s%d, s%d, 128" % (S_XOFF, S_XOFF))
    else:
        a("s_add_u32 m0, s%d, %d" % (S_LDSX, ldsoff))
        a("s_add_u32 s%d, s%d, %d" % (S_TMP, S_XOFF, c.KX // 8 * 512))
        for j in range(4):
            a("buffer_load_dwordx4 v2, %s, s%d offen offset:%d lds" % (S(SX), S_XOFF, j * 1024))
        a("s_add_u32 m0, s%d, %d" % (S_LDSX, ldsoff + 4096))
        a("s_add_u32 s%d, s%d, 4096" % (S_XOFF, S_XOFF))
        for j in range(4):
            a("buffer_load_dwordx4 v2, %s, s%d offen offset:%d lds" % (S(SX), S_TMP, j * 1024))

def issue_w(a, c, ldsoff=0):
    if c.wmode == "pair":
        NP = c.NB // 2
        for kpl in range(4):
            for np_ in range(NP):
                a("s_add_u32 m0, s%d, %d" % (S_LDSW, ldsoff + (kpl * NP + np_) * 1024))
                a("s_add_u32 s%d, s%d, %d" % (S_TMP, S_WOFF, kpl * 8 * c.ldw + c.strip[np_]))
                a("buffer_load_dwordx4 v%d, %s, s%d offen lds" % (4 + (kpl & 1), S(SW), S_TMP))
    else:
        for g in range(2):
            if g == 1: a("s_add_u32 s%d, s%d, %d" % (S_TMP, S_WOFF, 16 * c.ldw))
            for t in range(7):
                a("s_add_u32 m0, s%d, %d" % (S_LDSW, ldsoff + g * 7168 + t * 1024))
                a("s_nop 0")
                a("buffer_load_dwordx4 v%d, %s, s%d offen lds" % (4 + t, S(SW), S_WOFF if g == 0 else S_TMP))
    a("s_add_u32 s%d, s%d, %d" % (S_WOFF, S_WOFF, 64 * c.ldw))

def adv_buf(a, c):
    a("s_add_u32 s%d, s%d, 1" % (S_BUF, S_BUF))
    a("s_cmp_eq_u32 s%d, %d" % (S_BUF, c.NS))
    a("s_cselect_b32 s%d, s%d, s%d" % (S_DELTA, S_NEG, S_SS))
    a("s_cselect_b32 s%d, 0, s%d" % (S_BUF, S_BUF))
    a("s_add_u32 s%d, s%d, s%d" % (S_LDSX, S_LDSX, S_DELTA))
    a("s_add_u32 s%d, s%d, s%d" % (S_LDSW, S_LDSW, S_DELTA))

def loader_phase(R, c):
    a = R.a; n = c.name + "_ld"
    c.tmap(a, c)
    c.srds_loader(a, c)
    loader_setup(a, c)
    NS, NST = c.NS, c.NST
    x, w = nX(c), nW(c); nn = x + w
    order = []
    pre = 0
    if c.loader_pre: pre = c.loader_pre(a, c) or 0
    if c.flag:
        for s in range(NS):
            issue_w(a, c, s * c.SS); order.append((s, w))
        R.bar()
        issue_x(a, c, 0); issue_x(a, c, c.SS); order += [(0, x), (1, x)]
        a("s_waitcnt vmcnt(%d)" % x)
        R.bar()
        for s in range(2, NS):
            issue_x(a, c, s * c.SS); order.append((s, x))
    else:
        issue_x(a, c, 0); issue_w(a, c, 0); issue_x(a, c, c.SS); issue_w(a, c, c.SS)
        order += [(0, nn), (1, nn)]
        a("s_waitcnt vmcnt(%d)" % nn)
        R.bar()
        for s in range(2, NS):
            issue_x(a, c, s * c.SS); issue_w(a, c, s * c.SS); order.append((s, nn))
    a("s_mov_b32 s%d, 0" % S_BUF)
    def allowed(need_stage):
        last = max(k for k, (s, _) in enumerate(order) if s == need_stage)
        return sum(cnt for (s, cnt) in order[last + 1:])
    i = 0
    steady = (NS - 2) * nn
    while i < NST - NS and allowed(i + 1) != steady:
        a("s_waitcnt vmcnt(%d)" % allowed(i + 1)); R.bar()
        if c.jump_at is not None and i + NS == c.jump_at: c.jump(a, c)
        issue_x(a, c); issue_w(a, c); adv_buf(a, c); order.append((i + NS, nn))
        i += 1
    first = i
    nloop = NST - NS - first
    if nloop > 0:
        a("s_mov_b32 s%d, %d" % (S_CNT, first))
        a.label(n + "_loop")
        a("s_waitcnt vmcnt(%d)" % steady); R.bar(nloop)
        if c.jump_at is not None:
            a("s_cmp_lg_u32 s%d, %d" % (S_CNT, c.jump_at - NS))
            a("s_cbranch_scc1 %s_nj" % n)
            c.jump(a, c)
            a.label(n + "_nj")
        issue_x(a, c); issue_w(a, c); adv_buf(a, c)
        a("s_add_u32 s%d, s%d, 1" % (S_CNT, S_CNT))
        a("s_cmp_lt_u32 s%d, %d" % (S_CNT, NST - NS))
        a("s_cbranch_scc1 %s_loop" % n)
        for k in range(first, NST - NS): order.append((k + NS, nn))
    for i in range(NST - NS, NST):
        if i + 1 < NST: a("s_waitcnt vmcnt(%d)" % allowed(i + 1))
        R.bar()

def reads(c, p, s):
    xs = []
    for t in range(4):
        if c.xmode == "row":
            xs.append("ds_read_b128 %s, v%d offset:%d" % (vr(c.XF[p][t], 4), c.VXA + s, t * 2048))
        else:
            xs.append("ds_read_b128 %s, v%d offset:%d" % (vr(c.XF[p][t], 4), c.VXA, (t >> 1) * 4096 + (t & 1) * 256 + s * 2048))
    ws = []
    for b in range(c.TNI):
        nb, g, areg = c.wtile(b)
        for e in range(2):
            if c.wmode == "pair":
                NP = c.NB // 2
                off = s * 4 * NP * 1024 + (nb >> 1) * 1024 + e * 512 + (nb & 1) * 256
            else:
                off = ((8 * s + e) * 7 + nb) * 256
            ws.append("ds_read_b64_tr_b16 %s, v%d offset:%d" % (vr(c.WF[p][b] + 2 * e, 2), areg, 16384 + off))
    return ws[:2] + xs + ws[2:]

def compute_addr(a, c):
    a("v_and_b32 v10, 15, v1")
    a("v_lshrrev_b32 v11, 4, v1")
    a("s_lshl_b32 s%d, s6, 13" % S_TMP)
    if c.LB: a("s_add_u32 s%d, s%d, %d" % (S_TMP, S_TMP, c.LB))
    if c.xmode == "row":
        a("v_bfe_u32 v12, v10, 1, 3")
        a("v_xor_b32 v12, v12, v11")
        a("v_lshlrev_b32 v13, 7, v10")
        a("v_add_u32 v13, s%d, v13" % S_TMP)
        for s in range(2):
            a("v_xor_b32 v14, %d, v12" % (4 * s))
            a("v_lshl_add_u32 v%d, v14, 4, v13" % (c.VXA + s))
    else:
        a("v_lshlrev_b32 v13, 9, v11")
        a("v_lshl_add_u32 v13, v10, 4, v13")
        a("v_add_u32 v%d, s%d, v13" % (c.VXA, S_TMP))
    a("v_bfe_u32 v12, v1, 2, 2")
    a("v_lshlrev_b32 v12, 6, v12")
    a("v_and_b32 v13, 3, v1")
    a("v_lshl_add_u32 v12, v13, 3, v12")
    qstride = (c.NB // 2) * 1024 if c.wmode == "pair" else 2 * 7 * 256
    a("v_mul_u32_u24 v13, %d, v11" % qstride)
    a("v_add_u32 v12, v12, v13")
    a("v_and_b32 v13, 1, v11")
    a("v_lshl_add_u32 v12, v13, 5, v12")
    if c.LB: a("v_add_u32 v12, %d, v12" % c.LB)
    if c.wmode == "pair":
        a("s_mul_i32 s%d, s7, %d" % (S_TMP, c.wwave_off))
        a("v_add_u32 v%d, s%d, v12" % (c.VWA, S_TMP))
        a("v_xor_b32 v%d, 32, v%d" % (c.VWA + 1, c.VWA))
    else:
        a("s_lshl_b32 s%d, s7, 5" % S_TMP)
        a("v_xor_b32 v12, s%d, v12" % S_TMP)
        a("v_xor_b32 v13, 32, v12")
        a("s_mul_i32 s%d, s7, 768" % S_TMP)
        a("v_add_u32 v%d, s%d, v12" % (c.VWA, S_TMP))
        a("s_lshl_b32 s%d, s7, 10" % S_TMP)
        a("v_add_u32 v%d, s%d, v13" % (c.VWA + 1, S_TMP))
    a("s_mov_b32 s%d, %d" % (S_SS, c.SS))
    a("s_mov_b32 s%d, 0x%x" % (S_NEG, (-(c.NS - 1) * c.SS) & 0xffffffff))

def zero_acc(a, c):
    for t in range(4):
        for b in range(c.TNI):
            for r in range(4): a("v_mov_b32 v%d, 0" % (c.ACC[t][b] + r))

def mainloop(R, c, niter_sgpr=None, nbar=None):
    a = R.a; n = c.name
    nx = 2 if c.xmode == "row" else 1
    for r in reads(c, 0, 0): a(r)
    a("s_mov_b32 s%d, 0" % S_CNT)
    a("s_mov_b32 s%d, 0" % S_BUF)
    a.label(n + "_loop")
    for s in range(2):
        p = s
        a("s_waitcnt lgkmcnt(0)")
        if s == 1:
            a("s_add_u32 s%d, s%d, 1" % (S_BUF, S_BUF))
            a("s_cmp_eq_u32 s%d, %d" % (S_BUF, c.NS))
            a("s_cselect_b32 s%d, s%d, s%d" % (S_DELTA, S_NEG, S_SS))
            a("s_cselect_b32 s%d, 0, s%d" % (S_BUF, S_BUF))
            for q in range(nx):
                a("v_add_u32 v%d, s%d, v%d" % (c.VXA + q, S_DELTA, c.VXA + q))
            a("v_add_u32 v%d, s%d, v%d" % (c.VWA, S_DELTA, c.VWA))
            a("v_add_u32 v%d, s%d, v%d" % (c.VWA + 1, S_DELTA, c.VWA + 1))
            R.bar(nbar if nbar is not None else c.NST)
        rd = reads(c, 1 - p, 1 - s)
        mf = []
        for b in range(c.TNI):
            for t in range(4):
                acc = c.ACC[t][b]
                if c.orient[b] == "T":
                    mf.append("%s %s, %s, %s, %s" % (MF16, vr(acc, 4), vr(c.WF[p][b], 4), vr(c.XF[p][t], 4), vr(acc, 4)))
                else:
                    mf.append("%s %s, %s, %s, %s" % (MF16, vr(acc, 4), vr(c.XF[p][t], 4), vr(c.WF[p][b], 4), vr(acc, 4)))
        ri = 0
        for m in mf:
            a(m)
            for _ in range(c.reads_per_gap):
                if ri < len(rd): a(rd[ri]); ri += 1
        while ri < len(rd): a(rd[ri]); ri += 1
    a("s_add_u32 s%d, s%d, 1" % (S_CNT, S_CNT))
    if niter_sgpr is None: a("s_cmp_lt_u32 s%d, %d" % (S_CNT, c.NST))
    else: a("s_cmp_lt_u32 s%d, s%d" % (S_CNT, niter_sgpr))
    a("s_cbranch_scc1 %s_loop" % n)
    a("s_waitcnt lgkmcnt(0)")

def pack_pair(a, accA, accB, P):
    a("v_cvt_pk_bf16_f32 v%d, v%d, v%d" % (P, accA, accA + 1))
    a("v_cvt_pk_bf16_f32 v%d, v%d, v%d" % (P + 1, accA + 2, accA + 3))
    a("v_cvt_pk_bf16_f32 v%d, v%d, v%d" % (P + 2, accB, accB + 1))
    a("v_cvt_pk_bf16_f32 v%d, v%d, v%d" % (P + 3, accB + 2, accB + 3))
    a("v_permlane16_swap_b32 v%d, v%d" % (P, P + 2))
    a("v_permlane16_swap_b32 v%d, v%d" % (P + 1, P + 3))

def pack4(a, P, A, B):
    a("v_cvt_pk_bf16_f32 v%d, v%d, v%d" % (P, A, A + 1))
    a("v_cvt_pk_bf16_f32 v%d, v%d, v%d" % (P + 1, A + 2, A + 3))
    a("v_cvt_pk_bf16_f32 v%d, v%d, v%d" % (P + 2, B, B + 1))
    a("v_cvt_pk_bf16_f32 v%d, v%d, v%d" % (P + 3, B + 2, B + 3))

def xq(a, op, v, t):
    a("v_mov_b32 v%d, v%d" % (t, v))
    a("v_permlane16_swap_b32 v%d, v%d" % (v, t))
    a("%s v%d, v%d, v%d" % (op, v, v, t))
    a("v_mov_b32 v%d, v%d" % (t, v))
    a("v_permlane32_swap_b32 v%d, v%d" % (v, t))
    a("%s v%d, v%d, v%d" % (op, v, v, t))

def flag_write(a, off_sgpr_or_imm, grp, vtmp=20):
    a("v_mov_b32 v%d, s%d" % (vtmp, S_NONCE))
    a("v_mov_b32 v%d, s%d" % (vtmp + 1, S_NONCE + 1))
    a("v_mov_b32 v%d, %d" % (vtmp + 2, grp))
    a("s_mov_b64 exec, 1")
    a("buffer_store_dwordx2 %s, v%d, %s, s%d offen sc1" % (vr(vtmp, 2), vtmp + 2, S(SF), off_sgpr_or_imm))
    a("s_mov_b64 exec, -1")

_pollcnt = [0]
def flag_poll(a, off_sgpr, grp, nflags, vtmp=20):
    _pollcnt[0] += 1
    L = "poll%d" % _pollcnt[0]
    a("v_lshlrev_b32 v%d, 3, v1" % (vtmp + 2))
    a("v_add_u32 v%d, %d, v%d" % (vtmp + 2, grp, vtmp + 2))
    a("s_mov_b64 exec, 0x%x" % ((1 << nflags) - 1))
    a("s_mov_b32 s80, 0")
    a.label(L)
    a("buffer_load_dwordx2 %s, v%d, %s, s%d offen sc1" % (vr(vtmp, 2), vtmp + 2, S(SF), off_sgpr))
    a("s_waitcnt vmcnt(0)")
    a("v_cmp_ne_u32 vcc, s%d, v%d" % (S_NONCE, vtmp))
    a("v_cmp_ne_u32 s[78:79], s%d, v%d" % (S_NONCE + 1, vtmp + 1))
    a("s_or_b64 s[78:79], vcc, s[78:79]")
    a("s_cmp_eq_u64 s[78:79], 0")
    a("s_cbranch_scc1 %s_ok" % L)
    a("s_sleep 2")
    a("s_add_u32 s80, s80, 1")
    a("s_cmp_lt_u32 s80, 0x40000")
    a("s_cbranch_scc1 %s" % L)
    a.label(L + "_ok")
    a("s_mov_b64 exec, -1")
```

```python
from gen3 import *

def MF(a, d, x, y, c):
    a("%s %s, %s, %s, %s" % (MF16, vr(d, 4), vr(x, 4), vr(y, 4), vr(c, 4) if c is not None else "0"))

def softmax16(a, P, E, T, outP, outN):
    mx, mn, t0, t1, sp, sn = T, T+1, T+2, T+3, T+4, T+5
    a("v_max3_f32 v%d, v%d, v%d, v%d" % (mx, P, P+1, P+2))
    a("v_min3_f32 v%d, v%d, v%d, v%d" % (mn, P, P+1, P+2))
    for r in (3, 5):
        a("v_max3_f32 v%d, v%d, v%d, v%d" % (mx, mx, P+r, P+r+1))
        a("v_min3_f32 v%d, v%d, v%d, v%d" % (mn, mn, P+r, P+r+1))
    a("v_max_f32 v%d, v%d, v%d" % (mx, mx, P+7))
    a("v_min_f32 v%d, v%d, v%d" % (mn, mn, P+7))
    for sw in ("v_permlane16_swap_b32", "v_permlane32_swap_b32"):
        a("v_mov_b32 v%d, v%d" % (t0, mx))
        a("v_mov_b32 v%d, v%d" % (t1, mn))
        a("%s v%d, v%d" % (sw, mx, t0))
        a("%s v%d, v%d" % (sw, mn, t1))
        a("v_max_f32 v%d, v%d, v%d" % (mx, mx, t0))
        a("v_min_f32 v%d, v%d, v%d" % (mn, mn, t1))
    a("v_mul_f32 v%d, s%d, v%d" % (mx, S_L2E, mx))
    a("v_mul_f32 v%d, s%d, v%d" % (mn, S_L2E, mn))
    for r in range(8):
        a("v_fma_f32 v%d, v%d, s%d, -v%d" % (E+r, P+r, S_L2E, mx))
        a("v_fma_f32 v%d, -v%d, s%d, v%d" % (P+r, P+r, S_L2E, mn))
    for r in range(8):
        a("v_exp_f32 v%d, v%d" % (E+r, E+r))
        a("v_exp_f32 v%d, v%d" % (P+r, P+r))
    a("v_add_f32 v%d, v%d, v%d" % (sp, E, E+1))
    a("v_add_f32 v%d, v%d, v%d" % (sn, P, P+1))
    for r in range(2, 8):
        a("v_add_f32 v%d, v%d, v%d" % (sp, sp, E+r))
        a("v_add_f32 v%d, v%d, v%d" % (sn, sn, P+r))
    for sw in ("v_permlane16_swap_b32", "v_permlane32_swap_b32"):
        a("v_mov_b32 v%d, v%d" % (t0, sp))
        a("v_mov_b32 v%d, v%d" % (t1, sn))
        a("%s v%d, v%d" % (sw, sp, t0))
        a("%s v%d, v%d" % (sw, sn, t1))
        a("v_add_f32 v%d, v%d, v%d" % (sp, sp, t0))
        a("v_add_f32 v%d, v%d, v%d" % (sn, sn, t1))
    a("v_rcp_f32 v%d, v%d" % (sp, sp))
    a("v_rcp_f32 v%d, v%d" % (sn, sn))
    for r in range(8):
        a("v_mul_f32 v%d, v%d, v%d" % (E+r, E+r, sp))
        a("v_mul_f32 v%d, v%d, v%d" % (P+r, P+r, sn))
    pack4(a, outP, E, E + 4)
    pack4(a, outN, P, P + 4)

def base_cfg(name):
    c = Cfg(); c.name = name
    c.koff = None; c.loader_pre = None; c.jump_at = None; c.jump = None; c.LB = 0
    c.VXA = 2; c.VWA = 6; c.reads_per_gap = 1
    return c

L1_WPHI = 122880; L1_KVF = 126976; L1_ZF = 135168
def p1_cfg():
    c = base_cfg("p1"); c.NB = 6; c.TNI = 6
    c.xmode = "row"; c.wmode = "pair"; c.NST = 16; c.NS = 3; c.flag = False
    c.ldx = 2048; c.ldw = 6144; c.strip = [0, 2048, 4096]; c.ntile_bytes = 128
    c.SS = 16384 + 6 * 4096
    c.orient = ["T", "T", "T", "T", "N", "N"]
    c.tmap = lambda a, c: tile_map(a, 8, 4)
    c.wwave_off = 256
    c.wtile = lambda b: (2 * (b >> 1), b & 1, c.VWA + (b & 1))
    c.ACC = [[16 + (t * 6 + b) * 4 for b in range(6)] for t in range(4)]
    c.XF = [[112 + p * 16 + t * 4 for t in range(4)] for p in range(2)]
    c.WF = [[144 + p * 24 + b * 4 for b in range(6)] for p in range(2)]
    def srds_loader(a, c):
        srd(a, SX, P_WS, WS_XN, SZ_ACT)
        srd(a, SW, P_WQKV, 0, 1024*3072*2)
        srd(a, SA, P_WPHI, 0, 32*2048)
    c.srds_loader = srds_loader
    def loader_pre(a, c):
        a("v_lshlrev_b32 v20, 4, v1")
        a("s_lshl_b32 s70, s5, 12")
        a("s_lshl_b32 s71, s7, 11")
        a("s_add_u32 s70, s70, s71")
        a("s_add_u32 m0, s71, %d" % L1_WPHI)
        a("s_nop 0")
        a("buffer_load_dwordx4 v20, %s, s70 offen lds" % S(SA))
        a("buffer_load_dwordx4 v20, %s, s70 offen offset:1024 lds" % S(SA))
        return 2
    c.loader_pre = loader_pre
    return c

L3_XT = 139264
def p3_cfg():
    c = base_cfg("p3"); c.NB = 2; c.TNI = 2
    c.xmode = "blk"; c.wmode = "pair"; c.KX = 1024; c.NST = 16; c.NS = 5; c.flag = True
    c.ldw = 2048; c.strip = [0]; c.ntile_bytes = 128
    c.SS = 16384 + 2 * 4096
    c.orient = ["T"] * 2
    c.tmap = lambda a, c: tile_map(a, 4, 8)
    c.wwave_off = 256
    c.wtile = lambda b: (0, b & 1, c.VWA + (b & 1))
    c.ACC = [[16 + (t * 2 + b) * 4 for b in range(2)] for t in range(4)]
    c.XF = [[48 + p * 16 + t * 4 for t in range(4)] for p in range(2)]
    c.WF = [[80 + p * 8 + b * 4 for b in range(2)] for p in range(2)]
    c.reads_per_gap = 2
    def srds_loader(a, c):
        srd(a, SX, P_WS, WS_O, SZ_ACT)
        srd(a, SW, P_WO, 0, 1024*1024*2)
        srd(a, SA, P_X, 0, SZ_ACT)
    c.srds_loader = srds_loader
    def loader_pre(a, c):
        a("v_lshrrev_b32 v10, 3, v1")
        a("v_lshlrev_b32 v10, 11, v10")
        a("v_and_b32 v11, 7, v1")
        a("v_lshrrev_b32 v12, 4, v1")
        a("v_xor_b32 v13, v11, v12")
        a("v_lshl_add_u32 v20, v13, 4, v10")
        a("v_xor_b32 v13, 4, v13")
        a("v_lshl_add_u32 v21, v13, 4, v10")
        a("s_lshl_b32 s70, s4, 7")
        a("s_lshl_b32 s71, s7, 6")
        a("s_add_u32 s70, s70, s71")
        a("s_lshl_b32 s70, s70, 11")
        a("s_lshl_b32 s71, s5, 7")
        a("s_add_u32 s70, s70, s71")
        a("s_lshl_b32 s71, s7, 13")
        a("s_add_u32 s71, s71, %d" % L3_XT)
        for j in range(8):
            a("s_add_u32 m0, s71, %d" % (j * 1024))
            a("s_add_u32 s%d, s70, %d" % (S_TMP, j * 8 * 2048))
            a("buffer_load_dwordx4 v%d, %s, s%d offen lds" % (20 + (j & 1), S(SA), S_TMP))
        return 8
    c.loader_pre = loader_pre
    return c

L4_TAB = 135168
def p4_cfg():
    c = base_cfg("p4"); c.NB = 7; c.TNI = 7
    c.xmode = "blk"; c.wmode = "lin7"; c.KX = 1024; c.NST = 16; c.NS = 3; c.flag = True
    c.ldw = 7168; c.ntile_bytes = 448
    c.SS = 16384 + 7 * 4096
    c.orient = ["T"] * 7
    c.tmap = lambda a, c: tile_map(a, 8, 4)
    c.wtile = lambda b: (b >> 1, b & 1, c.VWA + (b & 1))
    c.ACC = [[16 + (t * 7 + b) * 4 for b in range(7)] for t in range(4)]
    c.XF = [[128 + p * 16 + t * 4 for t in range(4)] for p in range(2)]
    c.WF = [[160 + p * 28 + b * 4 for b in range(7)] for p in range(2)]
    def srds_loader(a, c):
        srd(a, SX, P_WS, WS_H, SZ_ACT)
        srd(a, SW, P_W1, 0, 1024*3584*2)
    c.srds_loader = srds_loader
    return c

KSEND, KKEEP = 24, 32
def p5_tmap(a, c):
    a("s_and_b32 s82, s30, 1")
    a("s_lshr_b32 s4, s30, 1")
    a("s_lshl_b32 s4, s4, 2")
    a("s_and_b32 s%d, s31, 3" % S_TMP)
    a("s_add_u32 s4, s4, s%d" % S_TMP)
    a("s_lshr_b32 s5, s31, 2")
def p5_cfg():
    c = base_cfg("p5"); c.NB = 4; c.TNI = 4
    c.xmode = "blk"; c.wmode = "pair"; c.KX = 3584; c.NST = KKEEP; c.NS = 4; c.flag = True
    c.ldw = 2048; c.strip = [0, 128]; c.ntile_bytes = 256
    c.SS = 16384 + 4 * 4096
    c.orient = ["T"] * 4
    c.tmap = p5_tmap
    c.wwave_off = 1024
    c.wtile = lambda b: (b >> 1, b & 1, c.VWA + (b & 1))
    c.ACC = [[16 + (t * 4 + b) * 4 for b in range(4)] for t in range(4)]
    c.XF = [[80 + p * 16 + t * 4 for t in range(4)] for p in range(2)]
    c.WF = [[112 + p * 16 + b * 4 for b in range(4)] for p in range(2)]
    def srds_loader(a, c):
        srd(a, SX, P_WS, WS_F, SZ_F)
        srd(a, SW, P_W2, 0, 3584*1024*2)
    c.srds_loader = srds_loader
    def koff(a, c):
        a("s_mul_i32 s%d, s82, %d" % (S_TMP, KKEEP * 4096))
        a("s_add_u32 s%d, s%d, s%d" % (S_XOFF, S_XOFF, S_TMP))
        a("s_mul_i32 s%d, s82, %d" % (S_TMP, KKEEP * 64 * 2048))
        a("s_add_u32 s%d, s%d, s%d" % (S_WOFF, S_WOFF, S_TMP))
    c.koff = koff
    c.jump_at = KSEND
    def jump(a, c):
        a("s_mul_i32 s%d, s82, %d" % (S_TMP, KKEEP * 4096))
        a("s_sub_u32 s%d, s%d, s%d" % (S_XOFF, S_XOFF, S_TMP))
        a("s_mul_i32 s%d, s82, %d" % (S_TMP, KKEEP * 64 * 2048))
        a("s_sub_u32 s%d, s%d, s%d" % (S_WOFF, S_WOFF, S_TMP))
    c.jump = jump
    return c

def kv_gather(a, do_z):
    srd(a, SA, P_WS, WS_KVP, 16*16*8192)
    a("v_lshlrev_b32 v8, 4, v1")
    a("s_lshl_b32 s70, s5, 17")
    a("s_lshl_b32 s71, s3, 10")
    a("s_add_u32 s70, s70, s71")
    L = 32
    for m in range(16):
        a("buffer_load_dwordx4 %s, v8, %s, s70 offen sc1" % (vr(L + 4*m, 4), S(SA)))
        if m < 15: a("s_add_u32 s70, s70, 8192")
    if do_z:
        srd(a, SB, P_WS, WS_ZP, 16*16*512)
        a("v_lshlrev_b32 v9, 2, v1")
        a("s_lshl_b32 s72, s5, 13")
        a("s_sub_u32 s73, s3, 6")
        a("s_lshl_b32 s73, s73, 8")
        a("s_add_u32 s72, s72, s73")
        for m in range(16):
            a("buffer_load_dword v%d, v9, %s, s72 offen sc1" % (96 + m, S(SB)))
            if m < 15: a("s_add_u32 s72, s72, 512")
    a("s_mov_b32 s74, 0x00003f80")
    a("s_mov_b32 s75, 0x3f800000")
    A = 16
    for r in range(8): a("v_mov_b32 v%d, 0" % (A + r))
    a("v_mov_b32 v24, s74")
    a("v_mov_b32 v25, s75")
    a("s_waitcnt vmcnt(%d)" % (16 if do_z else 0))
    for m in range(16):
        for d in range(4):
            a("v_dot2c_f32_bf16 v%d, v%d, v24" % (A + 2*d, L + 4*m + d))
            a("v_dot2c_f32_bf16 v%d, v%d, v25" % (A + 2*d + 1, L + 4*m + d))
    for d in range(4): a("v_cvt_pk_bf16_f32 v%d, v%d, v%d" % (28 + d, A + 2*d, A + 2*d + 1))
    a("s_lshl_b32 s71, s3, 10")
    a("s_add_u32 s71, s71, %d" % L1_KVF)
    a("v_add_u32 v8, s71, v8")
    a("ds_write_b128 v8, v[28:31]")
    if do_z:
        a("s_waitcnt vmcnt(0)")
        for m in range(1, 16): a("v_add_f32 v96, v96, v%d" % (96 + m))
        a("v_cvt_pk_bf16_f32 v96, v96, v96")
        a("v_lshlrev_b32 v9, 1, v1")
        a("s_sub_u32 s73, s3, 6")
        a("s_lshl_b32 s73, s73, 7")
        a("s_add_u32 s73, s73, %d" % L1_ZF)
        a("v_add_u32 v9, s73, v9")
        a("ds_write_b16 v9, v96")
    a("s_waitcnt lgkmcnt(0)")

def compute_role(a):
    R = Role(a)
    a("s_lshr_b32 s6, s3, 1")
    a("s_and_b32 s7, s3, 1")
    c = p1_cfg()
    c.tmap(a, c)
    compute_addr(a, c)
    zero_acc(a, c)
    R.bar()
    stamp(a, 1); cstamp(a, 32)
    mainloop(R, c)
    stamp(a, 2); cstamp(a, 33)
    p1_epilogue(R, c)
    if G.stop_after <= 1: return R
    c = p3_cfg()
    c.tmap(a, c)
    compute_addr(a, c)
    zero_acc(a, c)
    R.bar()
    R.bar()
    stamp(a, 6); cstamp(a, 34)
    mainloop(R, c)
    stamp(a, 7); cstamp(a, 35)
    p3_epilogue(a, c)
    a("s_waitcnt vmcnt(0)")
    R.bar()
    stamp(a, 8)
    if G.stop_after <= 3: return R
    c = p4_cfg()
    c.tmap(a, c)
    compute_addr(a, c)
    zero_acc(a, c)
    R.bar(); R.bar()
    stamp(a, 9); cstamp(a, 36)
    mainloop(R, c)
    stamp(a, 10); cstamp(a, 37)
    p4_epilogue(a, c)
    a("s_waitcnt vmcnt(0)")
    R.bar()
    stamp(a, 11)
    if G.stop_after <= 4: return R
    c = p5_cfg()
    c.tmap(a, c)
    compute_addr(a, c)
    zero_acc(a, c)
    R.bar()
    p5_pre(a, c)
    R.bar()
    stamp(a, 12); cstamp(a, 38)
    a("s_cmp_eq_u32 s6, s82")
    a("s_cselect_b32 s81, %d, %d" % (KKEEP, KSEND))
    mainloop(R, c, niter_sgpr=81, nbar=KKEEP)
    stamp(a, 13); cstamp(a, 39)
    p5_epilogue(a, c)
    return R

def p1_epilogue(R, c):
    a = R.a
    a("s_mov_b32 s%d, 0x%x" % (S_L2E, LOG2E))
    srd(a, SA, P_WS, WS_KVP, 16*16*8192)
    srd(a, SB, P_WS, WS_ZP, 16*16*512)
    srd(a, SC, P_WS, WS_O, SZ_ACT)
    a("v_and_b32 v10, 15, v1")
    a("v_lshrrev_b32 v11, 4, v1")
    a("v_bfe_u32 v12, v1, 2, 2")
    a("v_and_b32 v13, 3, v1")
    WP = 112
    a("v_lshlrev_b32 v14, 8, v11")
    a("v_lshl_add_u32 v14, v12, 6, v14")
    a("v_lshl_add_u32 v14, v13, 3, v14")
    a("s_lshl_b32 s70, s7, 11")
    a("s_add_u32 s70, s70, %d" % L1_WPHI)
    a("v_add_u32 v14, s70, v14")
    for b in range(2):
        for e in range(2):
            a("ds_read_b64_tr_b16 %s, v14 offset:%d" % (vr(WP + 4*b + 2*e, 2), e * 1024 + b * 32))
    QF = 120; KF = 136; VF = 152
    for t in range(4):
        pack4(a, QF + 4*t, c.ACC[t][0], c.ACC[t][1])
        pack4(a, KF + 4*t, c.ACC[t][2], c.ACC[t][3])
    for u in range(2):
        for nt in range(2):
            pack4(a, VF + (u*2 + nt)*4, c.ACC[2*u][4 + nt], c.ACC[2*u + 1][4 + nt])
    WA = 8; RA = 4
    a("s_lshl_b32 s70, s3, 13")
    a("v_bfe_u32 v14, v10, 1, 2")
    a("v_bfe_u32 v15, v10, 2, 1")
    a("v_lshl_or_b32 v14, v15, 2, v14")
    a("v_xor_b32 v14, v14, v11")
    a("v_lshlrev_b32 v15, 6, v10")
    a("v_lshl_add_u32 v15, v14, 3, v15")
    a("v_add_u32 v%d, s70, v15" % WA)
    a("v_xor_b32 v%d, 32, v%d" % (WA + 1, WA))
    a("v_lshl_add_u32 v14, v11, 2, v12")
    a("v_bfe_u32 v15, v14, 1, 2")
    a("v_bfe_u32 v2, v14, 2, 1")
    a("v_lshl_or_b32 v15, v2, 2, v15")
    a("v_xor_b32 v15, v15, v13")
    a("v_lshlrev_b32 v14, 6, v14")
    a("v_lshl_add_u32 v14, v15, 3, v14")
    a("v_add_u32 v%d, s70, v14" % RA)
    a("v_xor_b32 v%d, 32, v%d" % (RA + 1, RA))
    ONES = 168
    for r in range(4): a("v_mov_b32 v%d, 0x3f803f80" % (ONES + r))
    a("s_waitcnt lgkmcnt(0)")
    PK = 16; E = 24; T = 32; PP = 40; PN = 44
    for t in range(4):
        o = (t & 1) * 32
        MF(a, PK + o, WP, KF + 4*t, None)
        MF(a, PK + o + 4, WP + 4, KF + 4*t, None)
        softmax16(a, PK + o, E + o, T + o, PP + o, PN + o)
        for sg, PX in enumerate((PP + o, PN + o)):
            for b in range(2):
                a("ds_write_b64 v%d, %s offset:%d" % (WA + b, vr(PX + 2*b, 2), sg * 4096 + t * 1024))
    KV = 172
    Z = 204
    PH = 80
    k = 0
    for u in range(2):
        for sg in range(2):
            for b in range(2):
                ph = PH + 4 * (k & 1); k += 1
                for e in range(2):
                    a("ds_read_b64_tr_b16 %s, v%d offset:%d" % (vr(ph + 2*e, 2), RA + b, sg * 4096 + u * 2048 + e * 1024))
                a("s_waitcnt lgkmcnt(0)")
                for nt in range(2):
                    d = KV + ((sg*2 + b)*2 + nt)*4
                    MF(a, d, ph, VF + (u*2 + nt)*4, None if u == 0 else d)
                d = Z + (sg*2 + b)*4
                MF(a, d, ph, ONES, None if u == 0 else d)
    a("v_lshlrev_b32 v12, 4, v1")
    a("s_lshl_b32 s70, s3, 13")
    a("s_add_u32 s70, s70, 32768")
    a("v_add_u32 v13, s70, v12")
    a("s_xor_b32 s71, s3, 2")
    a("s_lshl_b32 s71, s71, 13")
    a("s_add_u32 s71, s71, 32768")
    a("v_add_u32 v14, s71, v12")
    a("s_cmp_eq_u32 s6, 0")
    a("s_cbranch_scc1 p1e_i0")
    nb0 = R.nb
    for keep, lab in ((1, None), (0, "p1e_i0")):
        if lab: a.label(lab)
        send = 1 - keep
        for q in range(4):
            a("ds_write_b128 v13, %s offset:%d" % (vr(KV + send*16 + 4*q, 4), q * 1024))
        for q in range(2):
            a("ds_write_b128 v13, %s offset:%d" % (vr(Z + send*8 + 4*q, 4), 4096 + q * 1024))
        a("s_waitcnt lgkmcnt(0)")
        R.nb = nb0
        R.bar()
        X = 48
        for q in range(4):
            a("ds_read_b128 %s, v14 offset:%d" % (vr(X + 4*q, 4), q * 1024))
        for q in range(2):
            a("ds_read_b128 %s, v14 offset:%d" % (vr(X + 16 + 4*q, 4), 4096 + q * 1024))
        a("s_waitcnt lgkmcnt(0)")
        for r in range(16): a("v_add_f32 v%d, v%d, v%d" % (KV + keep*16 + r, KV + keep*16 + r, X + r))
        for r in range(8): a("v_add_f32 v%d, v%d, v%d" % (Z + keep*8 + r, Z + keep*8 + r, X + 16 + r))
        a("s_lshl_b32 s70, s5, 4")
        a("s_add_u32 s70, s70, s4")
        a("s_lshl_b32 s72, s70, 9")
        a("s_lshl_b32 s70, s70, 3")
        a("s_lshl_b32 s71, s7, 2")
        a("s_add_u32 s70, s70, s71")
        a("s_add_u32 s70, s70, %d" % (keep * 2))
        a("s_lshl_b32 s70, s70, 10")
        for nt in range(2):
            pack4(a, X + 4*nt, KV + (keep*4 + 0 + nt)*4, KV + (keep*4 + 2 + nt)*4)
            a("buffer_store_dwordx4 %s, v12, %s, s70 offen offset:%d sc1" % (vr(X + 4*nt, 4), S(SA), nt * 1024))
        a("s_lshl_b32 s71, s7, 8")
        a("s_add_u32 s72, s72, s71")
        a("s_add_u32 s72, s72, %d" % (keep * 128))
        a("v_lshlrev_b32 v15, 5, v11")
        a("s_mov_b32 exec_lo, 0x00010001")
        a("s_mov_b32 exec_hi, 0x00010001")
        for b in range(2):
            a("buffer_store_dwordx4 %s, v15, %s, s72 offen offset:%d sc1" % (vr(Z + keep*8 + 4*b, 4), S(SB), b * 16))
        a("s_mov_b64 exec, -1")
        if keep == 1: a("s_branch p1e_done")
    a.label("p1e_done")
    a("s_waitcnt vmcnt(0)")
    R.bar()
    stamp(a, 3)
    PHQ = 172
    for t in range(4):
        o = (t & 1) * 32
        MF(a, PK + o, WP, QF + 4*t, None)
        MF(a, PK + o + 4, WP + 4, QF + 4*t, None)
        softmax16(a, PK + o, E + o, T + o, PHQ + t*8, PHQ + t*8 + 4)
    R.bar()
    stamp(a, 4)
    kv_gather(a, False)
    R.bar()
    a("v_lshrrev_b32 v11, 4, v1")
    a("v_lshlrev_b32 v12, 4, v1")
    a("s_lshl_b32 s70, s7, 12")
    a("s_add_u32 s70, s70, %d" % L1_KVF)
    a("v_add_u32 v13, s70, v12")
    KF2 = 112; ZF2 = 128
    for k in range(4): a("ds_read_b128 %s, v13 offset:%d" % (vr(KF2 + 4*k, 4), k * 1024))
    a("s_lshl_b32 s70, s7, 7")
    a("s_add_u32 s70, s70, %d" % L1_ZF)
    a("v_lshlrev_b32 v14, 4, v11")
    a("v_add_u32 v14, s70, v14")
    for sg in range(2): a("ds_read_b128 %s, v14 offset:%d" % (vr(ZF2 + 4*sg, 4), sg * 64))
    a("s_lshl_b32 s70, s4, 2")
    a("s_lshl_b32 s71, s6, 1")
    a("s_add_u32 s70, s70, s71")
    a("s_lshl_b32 s70, s70, 7")
    a("s_lshl_b32 s71, s5, 3")
    a("s_add_u32 s70, s70, s71")
    a("s_lshl_b32 s71, s7, 2")
    a("s_add_u32 s70, s70, s71")
    a("s_lshl_b32 s70, s70, 9")
    a("s_waitcnt lgkmcnt(0)")
    O = 16
    for t in range(4):
        for nt in range(2):
            d = O + (t*2 + nt)*4
            MF(a, d, KF2 + (0*2 + nt)*4, PHQ + t*8, None)
            MF(a, d, KF2 + (1*2 + nt)*4, PHQ + t*8 + 4, d)
        d = 48 + 4*t
        MF(a, d, ZF2, PHQ + t*8, None)
        MF(a, d, ZF2 + 4, PHQ + t*8 + 4, d)
    for t in range(4):
        a("v_add_f32 v%d, 0x358637bd, v%d" % (64 + t, 48 + 4*t))
    for t in range(4):
        a("v_rcp_f32 v%d, v%d" % (64 + t, 64 + t))
    for t in range(4):
        for r in range(8): a("v_mul_f32 v%d, v%d, v%d" % (O + t*8 + r, O + t*8 + r, 64 + t))
    for u in range(2):
        for nt in range(2):
            P = 72 + (u*2 + nt)*4
            pack_pair(a, O + (2*u*2 + nt)*4, O + ((2*u + 1)*2 + nt)*4, P)
            a("buffer_store_dwordx4 %s, v12, %s, s70 offen offset:%d sc1" % (vr(P, 4), S(SC), nt * 1024))
        if u == 0: a("s_add_u32 s70, s70, %d" % (128 * 512))
    a("s_waitcnt vmcnt(0)")
    R.bar()
    stamp(a, 5)

def p3_epilogue(a, c):
    srd(a, SA, P_WS, WS_H, SZ_ACT)
    srd(a, SB, P_WS, WS_HSTP, 32*2048*8)
    a("v_and_b32 v10, 15, v1")
    a("v_lshrrev_b32 v11, 4, v1")
    a("v_bfe_u32 v12, v10, 1, 3")
    a("v_lshrrev_b32 v13, 1, v11")
    a("s_lshl_b32 s70, s7, 2")
    a("v_add_u32 v13, s70, v13")
    a("v_xor_b32 v12, v12, v13")
    a("s_lshl_b32 s70, s6, 13")
    a("s_add_u32 s70, s70, %d" % L3_XT)
    a("v_lshlrev_b32 v13, 7, v10")
    a("v_and_b32 v14, 1, v11")
    a("v_lshl_add_u32 v13, v14, 3, v13")
    a("v_add_u32 v13, s70, v13")
    a("v_lshl_add_u32 v96, v12, 4, v13")
    a("v_xor_b32 v12, 2, v12")
    a("v_lshl_add_u32 v97, v12, 4, v13")
    XR = 100
    for t in range(4):
        for b in range(2):
            a("ds_read_b64 %s, v%d offset:%d" % (vr(XR + (t*2 + b)*2, 2), 96 + b, t * 2048))
    a("v_lshlrev_b32 v15, 4, v1")
    a("s_lshl_b32 s70, s4, 2")
    a("s_lshl_b32 s71, s6, 1")
    a("s_add_u32 s70, s70, s71")
    a("s_mov_b32 s72, s70")
    a("s_lshl_b32 s70, s70, 7")
    a("s_lshl_b32 s71, s5, 3")
    a("s_add_u32 s70, s70, s71")
    a("s_lshl_b32 s71, s7, 2")
    a("s_add_u32 s70, s70, s71")
    a("s_lshl_b32 s70, s70, 9")
    a("s_lshl_b32 s71, s5, 1")
    a("s_add_u32 s71, s71, s7")
    a("s_lshl_b32 s71, s71, 11")
    a("s_lshl_b32 s73, s72, 5")
    a("s_add_u32 s71, s71, s73")
    a("s_lshl_b32 s71, s71, 3")
    a("v_lshlrev_b32 v9, 3, v10")
    a("v_and_b32 v14, 1, v11")
    a("v_lshl_add_u32 v9, v14, 2, v9")
    a("v_lshrrev_b32 v14, 1, v11")
    a("v_lshl_add_u32 v9, v14, 7, v9")
    a("v_and_b32 v14, 1, v11")
    a("v_cmp_eq_u32 s[74:75], 0, v14")
    a("v_cmp_gt_u32 s[76:77], 2, v11")
    a("s_waitcnt lgkmcnt(0)")
    St = 120; P = 128
    for u in range(2):
        for tt in range(2):
            t = 2*u + tt
            for b in range(2):
                acc = c.ACC[t][b]
                for d in range(2):
                    x = XR + (t*2 + b)*2 + d
                    a("v_lshlrev_b32 v124, 16, v%d" % x)
                    a("v_and_b32 v125, 0xffff0000, v%d" % x)
                    a("v_add_f32 v%d, v%d, v124" % (acc + 2*d, acc + 2*d))
                    a("v_add_f32 v%d, v%d, v125" % (acc + 2*d + 1, acc + 2*d + 1))
            s1 = St + 2*tt; s2 = s1 + 1
            A0 = c.ACC[t][0]
            a("v_add_f32 v%d, v%d, v%d" % (s1, A0, A0 + 1))
            a("v_mul_f32 v%d, v%d, v%d" % (s2, A0, A0))
            a("v_fmac_f32 v%d, v%d, v%d" % (s2, A0 + 1, A0 + 1))
            for r in range(2, 8):
                a("v_add_f32 v%d, v%d, v%d" % (s1, s1, A0 + r))
                a("v_fmac_f32 v%d, v%d, v%d" % (s2, A0 + r, A0 + r))
            xq(a, "v_add_f32", s1, 124)
            xq(a, "v_add_f32", s2, 125)
        a("v_cndmask_b32 v124, v%d, v%d, s[74:75]" % (St + 1, St))
        a("v_cndmask_b32 v125, v%d, v%d, s[74:75]" % (St + 3, St + 2))
        a("v_cndmask_b32 v124, v125, v124, s[76:77]")
        a("buffer_store_dword v124, v9, %s, s71 offen sc1" % S(SB))
        for b in range(2):
            pack_pair(a, c.ACC[2*u][b], c.ACC[2*u + 1][b], P + 4*b)
            a("buffer_store_dwordx4 %s, v15, %s, s70 offen offset:%d sc1" % (vr(P + 4*b, 4), S(SA), b * 1024))
        if u == 0:
            a("s_add_u32 s70, s70, %d" % (128 * 512))
            a("s_add_u32 s71, s71, %d" % (32 * 8))

def p4_epilogue(a, c):
    srd(a, SA, P_WS, WS_F, SZ_F)
    a("v_and_b32 v10, 15, v1")
    a("v_lshrrev_b32 v11, 4, v1")
    a("s_mul_i32 s70, s7, 448")
    a("s_add_u32 s70, s70, %d" % L4_TAB)
    a("v_lshlrev_b32 v12, 4, v11")
    a("v_add_u32 v12, s70, v12")
    a("s_lshl_b32 s70, s6, 9")
    a("s_add_u32 s70, s70, %d" % (L4_TAB + 2048))
    a("v_lshlrev_b32 v13, 3, v10")
    a("v_add_u32 v13, s70, v13")
    ST = 128
    for t in range(4):
        a("ds_read_b64 %s, v13 offset:%d" % (vr(ST + 2*t, 2), t * 128))
    a("v_lshlrev_b32 v15, 4, v1")
    a("s_lshl_b32 s70, s4, 2")
    a("s_lshl_b32 s71, s6, 1")
    a("s_add_u32 s70, s70, s71")
    a("s_mul_i32 s70, s70, 448")
    a("s_mul_i32 s71, s5, 28")
    a("s_add_u32 s70, s70, s71")
    a("s_mul_i32 s71, s7, 14")
    a("s_add_u32 s70, s70, s71")
    a("s_lshl_b32 s70, s70, 9")
    a("s_add_u32 s71, s70, %d" % (448 * 512))
    TB = 136
    for b in range(7):
        a("ds_read_b128 %s, v12 offset:%d" % (vr(TB + 8*b, 4), 64 * b))
        a("ds_read_b128 %s, v12 offset:%d" % (vr(TB + 8*b + 4, 4), 1024 + 64 * b))
    a("v_add_u32 v14, 4096, v15")
    a("s_waitcnt lgkmcnt(0)")
    T = 192; P = 208
    for b in range(7):
        cs = TB + 8*b; b1 = cs + 4
        for t in range(4):
            acc = c.ACC[t][b]; tmp = T + 4*t
            for r in range(4):
                a("v_fma_f32 v%d, v%d, v%d, v%d" % (tmp + r, ST + 2*t + 1, cs + r, b1 + r))
            for r in range(4):
                a("v_fma_f32 v%d, v%d, v%d, v%d" % (acc + r, ST + 2*t, acc + r, tmp + r))
        for t in range(4):
            acc = c.ACC[t][b]
            for r in range(4): a("v_max_f32 v%d, 0, v%d" % (acc + r, acc + r))
            for r in range(4): a("v_mul_f32 v%d, v%d, v%d" % (acc + r, acc + r, acc + r))
        for u in range(2):
            pk = P + 4*u + 8*(b & 1)
            pack_pair(a, c.ACC[2*u][b], c.ACC[2*u + 1][b], pk)
            off = b * 1024
            so = "s70" if u == 0 else "s71"
            if off < 4096:
                a("buffer_store_dwordx4 %s, v15, %s, %s offen offset:%d sc1" % (vr(pk, 4), S(SA), so, off))
            else:
                a("buffer_store_dwordx4 %s, v14, %s, %s offen offset:%d sc1" % (vr(pk, 4), S(SA), so, off - 4096))

HR5 = 144; BR5 = 176
def p5_pre(a, c):
    srd(a, SA, P_WS, WS_H, SZ_ACT)
    srd(a, SB, P_B2, 0, 2048)
    a("v_and_b32 v10, 15, v1")
    a("v_lshrrev_b32 v11, 4, v1")
    a("v_lshlrev_b32 v12, 4, v10")
    a("v_lshrrev_b32 v13, 1, v11")
    a("v_lshl_add_u32 v12, v13, 9, v12")
    a("v_and_b32 v13, 1, v11")
    a("v_lshl_add_u32 v12, v13, 3, v12")
    a("s_lshl_b32 s70, s4, 2")
    a("s_lshl_b32 s71, s6, 1")
    a("s_add_u32 s70, s70, s71")
    a("s_lshl_b32 s70, s70, 7")
    a("s_lshl_b32 s71, s5, 4")
    a("s_add_u32 s70, s70, s71")
    a("s_lshl_b32 s71, s7, 3")
    a("s_add_u32 s70, s70, s71")
    a("s_lshl_b32 s70, s70, 9")
    a("s_cmp_eq_u32 s6, s82")
    a("s_cbranch_scc0 p5pre_skip")
    for t in range(4):
        for b in range(4):
            a("buffer_load_dwordx2 %s, v12, %s, s70 offen offset:%d sc1" % (vr(HR5 + (t*4 + b)*2, 2), S(SA), b * 1024 + (t & 1) * 256))
        if t == 1: a("s_add_u32 s70, s70, %d" % (128 * 512))
    a("v_lshlrev_b32 v13, 3, v11")
    a("s_lshl_b32 s70, s5, 8")
    a("s_lshl_b32 s71, s7, 7")
    a("s_add_u32 s70, s70, s71")
    for b in range(4):
        a("buffer_load_dwordx2 %s, v13, %s, s70 offen offset:%d" % (vr(BR5 + 2*b, 2), S(SB), b * 32))
    a.label("p5pre_skip")

def p5_epilogue(a, c):
    srd(a, SC, P_WS, WS_PX, 128*2*2*16384)
    srd(a, SD, P_OUT, 0, SZ_ACT)
    srd(a, SF, P_WS, WS_FLAG, FLAG_SZ)
    a("s_lshl_b32 s72, s4, 3")
    a("s_add_u32 s72, s72, s5")
    a("v_lshlrev_b32 v15, 4, v1")
    a("s_cmp_eq_u32 s6, s82")
    a("s_cbranch_scc1 p5_keep")
    a("s_lshl_b32 s73, s72, 2")
    a("s_lshl_b32 s74, s82, 1")
    a("s_add_u32 s73, s73, s74")
    a("s_add_u32 s73, s73, s7")
    a("s_lshl_b32 s74, s73, 14")
    for q in range(16):
        if q and q % 4 == 0: a("s_add_u32 s74, s74, 4096")
        a("buffer_store_dwordx4 %s, v15, %s, s74 offen offset:%d sc1" % (vr(16 + 4*q, 4), S(SC), (q % 4) * 1024))
    for k in range(KSEND, KKEEP):
        a("s_barrier")
        if k == KSEND + 3:
            a("s_waitcnt vmcnt(0)")
            a("s_lshl_b32 s74, s73, 3")
            flag_write(a, 74, FL_X)
    a("s_endpgm")
    a.label("p5_keep")
    a("s_lshl_b32 s73, s72, 2")
    a("s_xor_b32 s74, s82, 1")
    a("s_lshl_b32 s74, s74, 1")
    a("s_add_u32 s73, s73, s74")
    a("s_add_u32 s73, s73, s7")
    a("s_lshl_b32 s74, s73, 3")
    flag_poll(a, 74, FL_X, 1, vtmp=8)
    a("s_lshl_b32 s74, s73, 14")
    PR = 80
    for q in range(16):
        if q and q % 4 == 0: a("s_add_u32 s74, s74, 4096")
        a("buffer_load_dwordx4 %s, v15, %s, s74 offen offset:%d sc1" % (vr(PR + 4*q, 4), S(SC), (q % 4) * 1024))
    a("v_and_b32 v10, 15, v1")
    a("v_lshrrev_b32 v11, 4, v1")
    a("v_and_b32 v13, 1, v11")
    a("v_lshl_add_u32 v12, v13, 4, v10")
    a("v_lshlrev_b32 v12, 11, v12")
    a("v_lshrrev_b32 v13, 1, v11")
    a("v_lshl_add_u32 v12, v13, 4, v12")
    a("s_lshl_b32 s70, s4, 7")
    a("s_lshl_b32 s71, s6, 6")
    a("s_add_u32 s70, s70, s71")
    a("s_lshl_b32 s70, s70, 11")
    a("s_lshl_b32 s71, s5, 8")
    a("s_add_u32 s70, s70, s71")
    a("s_lshl_b32 s71, s7, 7")
    a("s_add_u32 s70, s70, s71")
    BF = 184
    a("s_waitcnt vmcnt(16)")
    for b in range(4):
        for d in range(2):
            a("v_lshlrev_b32 v%d, 16, v%d" % (BF + 4*b + 2*d, BR5 + 2*b + d))
            a("v_and_b32 v%d, 0xffff0000, v%d" % (BF + 4*b + 2*d + 1, BR5 + 2*b + d))
    for t in range(4):
        for b in range(4):
            acc = c.ACC[t][b]
            for d in range(2):
                x = HR5 + (t*4 + b)*2 + d
                a("v_lshlrev_b32 v8, 16, v%d" % x)
                a("v_and_b32 v9, 0xffff0000, v%d" % x)
                a("v_add_f32 v%d, v%d, v%d" % (acc + 2*d, acc + 2*d, BF + 4*b + 2*d))
                a("v_add_f32 v%d, v%d, v%d" % (acc + 2*d + 1, acc + 2*d + 1, BF + 4*b + 2*d + 1))
                a("v_add_f32 v%d, v%d, v8" % (acc + 2*d, acc + 2*d))
                a("v_add_f32 v%d, v%d, v9" % (acc + 2*d + 1, acc + 2*d + 1))
    a("s_waitcnt vmcnt(0)")
    for r in range(64): a("v_add_f32 v%d, v%d, v%d" % (16 + r, 16 + r, PR + r))
    P = 200
    for u in range(2):
        for b in range(4):
            pk = P + 4 * (b & 1) + 8 * u
            pack_pair(a, c.ACC[2*u][b], c.ACC[2*u + 1][b], pk)
            a("buffer_store_dwordx4 %s, v12, %s, s70 offen offset:%d" % (vr(pk, 4), S(SD), b * 32))
        if u == 0: a("s_add_u32 s70, s70, %d" % (32 * 2048))
    stamp(a, 14)

def loader_role(a):
    R = Role(a)
    a("s_sub_u32 s7, s3, 4")
    c = p1_cfg()
    loader_phase(R, c)
    R.bar()
    R.bar()
    R.bar()
    kv_gather(a, False)
    R.bar()
    if G.stop_after <= 1:
        R.bar(); return R
    a("s_sub_u32 s7, s3, 4")
    c = p3_cfg(); c.pre_bars = 1
    loader_phase_next(R, c)
    if G.stop_after <= 3:
        R.bar(); return R
    loader_phase_next(R, p4_cfg())
    if G.stop_after <= 4:
        R.bar(); return R
    loader_phase_next(R, p5_cfg())
    return R

def loader_phase_next(R, c):
    class RR:
        def __init__(s, R): s.R = R; s.a = R.a; s.first = True
        def bar(s, n=1):
            if s.first:
                s.first = False
                s.R.bar()
            s.R.bar(n)
    loader_phase(RR(R), c)

def bar_loop(R, n, name):
    a = R.a
    a("s_mov_b32 s%d, 0" % S_CNT)
    a.label(name)
    R.bar(n)
    a("s_add_u32 s%d, s%d, 1" % (S_CNT, S_CNT))
    a("s_cmp_lt_u32 s%d, %d" % (S_CNT, n))
    a("s_cbranch_scc1 %s" % name)

def helper_role(a):
    R = Role(a)
    a("s_sub_u32 s7, s3, 6")
    srd(a, SF, P_WS, WS_FLAG, FLAG_SZ)
    c = p1_cfg(); c.tmap(a, c)
    R.bar()
    srd(a, SA, P_WO, 0, 1024*1024*2)
    srd(a, SB, P_W2, 0, 3584*1024*2)
    a("s_lshl_b32 s70, s2, 1")
    a("s_add_u32 s70, s70, s7")
    a("s_lshl_b32 s70, s70, 13")
    a("v_lshlrev_b32 v16, 7, v1")
    R.bar(); R.bar()
    a("buffer_load_dword v17, v16, %s, s70 offen" % S(SA))
    R.bar(); R.bar()
    a("buffer_load_dword v18, v16, %s, s70 offen" % S(SB))
    R.bar(); R.bar()
    a("s_add_u32 s70, s70, %d" % (512 * 8192))
    a("buffer_load_dword v19, v16, %s, s70 offen" % S(SB))
    bar_loop(R, 10, "h1_loop")
    R.bar()
    R.bar()
    a("s_cmp_lg_u32 s7, 0")
    a("s_cbranch_scc1 h_a_skip")
    a("s_lshl_b32 s70, s5, 7")
    a("s_lshl_b32 s71, s4, 3")
    a("s_add_u32 s71, s71, s70")
    flag_write(a, 71, FL_A)
    flag_poll(a, 70, FL_A, 16)
    a.label("h_a_skip")
    R.bar()
    kv_gather(a, True)
    R.bar()
    R.bar()
    def wr_and_poll(name, grp_w, grp_p, nxt):
        a("s_cmp_lg_u32 s7, 0")
        a("s_cbranch_scc1 %s" % name)
        a("s_lshl_b32 s70, s4, 7")
        a("s_lshl_b32 s71, s5, 3")
        a("s_add_u32 s71, s71, s70")
        flag_write(a, 71, grp_w)
        if nxt is not None:
            nxt.tmap(a, nxt)
            a("s_lshl_b32 s70, s4, 7")
            flag_poll(a, 70, grp_p, 16)
        a.label(name)
        if nxt is not None: nxt.tmap(a, nxt)
    if G.stop_after <= 1:
        wr_and_poll("h_b_skip", FL_B, None, None); return R
    c3 = p3_cfg()
    wr_and_poll("h_b_skip", FL_B, FL_B, c3)
    R.bar()
    bar_loop(R, 17, "h3_loop")
    R.bar()
    if G.stop_after <= 3:
        wr_and_poll("h_c_skip", FL_C, None, None); return R
    c4 = p4_cfg()
    wr_and_poll("h_c_skip", FL_C, FL_C, c4)
    R.bar()
    p4_tables(R)
    R.bar()
    if G.stop_after <= 4:
        wr_and_poll("h_d_skip", FL_D, None, None); return R
    c5 = p5_cfg()
    wr_and_poll("h_d_skip", FL_D, FL_D, c5)
    R.bar()
    R.nb += 1 + KKEEP
    return R

def p4_tables(R):
    a = R.a
    srd(a, SA, P_WS, WS_HSTP, 32*2048*8)
    srd(a, SB, P_WS, WS_CS1P, 8*3584*4)
    srd(a, SC, P_B1, 0, 3584*2)
    a("v_lshlrev_b32 v16, 3, v1")
    a("s_lshl_b32 s70, s4, 7")
    a("s_lshl_b32 s71, s7, 6")
    a("s_add_u32 s70, s70, s71")
    a("s_lshl_b32 s70, s70, 3")
    L = 32
    for p in range(32):
        a("buffer_load_dwordx2 %s, v16, %s, s70 offen sc1" % (vr(L + 2*p, 2), S(SA)))
        if p < 31: a("s_add_u32 s70, s70, %d" % (2048 * 8))
    a("s_mul_i32 s71, s5, 224")
    a("s_lshl_b32 s72, s7, 7")
    a("s_add_u32 s71, s71, s72")
    a("s_lshl_b32 s72, s71, 2")
    C = 100
    for k in range(8):
        a("buffer_load_dwordx2 %s, v16, %s, s72 offen" % (vr(C + 2*k, 2), S(SB)))
        if k < 7: a("s_add_u32 s72, s72, %d" % (3584 * 4))
    a("v_lshlrev_b32 v17, 2, v1")
    a("s_lshl_b32 s72, s71, 1")
    a("buffer_load_dword v116, v17, %s, s72 offen" % S(SC))
    R.bar(); R.bar(); R.bar()
    a("s_waitcnt vmcnt(0)")
    for p in range(1, 32):
        a("v_add_f32 v%d, v%d, v%d" % (L, L, L + 2*p))
        a("v_add_f32 v%d, v%d, v%d" % (L + 1, L + 1, L + 2*p + 1))
    a("v_mul_f32 v%d, 0x3a800000, v%d" % (L, L))
    a("v_mul_f32 v%d, 0x3a800000, v%d" % (L + 1, L + 1))
    a("v_fma_f32 v%d, -v%d, v%d, v%d" % (L + 1, L, L, L + 1))
    a("v_max_f32 v%d, 0, v%d" % (L + 1, L + 1))
    a("v_add_f32 v%d, 0x3727c5ac, v%d" % (L + 1, L + 1))
    a("v_rsq_f32 v%d, v%d" % (L + 2, L + 1))
    a("v_mul_f32 v%d, v%d, v%d" % (L + 3, L, L + 2))
    a("v_sub_f32 v%d, 0, v%d" % (L + 3, L + 3))
    a("s_lshl_b32 s70, s7, 9")
    a("s_add_u32 s70, s70, %d" % (L4_TAB + 2048))
    a("v_add_u32 v18, s70, v16")
    a("ds_write_b64 v18, %s" % vr(L + 2, 2))
    R.bar()
    for k in range(1, 8):
        a("v_add_f32 v%d, v%d, v%d" % (C, C, C + 2*k))
        a("v_add_f32 v%d, v%d, v%d" % (C + 1, C + 1, C + 2*k + 1))
    a("v_lshlrev_b32 v118, 16, v116")
    a("v_and_b32 v119, 0xffff0000, v116")
    a("s_lshl_b32 s70, s7, 9")
    a("s_add_u32 s70, s70, %d" % L4_TAB)
    a("v_add_u32 v18, s70, v16")
    a("s_lshl_b32 s71, s7, 7")
    a("v_lshlrev_b32 v19, 1, v1")
    a("v_add_u32 v19, s71, v19")
    a("v_cmp_gt_u32 vcc, 224, v19")
    a("s_and_saveexec_b64 s[72:73], vcc")
    a("ds_write_b64 v18, %s" % vr(C, 2))
    a("ds_write_b64 v18, %s offset:1024" % vr(118, 2))
    a("s_mov_b64 exec, s[72:73]")
    a("s_waitcnt lgkmcnt(0)")
    bar_loop(R, 13, "h4_loop")


def wave_sum(a, v, t):
    for r in (8, 4, 2, 1):
        a("v_add_f32_dpp v%d, v%d, v%d row_ror:%d row_mask:0xf bank_mask:0xf" % (v, v, v, r))
    xq(a, "v_add_f32", v, t)

def k1(a):
    n = "k1_kernel"
    kernel_begin(a, n)
    a("s_cmp_ge_u32 s2, 480")
    a("s_cbranch_scc1 k1_end")
    for sdst, nm in ((32, "x"), (34, "ws"), (36, "w1"), (38, "wqkv")):
        a("s_load_dwordx2 %s, s[0:1], %d" % (sr(sdst, 2), KA[nm]))
    a("v_lshrrev_b32 v2, 6, v0")
    a("v_and_b32 v1, 63, v0")
    a("v_readfirstlane_b32 s3, v2")
    a("s_waitcnt lgkmcnt(0)")
    a("s_cmp_ge_u32 s2, 256")
    a("s_cbranch_scc1 k1_cs")
    srd(a, 8, 32, 0, SZ_ACT)
    srd(a, 12, 34, WS_XN, SZ_ACT)
    a("s_lshl_b32 s4, s2, 3")
    a("s_add_u32 s4, s4, s3")
    a("s_lshl_b32 s20, s4, 13")
    a("s_lshl_b32 s4, s4, 11")
    a("v_lshlrev_b32 v2, 4, v1")
    a("buffer_load_dwordx4 v[4:7], v2, s[8:11], s4 offen")
    a("buffer_load_dwordx4 v[8:11], v2, s[8:11], s4 offen offset:1024")
    srd(a, 16, 38, 0, 1024*3072*2)
    a("v_lshlrev_b32 v3, 7, v1")
    a("buffer_load_dword v40, v3, s[16:19], s20 offen")
    a("s_or_b32 s21, s2, s3")
    a("s_cmp_lg_u32 s21, 0")
    a("s_cbranch_scc1 k1_nononce")
    a("s_memrealtime s[22:23]")
    srd(a, 24, 34, WS_NONCE, 64)
    a("s_waitcnt lgkmcnt(0)")
    a("s_or_b32 s22, s22, 1")
    a("s_xor_b32 s23, s23, 0x5bd1e995")
    a("v_mov_b32 v42, s22")
    a("v_mov_b32 v43, s23")
    a("v_mov_b32 v44, 0")
    a("s_mov_b64 exec, 1")
    a("buffer_store_dwordx2 v[42:43], v44, s[24:27], 0 offen")
    a("s_mov_b64 exec, -1")
    a.label("k1_nononce")
    a("s_waitcnt vmcnt(1)")
    X = 16
    for i in range(8):
        a("v_lshlrev_b32 v%d, 16, v%d" % (X + 2*i, 4 + i))
        a("v_and_b32 v%d, 0xffff0000, v%d" % (X + 2*i + 1, 4 + i))
    a("v_add_f32 v12, v%d, v%d" % (X, X+1))
    for i in range(2, 16): a("v_add_f32 v12, v12, v%d" % (X + i))
    wave_sum(a, 12, 13)
    a("v_mul_f32 v12, 0x3a800000, v12")
    for i in range(16): a("v_sub_f32 v%d, v%d, v12" % (X + i, X + i))
    a("v_mul_f32 v14, v%d, v%d" % (X, X))
    for i in range(1, 16): a("v_fmac_f32 v14, v%d, v%d" % (X + i, X + i))
    wave_sum(a, 14, 13)
    a("v_mov_b32 v15, 0x3727c5ac")
    a("v_fmac_f32 v15, 0x3a800000, v14")
    a("v_rsq_f32 v15, v15")
    for i in range(16): a("v_mul_f32 v%d, v%d, v15" % (X + i, X + i))
    for i in range(8): a("v_cvt_pk_bf16_f32 v%d, v%d, v%d" % (4 + i, X + 2*i, X + 2*i + 1))
    a("buffer_store_dwordx4 v[4:7], v2, s[12:15], s4 offen sc1")
    a("buffer_store_dwordx4 v[8:11], v2, s[12:15], s4 offen offset:1024 sc1")
    a("s_endpgm")
    a.label("k1_cs")
    srd(a, 8, 36, 0, 1024*3584*2)
    srd(a, 12, 34, WS_CS1P, 8*3584*4)
    a("s_sub_u32 s4, s2, 256")
    a("s_mul_hi_u32 s5, s4, 0x%x" % ((2**32 + 27)//28))
    a("s_mul_i32 s6, s5, 28")
    a("s_sub_u32 s6, s4, s6")
    a("v_lshrrev_b32 v2, 4, v0")
    a("v_mul_u32_u24 v2, 7168, v2")
    a("v_and_b32 v3, 15, v0")
    a("v_lshl_add_u32 v2, v3, 4, v2")
    a("s_mul_i32 s7, s5, %d" % (128*7168))
    a("s_lshl_b32 s16, s6, 8")
    a("s_add_u32 s7, s7, s16")
    for i in range(4):
        a("buffer_load_dwordx4 %s, v2, s[8:11], s7 offen" % vr(4 + 4*i, 4))
        if i < 3: a("s_add_u32 s7, s7, %d" % (32*7168))
    A = 24
    a("s_waitcnt vmcnt(0)")
    for d in range(4):
        a("v_lshlrev_b32 v%d, 16, v%d" % (A + 2*d, 4 + d))
        a("v_and_b32 v%d, 0xffff0000, v%d" % (A + 2*d + 1, 4 + d))
    for i in range(1, 4):
        for d in range(4):
            a("v_lshlrev_b32 v20, 16, v%d" % (4 + 4*i + d))
            a("v_and_b32 v21, 0xffff0000, v%d" % (4 + 4*i + d))
            a("v_add_f32 v%d, v%d, v20" % (A + 2*d, A + 2*d))
            a("v_add_f32 v%d, v%d, v21" % (A + 2*d + 1, A + 2*d + 1))
    for e in range(8): xq(a, "v_add_f32", A + e, 20)
    a("v_and_b32 v3, 15, v1")
    a("v_lshlrev_b32 v3, 5, v3")
    a("s_lshl_b32 s16, s3, 9")
    a("v_add_u32 v3, s16, v3")
    a("ds_write_b128 v3, %s" % vr(A, 4))
    a("ds_write_b128 v3, %s offset:16" % vr(A + 4, 4))
    a("s_waitcnt lgkmcnt(0)")
    a("s_barrier")
    a("s_cmp_ge_u32 s3, 2")
    a("s_cbranch_scc1 k1_end")
    a("v_lshlrev_b32 v3, 2, v0")
    for w in range(8): a("ds_read_b32 v%d, v3 offset:%d" % (4 + w, w * 512))
    a("s_waitcnt lgkmcnt(0)")
    for w in range(1, 8): a("v_add_f32 v4, v4, v%d" % (4 + w))
    a("s_mul_i32 s7, s5, %d" % (3584*4))
    a("s_lshl_b32 s16, s6, 9")
    a("s_add_u32 s7, s7, s16")
    a("buffer_store_dword v4, v3, s[12:15], s7 offen sc1")
    a.label("k1_end")
    a("s_endpgm")
    return dict(name=n, grid=480, block=512, lds=4096, vgpr=48)

def kp(a):
    n = "kp_kernel"
    kernel_begin(a, n)
    a("s_cmp_ge_u32 s2, 256")
    a("s_cbranch_scc1 kp_end")
    if G.prof:
        a("s_memrealtime s[96:97]")
    for sdst, nm in ((P_WS, "ws"), (P_X, "x"), (P_WQKV, "wqkv"), (P_WPHI, "wphi"), (P_WO, "wo"), (P_W1, "w1"),
                     (P_B1, "b1"), (P_W2, "w2"), (P_B2, "b2"), (P_OUT, "out")):
        a("s_load_dwordx2 %s, s[0:1], %d" % (sr(sdst, 2), KA[nm]))
    a("s_and_b32 s30, s2, 7")
    a("s_lshr_b32 s31, s2, 3")
    a("v_lshrrev_b32 v2, 6, v0")
    a("v_and_b32 v1, 63, v0")
    a("v_readfirstlane_b32 s3, v2")
    a("s_waitcnt lgkmcnt(0)")
    a("s_add_u32 s70, s%d, 0x%x" % (P_WS, WS_NONCE))
    a("s_addc_u32 s71, s%d, 0" % (P_WS + 1))
    a("s_load_dwordx2 s[%d:%d], s[70:71], 0" % (S_NONCE, S_NONCE + 1))
    a("s_cmp_ge_u32 s3, 6")
    a("s_cbranch_scc1 kp_helper")
    a("s_cmp_ge_u32 s3, 4")
    a("s_cbranch_scc1 kp_loader")
    if G.prof: a("v_writelane_b32 v255, s96, 0")
    a("s_waitcnt lgkmcnt(0)")
    Rc = compute_role(a)
    if G.prof:
        a("s_waitcnt vmcnt(0)")
        stamp(a, 15)
        a("s_cmp_lg_u32 s7, 0")
        a("s_cbranch_scc1 kp_end")
        srd(a, SA, P_WS, WS_PROF, 256*256)
        a("s_lshl_b32 s70, s2, 8")
        a("v_lshlrev_b32 v2, 2, v1")
        a("buffer_store_dword v255, v2, %s, s70 offen" % S(SA))
    a("s_endpgm")
    a.label("kp_loader")
    a("s_waitcnt lgkmcnt(0)")
    Rl = loader_role(a)
    a("s_endpgm")
    a.label("kp_helper")
    a("s_waitcnt lgkmcnt(0)")
    Rh = helper_role(a)
    a("s_endpgm")
    a.label("kp_end")
    a("s_endpgm")
    print("barriers: compute %d loader %d helper %d" % (Rc.nb, Rl.nb, Rh.nb))
    assert Rc.nb == Rl.nb == Rh.nb
    return dict(name=n, grid=256, block=512, lds=155648, vgpr=256)

def build(prof=False, stop_after=5):
    G.prof = prof; G.stop_after = stop_after
    body = Asm()
    descs = [k1(body), kp(body)]
    head = HEADER
    for d in descs:
        head += "; @launch kernel=%s grid=(%d,1,1) block=(%d,1,1) lds=%d\n" % (d["name"], d["grid"], d["block"], d["lds"])
    txt = head + '.amdgcn_target "amdgcn-amd-amdhsa--gfx950"\n' + body.text()
    txt += '.section .rodata,"a"\n'
    for d in descs:
        txt += ".p2align 6\n" + kernel_desc(d["name"], d["vgpr"], 102)
    return txt

if __name__ == "__main__":
    import sys
    stop = 5
    for x in sys.argv:
        if x.startswith("stop"): stop = int(x[4:])
    open(sys.argv[1], "w").write(build(prof="prof" in sys.argv, stop_after=stop))
```

```python
from asmgen import *

WS_XN   = 0x0000000
WS_ST1  = 0x0000000
WS_CSQ  = 0x0010000
WS_RSP  = 0x0080000
WS_CS2  = 0x0100000
WS_KVP  = 0x0400000
WS_ZP   = 0x0700000
WS_O    = 0x0800000
WS_H    = 0x0C00000
WS_HSTP = 0x1000000
WS_CS1P = 0x1100000
WS_FLAG = 0x1200000
WS_NONCE= 0x1280000
WS_F    = 0x1400000
WS_PX   = 0x2400000
WS_PROF = 0x4000000
SZ_ACT  = 2048*1024*2
SZ_F    = 2048*3584*2
FL_A, FL_B, FL_C, FL_D, FL_X, FL_E, FL_G = 0x0000, 0x1000, 0x2000, 0x3000, 0x4000, 0x6000, 0x7000
FLAG_SZ = 0x8000

KA = dict(x=0, wqkv=8, wphi=16, wo=24, w1=40, b1=48, w2=56, b2=64, out=72, dbg=80, ws=88)
P_WS, P_X, P_WQKV, P_WPHI, P_WO, P_W1, P_B1, P_W2, P_B2, P_OUT = 8, 10, 12, 14, 16, 18, 20, 22, 24, 26
P_DBG = 84
S_NONCE = 28
SX, SW, SA, SB, SC, SD, SF = 32, 36, 40, 44, 48, 52, 56
S_XOFF, S_WOFF, S_LDSX, S_LDSW, S_TMP, S_CNT, S_DELTA, S_BUF, S_SS, S_NEG = 60, 61, 62, 63, 64, 65, 66, 67, 68, 69
S_L2E = 83
LOG2E = 0x3fb8aa3b
MF16 = "v_mfma_f32_16x16x32_bf16"

class G:
    prof = False
    stop_after = 5
    nstamp = 0
    st_touch = True
    code_pf = True
    tlb_warm = False
    hprio = True
    hstage = False
    p1peel = 2
    touch2 = False
    x_noh4 = False
    x_norot4 = False
    touch_mode = 1

def srd(a, d, p, off, size):
    if off:
        a("s_add_u32 s%d, s%d, 0x%x" % (d, p, off))
        a("s_addc_u32 s%d, s%d, 0" % (d + 1, p + 1))
    else:
        a("s_mov_b32 s%d, s%d" % (d, p))
        a("s_mov_b32 s%d, s%d" % (d + 1, p + 1))
    a("s_mov_b32 s%d, 0x%x" % (d + 2, size))
    a("s_mov_b32 s%d, 0x20000" % (d + 3))

def S(b): return sr(b, 4)

def stamp(a, k):
    if G.prof:
        a("s_memrealtime s[98:99]")
        a("s_waitcnt lgkmcnt(0)")
        a("v_writelane_b32 v255, s98, %d" % k)

def cstamp(a, k):
    if G.prof:
        a("s_memtime s[98:99]")
        a("s_waitcnt lgkmcnt(0)")
        a("v_writelane_b32 v255, s98, %d" % k)

class Role:
    def __init__(self, a): self.a = a; self.nb = 0; self.trace = False; self.tk = 0
    def bar(self, n=1):
        if self.trace and G.prof and n == 1 and self.tk < 62:
            stamp(self.a, self.tk); self.tk += 1
        self.a("s_barrier"); self.nb += n

def tile_map(a, mx, nx):
    import math
    mgroups = 16 // mx
    lm = int(math.log2(mgroups)); lmx = int(math.log2(mx))
    a("s_and_b32 s4, s30, %d" % (mgroups - 1))
    a("s_lshr_b32 s5, s30, %d" % lm)
    a("s_mul_i32 s4, s4, %d" % mx)
    a("s_mul_i32 s5, s5, %d" % nx)
    a("s_and_b32 s%d, s31, %d" % (S_TMP, mx - 1))
    a("s_add_u32 s4, s4, s%d" % S_TMP)
    a("s_lshr_b32 s%d, s31, %d" % (S_TMP, lmx))
    a("s_add_u32 s5, s5, s%d" % S_TMP)

class Cfg: pass

def loader_setup(a, c):
    if c.xmode == "row":
        a("v_lshrrev_b32 v10, 3, v1")
        a("v_mul_u32_u24 v10, %d, v10" % c.ldx)
        a("v_and_b32 v11, 7, v1")
        a("v_lshrrev_b32 v12, 4, v1")
        a("v_xor_b32 v13, v11, v12")
        a("v_lshl_add_u32 v2, v13, 4, v10")
        a("v_xor_b32 v13, 4, v13")
        a("v_lshl_add_u32 v3, v13, 4, v10")
        a("s_lshl_b32 s%d, s4, 7" % S_XOFF)
        a("s_lshl_b32 s%d, s7, 6" % S_TMP)
        a("s_add_u32 s%d, s%d, s%d" % (S_XOFF, S_XOFF, S_TMP))
        a("s_mul_i32 s%d, s%d, %d" % (S_XOFF, S_XOFF, c.ldx))
    else:
        a("v_lshlrev_b32 v2, 4, v1")
        a("s_lshl_b32 s%d, s4, 2" % S_XOFF)
        a("s_lshl_b32 s%d, s7, 1" % S_TMP)
        a("s_add_u32 s%d, s%d, s%d" % (S_XOFF, S_XOFF, S_TMP))
        a("s_mul_i32 s%d, s%d, %d" % (S_XOFF, S_XOFF, c.KX // 8 * 512))
    if c.wmode == "pair":
        a("v_lshrrev_b32 v10, 5, v1")
        a("v_lshlrev_b32 v10, 2, v10")
        a("v_bfe_u32 v11, v1, 2, 2")
        a("v_add_u32 v10, v10, v11")
        a("v_mul_u32_u24 v10, %d, v10" % c.ldw)
        a("v_bfe_u32 v11, v1, 4, 1")
        a("v_lshl_add_u32 v10, v11, 6, v10")
        a("v_and_b32 v11, 3, v1")
        a("v_lshl_add_u32 v4, v11, 4, v10")
        a("v_xor_b32 v11, 2, v11")
        a("v_lshl_add_u32 v5, v11, 4, v10")
        a("s_mul_i32 s%d, s7, %d" % (S_WOFF, 32 * c.ldw))
        a("s_mul_i32 s%d, s5, %d" % (S_TMP, c.ntile_bytes))
        a("s_add_u32 s%d, s%d, s%d" % (S_WOFF, S_WOFF, S_TMP))
        a("s_mul_i32 s%d, s7, %d" % (S_LDSW, 4 * (c.NB // 2) * 1024))
    else:
        a("v_lshrrev_b32 v12, 4, v1")
        a("v_bfe_u32 v13, v1, 2, 2")
        a("v_and_b32 v14, 3, v1")
        for t in range(7):
            a("v_add_u32 v15, %d, v12" % (4 * t))
            a("v_mul_u32_u24 v16, 37, v15")
            a("v_lshrrev_b32 v16, 8, v16")
            a("v_mul_u32_u24 v17, 7, v16")
            a("v_sub_u32 v17, v15, v17")
            a("v_and_b32 v18, 2, v16")
            a("v_xor_b32 v18, v18, v14")
            a("v_lshl_add_u32 v16, v16, 2, v13")
            a("v_mul_u32_u24 v16, %d, v16" % c.ldw)
            a("v_lshl_add_u32 v16, v17, 6, v16")
            a("v_lshl_add_u32 v%d, v18, 4, v16" % (4 + t))
        a("s_mul_i32 s%d, s7, %d" % (S_WOFF, 32 * c.ldw))
        a("s_mul_i32 s%d, s5, %d" % (S_TMP, c.ntile_bytes))
        a("s_add_u32 s%d, s%d, s%d" % (S_WOFF, S_WOFF, S_TMP))
        a("s_mul_i32 s%d, s7, 14336" % S_LDSW)
    if c.koff: c.koff(a, c)
    a("s_add_u32 s%d, s%d, %d" % (S_LDSW, S_LDSW, c.LB + 16384))
    a("s_lshl_b32 s%d, s7, 13" % S_LDSX)
    if c.LB: a("s_add_u32 s%d, s%d, %d" % (S_LDSX, S_LDSX, c.LB))
    a("s_mov_b32 s%d, %d" % (S_SS, c.SS))
    a("s_mov_b32 s%d, 0x%x" % (S_NEG, (-(c.NS - 1) * c.SS) & 0xffffffff))

def nX(c): return 8
def nW(c): return c.NB * 2

def issue_x(a, c, ldsoff=0):
    if c.xmode == "row":
        for j in range(8):
            a("s_add_u32 m0, s%d, %d" % (S_LDSX, ldsoff + j * 1024))
            a("s_add_u32 s%d, s%d, %d" % (S_TMP, S_XOFF, j * 8 * c.ldx))
            a("buffer_load_dwordx4 v%d, %s, s%d offen lds" % (2 + (j & 1), S(SX), S_TMP))
        a("s_add_u32 s%d, s%d, 128" % (S_XOFF, S_XOFF))
    else:
        a("s_add_u32 m0, s%d, %d" % (S_LDSX, ldsoff))
        a("s_add_u32 s%d, s%d, %d" % (S_TMP, S_XOFF, c.KX // 8 * 512))
        for j in range(4):
            a("buffer_load_dwordx4 v2, %s, s%d offen offset:%d lds" % (S(SX), S_XOFF, j * 1024))
        a("s_add_u32 m0, s%d, %d" % (S_LDSX, ldsoff + 4096))
        a("s_add_u32 s%d, s%d, 4096" % (S_XOFF, S_XOFF))
        for j in range(4):
            a("buffer_load_dwordx4 v2, %s, s%d offen offset:%d lds" % (S(SX), S_TMP, j * 1024))

def issue_w(a, c, ldsoff=0):
    if c.wmode == "pair":
        NP = c.NB // 2
        for kpl in range(4):
            for np_ in range(NP):
                a("s_add_u32 m0, s%d, %d" % (S_LDSW, ldsoff + (kpl * NP + np_) * 1024))
                a("s_add_u32 s%d, s%d, %d" % (S_TMP, S_WOFF, kpl * 8 * c.ldw + c.strip[np_]))
                a("buffer_load_dwordx4 v%d, %s, s%d offen lds" % (4 + (kpl & 1), S(SW), S_TMP))
    else:
        for g in range(2):
            if g == 1: a("s_add_u32 s%d, s%d, %d" % (S_TMP, S_WOFF, 16 * c.ldw))
            for t in range(7):
                a("s_add_u32 m0, s%d, %d" % (S_LDSW, ldsoff + g * 7168 + t * 1024))
                a("s_nop 0")
                a("buffer_load_dwordx4 v%d, %s, s%d offen lds" % (4 + t, S(SW), S_WOFF if g == 0 else S_TMP))
    a("s_add_u32 s%d, s%d, %d" % (S_WOFF, S_WOFF, 64 * c.ldw))

S_S0 = 86
def xstride(c): return 128 if c.xmode == "row" else 4096
def rot_begin(a, c):
    if not c.rot: return
    c.rot(a, c)
    a("s_mul_i32 s%d, s%d, %d" % (S_TMP, S_S0, xstride(c)))
    a("s_add_u32 s92, s%d, s%d" % (S_XOFF, S_TMP))
    a("s_mul_i32 s%d, s%d, %d" % (S_TMP, S_S0, 64 * c.ldw))
    a("s_add_u32 s93, s%d, s%d" % (S_WOFF, S_TMP))
    a("s_mov_b32 s90, 0")
    a("s_mov_b32 s91, 0")
def IX(a, c, off=0, k=None):
    if c.rot and k == c.peel_at:
        a("s_mov_b32 s89, s%d" % S_XOFF)
        a("s_mov_b32 s%d, s92" % S_XOFF)
        issue_x(a, c, off)
        a("s_mov_b32 s%d, s89" % S_XOFF)
        return
    if c.rot:
        a("s_cmp_eq_u32 s90, s%d" % S_S0)
        a("s_cselect_b32 s%d, %d, 0" % (S_TMP, xstride(c)))
        a("s_add_u32 s%d, s%d, s%d" % (S_XOFF, S_XOFF, S_TMP))
        a("s_add_u32 s90, s90, 1")
    issue_x(a, c, off)
def IW(a, c, off=0, k=None):
    if c.rot and k == c.peel_at:
        a("s_mov_b32 s89, s%d" % S_WOFF)
        a("s_mov_b32 s%d, s93" % S_WOFF)
        issue_w(a, c, off)
        a("s_mov_b32 s%d, s89" % S_WOFF)
        return
    if c.rot:
        a("s_cmp_eq_u32 s91, s%d" % S_S0)
        a("s_cselect_b32 s%d, %d, 0" % (S_TMP, 64 * c.ldw))
        a("s_add_u32 s%d, s%d, s%d" % (S_WOFF, S_WOFF, S_TMP))
        a("s_add_u32 s91, s91, 1")
    issue_w(a, c, off)

def adv_buf(a, c):
    a("s_add_u32 s%d, s%d, 1" % (S_BUF, S_BUF))
    a("s_cmp_eq_u32 s%d, %d" % (S_BUF, c.NS))
    a("s_cselect_b32 s%d, s%d, s%d" % (S_DELTA, S_NEG, S_SS))
    a("s_cselect_b32 s%d, 0, s%d" % (S_BUF, S_BUF))
    a("s_add_u32 s%d, s%d, s%d" % (S_LDSX, S_LDSX, S_DELTA))
    a("s_add_u32 s%d, s%d, s%d" % (S_LDSW, S_LDSW, S_DELTA))

def loader_phase(R, c):
    a = R.a; n = c.name + "_ld"
    c.tmap(a, c)
    c.srds_loader(a, c)
    loader_setup(a, c)
    NS, NST = c.NS, c.NST
    x, w = nX(c), nW(c); nn = x + w
    order = []
    pre = 0
    if c.loader_pre: pre = c.loader_pre(a, c) or 0
    rot_begin(a, c)
    if c.flag:
        R.bar()
        for s in range(NS):
            IW(a, c, s * c.SS, k=s); order.append((s, w))
        R.bar()
        IX(a, c, 0, k=0); IX(a, c, c.SS, k=1); order += [(0, x), (1, x)]
        a("s_waitcnt vmcnt(%d)" % x)
        R.bar()
        for s in range(2, NS):
            IX(a, c, s * c.SS, k=s); order.append((s, x))
    else:
        IX(a, c, 0, k=0); IW(a, c, 0, k=0); IX(a, c, c.SS, k=1); IW(a, c, c.SS, k=1)
        order += [(0, nn), (1, nn)]
        a("s_waitcnt vmcnt(%d)" % nn)
        R.bar()
        for s in range(2, NS):
            if c.helper_stage == s:
                order.append((s, 0))
            else:
                IX(a, c, s * c.SS, k=s); IW(a, c, s * c.SS, k=s); order.append((s, nn))
    a("s_mov_b32 s%d, 0" % S_BUF)
    def allowed(need_stage):
        last = max(k for k, (s, _) in enumerate(order) if s == need_stage)
        return min(63, sum(cnt for (s, cnt) in order[last + 1:]))
    i = 0
    steady = (NS - 2) * nn
    while i < NST - NS and allowed(i + 1) != steady:
        a("s_waitcnt vmcnt(%d)" % allowed(i + 1)); R.bar()
        if c.jump_at is not None and i + NS == c.jump_at: c.jump(a, c)
        IX(a, c, k=i + NS); IW(a, c, k=i + NS); adv_buf(a, c); order.append((i + NS, nn))
        i += 1
    first = i
    nloop = NST - NS - first
    if nloop > 0:
        a("s_mov_b32 s%d, %d" % (S_CNT, first))
        a.label(n + "_loop")
        a("s_waitcnt vmcnt(%d)" % steady); R.bar(nloop)
        if c.jump_at is not None:
            a("s_cmp_lg_u32 s%d, %d" % (S_CNT, c.jump_at - NS))
            a("s_cbranch_scc1 %s_nj" % n)
            c.jump(a, c)
            a.label(n + "_nj")
        if c.rot and c.peel_at >= first + NS:
            a("s_cmp_lg_u32 s%d, %d" % (S_CNT, c.peel_at - NS))
            a("s_cbranch_scc1 %s_nat" % n)
            IX(a, c, k=c.peel_at); IW(a, c, k=c.peel_at)
            a("s_branch %s_adv" % n)
            a.label(n + "_nat")
            IX(a, c); IW(a, c)
            a.label(n + "_adv")
            adv_buf(a, c)
        else:
            IX(a, c); IW(a, c); adv_buf(a, c)
        a("s_add_u32 s%d, s%d, 1" % (S_CNT, S_CNT))
        a("s_cmp_lt_u32 s%d, %d" % (S_CNT, NST - NS))
        a("s_cbranch_scc1 %s_loop" % n)
        for k in range(first, NST - NS): order.append((k + NS, nn))
    if getattr(c, "tail_touch", None):
        nt = c.tail_touch(a, c)
        order.append((99, nt))
    for i in range(NST - NS, NST):
        if i + 1 < NST: a("s_waitcnt vmcnt(%d)" % allowed(i + 1))
        R.bar()

def reads(c, p, s):
    xs = []
    for t in range(4):
        if c.xmode == "row":
            xs.append("ds_read_b128 %s, v%d offset:%d" % (vr(c.XF[p][t], 4), c.VXA + s, t * 2048))
        else:
            xs.append("ds_read_b128 %s, v%d offset:%d" % (vr(c.XF[p][t], 4), c.VXA, (t >> 1) * 4096 + (t & 1) * 256 + s * 2048))
    ws = []
    for b in range(c.TNI):
        nb, g, areg = c.wtile(b)
        for e in range(2):
            if c.wmode == "pair":
                NP = c.NB // 2
                off = s * 4 * NP * 1024 + (nb >> 1) * 1024 + e * 512 + (nb & 1) * 256
            else:
                off = ((8 * s + e) * 7 + nb) * 256
            ws.append("ds_read_b64_tr_b16 %s, v%d offset:%d" % (vr(c.WF[p][b] + 2 * e, 2), areg, 16384 + off))
    return ws[:2] + xs + ws[2:]

def compute_addr(a, c):
    a("v_and_b32 v10, 15, v1")
    a("v_lshrrev_b32 v11, 4, v1")
    a("s_lshl_b32 s%d, s6, 13" % S_TMP)
    if c.LB: a("s_add_u32 s%d, s%d, %d" % (S_TMP, S_TMP, c.LB))
    if c.xmode == "row":
        a("v_bfe_u32 v12, v10, 1, 3")
        a("v_xor_b32 v12, v12, v11")
        a("v_lshlrev_b32 v13, 7, v10")
        a("v_add_u32 v13, s%d, v13" % S_TMP)
        for s in range(2):
            a("v_xor_b32 v14, %d, v12" % (4 * s))
            a("v_lshl_add_u32 v%d, v14, 4, v13" % (c.VXA + s))
    else:
        a("v_lshlrev_b32 v13, 9, v11")
        a("v_lshl_add_u32 v13, v10, 4, v13")
        a("v_add_u32 v%d, s%d, v13" % (c.VXA, S_TMP))
    a("v_bfe_u32 v12, v1, 2, 2")
    a("v_lshlrev_b32 v12, 6, v12")
    a("v_and_b32 v13, 3, v1")
    a("v_lshl_add_u32 v12, v13, 3, v12")
    qstride = (c.NB // 2) * 1024 if c.wmode == "pair" else 2 * 7 * 256
    a("v_mul_u32_u24 v13, %d, v11" % qstride)
    a("v_add_u32 v12, v12, v13")
    a("v_and_b32 v13, 1, v11")
    a("v_lshl_add_u32 v12, v13, 5, v12")
    if c.LB: a("v_add_u32 v12, %d, v12" % c.LB)
    if c.wmode == "pair":
        a("s_mul_i32 s%d, s7, %d" % (S_TMP, c.wwave_off))
        a("v_add_u32 v%d, s%d, v12" % (c.VWA, S_TMP))
        a("v_xor_b32 v%d, 32, v%d" % (c.VWA + 1, c.VWA))
    else:
        a("s_lshl_b32 s%d, s7, 5" % S_TMP)
        a("v_xor_b32 v12, s%d, v12" % S_TMP)
        a("v_xor_b32 v13, 32, v12")
        a("s_mul_i32 s%d, s7, 768" % S_TMP)
        a("v_add_u32 v%d, s%d, v12" % (c.VWA, S_TMP))
        a("s_lshl_b32 s%d, s7, 10" % S_TMP)
        a("v_add_u32 v%d, s%d, v13" % (c.VWA + 1, S_TMP))
    a("s_mov_b32 s%d, %d" % (S_SS, c.SS))
    a("s_mov_b32 s%d, 0x%x" % (S_NEG, (-(c.NS - 1) * c.SS) & 0xffffffff))

def zero_acc(a, c):
    for t in range(4):
        for b in range(c.TNI):
            for r in range(4): a("v_mov_b32 v%d, 0" % (c.ACC[t][b] + r))

def stage_body(R, c, extra=None, count_bar=1, drain=None):
    a = R.a
    nx = 2 if c.xmode == "row" else 1
    for s in range(2):
        p = s
        a("s_waitcnt lgkmcnt(0)")
        if s == 1:
            a("s_add_u32 s%d, s%d, 1" % (S_BUF, S_BUF))
            a("s_cmp_eq_u32 s%d, %d" % (S_BUF, c.NS))
            a("s_cselect_b32 s%d, s%d, s%d" % (S_DELTA, S_NEG, S_SS))
            a("s_cselect_b32 s%d, 0, s%d" % (S_BUF, S_BUF))
            for q in range(nx):
                a("v_add_u32 v%d, s%d, v%d" % (c.VXA + q, S_DELTA, c.VXA + q))
            a("v_add_u32 v%d, s%d, v%d" % (c.VWA, S_DELTA, c.VWA))
            a("v_add_u32 v%d, s%d, v%d" % (c.VWA + 1, S_DELTA, c.VWA + 1))
            if drain:
                a("s_cmp_lg_u32 s%d, %d" % (S_CNT, drain))
                a("s_cbranch_scc1 %s_nodrain" % c.name)
                a("s_waitcnt vmcnt(0)")
                a.label(c.name + "_nodrain")
            R.bar(count_bar)
        rd = reads(c, 1 - p, 1 - s)
        mf = []
        for b in range(c.TNI):
            for t in range(4):
                acc = c.ACC[t][b]
                if c.orient[b] == "T":
                    mf.append("%s %s, %s, %s, %s" % (MF16, vr(acc, 4), vr(c.WF[p][b], 4), vr(c.XF[p][t], 4), vr(acc, 4)))
                else:
                    mf.append("%s %s, %s, %s, %s" % (MF16, vr(acc, 4), vr(c.XF[p][t], 4), vr(c.WF[p][b], 4), vr(acc, 4)))
        if extra: mf += extra(c, p, s)
        ri = 0
        for m in mf:
            a(m)
            for _ in range(c.reads_per_gap):
                if ri < len(rd): a(rd[ri]); ri += 1
        while ri < len(rd): a(rd[ri]); ri += 1

def mainloop(R, c, niter_sgpr=None, nbar=None):
    a = R.a; n = c.name
    for r in reads(c, 0, 0): a(r)
    a("s_mov_b32 s%d, 0" % S_CNT)
    a("s_mov_b32 s%d, 0" % S_BUF)
    total = nbar if nbar is not None else c.NST
    peel = getattr(c, "extra0", None)
    if peel:
        if c.peel_at > 0:
            a.label(n + "_pre")
            stage_body(R, c, count_bar=c.peel_at); total -= c.peel_at
            a("s_add_u32 s%d, s%d, 1" % (S_CNT, S_CNT))
            a("s_cmp_lt_u32 s%d, %d" % (S_CNT, c.peel_at))
            a("s_cbranch_scc1 %s_pre" % n)
        stage_body(R, c, extra=peel, count_bar=1)
        c.after0(a, c)
        a("s_mov_b32 s%d, %d" % (S_CNT, c.peel_at + 1))
        total -= 1
    a.label(n + "_loop")
    stage_body(R, c, count_bar=total)
    a("s_add_u32 s%d, s%d, 1" % (S_CNT, S_CNT))
    if niter_sgpr is None: a("s_cmp_lt_u32 s%d, %d" % (S_CNT, c.NST))
    else: a("s_cmp_lt_u32 s%d, s%d" % (S_CNT, niter_sgpr))
    a("s_cbranch_scc1 %s_loop" % n)
    a("s_waitcnt lgkmcnt(0)")

def pack_pair(a, accA, accB, P):
    a("v_cvt_pk_bf16_f32 v%d, v%d, v%d" % (P, accA, accA + 1))
    a("v_cvt_pk_bf16_f32 v%d, v%d, v%d" % (P + 1, accA + 2, accA + 3))
    a("v_cvt_pk_bf16_f32 v%d, v%d, v%d" % (P + 2, accB, accB + 1))
    a("v_cvt_pk_bf16_f32 v%d, v%d, v%d" % (P + 3, accB + 2, accB + 3))
    a("v_permlane16_swap_b32 v%d, v%d" % (P, P + 2))
    a("v_permlane16_swap_b32 v%d, v%d" % (P + 1, P + 3))

def pack4(a, P, A, B):
    a("v_cvt_pk_bf16_f32 v%d, v%d, v%d" % (P, A, A + 1))
    a("v_cvt_pk_bf16_f32 v%d, v%d, v%d" % (P + 1, A + 2, A + 3))
    a("v_cvt_pk_bf16_f32 v%d, v%d, v%d" % (P + 2, B, B + 1))
    a("v_cvt_pk_bf16_f32 v%d, v%d, v%d" % (P + 3, B + 2, B + 3))

def xq(a, op, v, t):
    a("v_mov_b32 v%d, v%d" % (t, v))
    a("v_permlane16_swap_b32 v%d, v%d" % (v, t))
    a("%s v%d, v%d, v%d" % (op, v, v, t))
    a("v_mov_b32 v%d, v%d" % (t, v))
    a("v_permlane32_swap_b32 v%d, v%d" % (v, t))
    a("%s v%d, v%d, v%d" % (op, v, v, t))

def flag_write(a, off_sgpr_or_imm, grp, vtmp=20):
    a("v_mov_b32 v%d, s%d" % (vtmp, S_NONCE))
    a("v_mov_b32 v%d, s%d" % (vtmp + 1, S_NONCE + 1))
    a("v_mov_b32 v%d, %d" % (vtmp + 2, grp))
    a("s_mov_b64 exec, 1")
    a("buffer_store_dwordx2 %s, v%d, %s, s%d offen sc1" % (vr(vtmp, 2), vtmp + 2, S(SF), off_sgpr_or_imm))
    a("s_mov_b64 exec, -1")

_pollcnt = [0]
def flag_poll(a, off_sgpr, grp, nflags, vtmp=20):
    _pollcnt[0] += 1
    L = "poll%d" % _pollcnt[0]
    a("v_lshlrev_b32 v%d, 3, v1" % (vtmp + 2))
    a("v_add_u32 v%d, %d, v%d" % (vtmp + 2, grp, vtmp + 2))
    a("s_mov_b64 exec, 0x%x" % ((1 << nflags) - 1))
    a("s_mov_b32 s80, 0")
    a.label(L)
    a("buffer_load_dwordx2 %s, v%d, %s, s%d offen sc1" % (vr(vtmp, 2), vtmp + 2, S(SF), off_sgpr))
    a("s_waitcnt vmcnt(0)")
    a("v_cmp_ne_u32 vcc, s%d, v%d" % (S_NONCE, vtmp))
    a("v_cmp_ne_u32 s[78:79], s%d, v%d" % (S_NONCE + 1, vtmp + 1))
    a("s_or_b64 s[78:79], vcc, s[78:79]")
    a("s_cmp_eq_u64 s[78:79], 0")
    a("s_cbranch_scc1 %s_ok" % L)
    a("s_sleep 2")
    a("s_add_u32 s80, s80, 1")
    a("s_cmp_lt_u32 s80, 0x40000")
    a("s_cbranch_scc1 %s" % L)
    a.label(L + "_ok")
    a("s_mov_b64 exec, -1")


def flag_poll_v(a, voff, nflags, vtmp=20, split=None):
    _pollcnt[0] += 1
    L = "poll%d" % _pollcnt[0]
    a("s_mov_b64 exec, 0x%x" % ((1 << nflags) - 1))
    a("buffer_load_dwordx2 %s, v%d, %s, 0 offen sc1" % (vr(vtmp, 2), voff, S(SF)))
    if split: split()
    a("s_mov_b32 s80, 0")
    a.label(L)
    a("s_waitcnt vmcnt(0)")
    a("v_cmp_ne_u32 vcc, s%d, v%d" % (S_NONCE, vtmp))
    a("v_cmp_ne_u32 s[78:79], s%d, v%d" % (S_NONCE + 1, vtmp + 1))
    a("s_or_b64 s[78:79], vcc, s[78:79]")
    a("s_cmp_eq_u64 s[78:79], 0")
    a("s_cbranch_scc1 %s_ok" % L)
    a("buffer_load_dwordx2 %s, v%d, %s, 0 offen sc1" % (vr(vtmp, 2), voff, S(SF)))
    a("s_add_u32 s80, s80, 1")
    a("s_cmp_lt_u32 s80, 0x40000")
    a("s_cbranch_scc1 %s" % L)
    a.label(L + "_ok")
    a("s_mov_b64 exec, -1")


L_TOP = 163840 - 64
def publish_flag(a, k, off_code, grp):
    _pollcnt[0] += 1
    L = "pub%d" % _pollcnt[0]
    a("v_mov_b32 v8, %d" % (L_TOP + 16 + 4 * k))
    a("v_mov_b32 v9, 1")
    a("s_mov_b64 exec, 1")
    a("ds_add_rtn_u32 v9, v8, v9")
    a("s_waitcnt lgkmcnt(0)")
    a("v_readfirstlane_b32 s72, v9")
    a("s_mov_b64 exec, -1")
    a("s_cmp_lg_u32 s72, 3")
    a("s_cbranch_scc1 %s" % L)
    srd(a, SF, P_WS, WS_FLAG, FLAG_SZ)
    off_code(a)
    flag_write(a, 71, grp, vtmp=8)
    a.label(L)


def tag_check(a, regs, acc, name, reload_code):
    a("s_mov_b32 s80, 0")
    a.label(name + "_retry")
    a("s_waitcnt vmcnt(0)")
    a("v_min3_u32 v%d, v%d, v%d, v%d" % (acc, regs[0], regs[1], regs[2]))
    a("v_max3_u32 v%d, v%d, v%d, v%d" % (acc + 1, regs[0], regs[1], regs[2]))
    k = 3
    while k < len(regs):
        r2 = regs[k + 1] if k + 1 < len(regs) else regs[k]
        a("v_min3_u32 v%d, v%d, v%d, v%d" % (acc, acc, regs[k], r2))
        a("v_max3_u32 v%d, v%d, v%d, v%d" % (acc + 1, acc + 1, regs[k], r2))
        k += 2
    a("v_cmp_ne_u32 vcc, s%d, v%d" % (S_NONCE, acc))
    a("v_cmp_ne_u32 s[78:79], s%d, v%d" % (S_NONCE, acc + 1))
    a("s_or_b64 s[78:79], vcc, s[78:79]")
    a("s_cmp_eq_u64 s[78:79], 0")
    a("s_cbranch_scc1 %s_ok" % name)
    reload_code()
    a("s_add_u32 s80, s80, 1")
    a("s_cmp_lt_u32 s80, 0x20000")
    a("s_cbranch_scc1 %s_retry" % name)
    a.label(name + "_ok")
```

```python
from gen3 import *

def MF(a, d, x, y, c):
    a("%s %s, %s, %s, %s" % (MF16, vr(d, 4), vr(x, 4), vr(y, 4), vr(c, 4) if c is not None else "0"))

def softmax16(a, P, E, T, outP, outN):
    mx, mn, t0, t1, sp, sn = T, T+1, T+2, T+3, T+4, T+5
    a("v_max3_f32 v%d, v%d, v%d, v%d" % (mx, P, P+1, P+2))
    a("v_min3_f32 v%d, v%d, v%d, v%d" % (mn, P, P+1, P+2))
    for r in (3, 5):
        a("v_max3_f32 v%d, v%d, v%d, v%d" % (mx, mx, P+r, P+r+1))
        a("v_min3_f32 v%d, v%d, v%d, v%d" % (mn, mn, P+r, P+r+1))
    a("v_max_f32 v%d, v%d, v%d" % (mx, mx, P+7))
    a("v_min_f32 v%d, v%d, v%d" % (mn, mn, P+7))
    for sw in ("v_permlane16_swap_b32", "v_permlane32_swap_b32"):
        a("v_mov_b32 v%d, v%d" % (t0, mx))
        a("v_mov_b32 v%d, v%d" % (t1, mn))
        a("%s v%d, v%d" % (sw, mx, t0))
        a("%s v%d, v%d" % (sw, mn, t1))
        a("v_max_f32 v%d, v%d, v%d" % (mx, mx, t0))
        a("v_min_f32 v%d, v%d, v%d" % (mn, mn, t1))
    a("v_mul_f32 v%d, s%d, v%d" % (mx, S_L2E, mx))
    a("v_mul_f32 v%d, s%d, v%d" % (mn, S_L2E, mn))
    for r in range(8):
        a("v_fma_f32 v%d, v%d, s%d, -v%d" % (E+r, P+r, S_L2E, mx))
        a("v_fma_f32 v%d, -v%d, s%d, v%d" % (P+r, P+r, S_L2E, mn))
    for r in range(8):
        a("v_exp_f32 v%d, v%d" % (E+r, E+r))
        a("v_exp_f32 v%d, v%d" % (P+r, P+r))
    a("v_add_f32 v%d, v%d, v%d" % (sp, E, E+1))
    a("v_add_f32 v%d, v%d, v%d" % (sn, P, P+1))
    for r in range(2, 8):
        a("v_add_f32 v%d, v%d, v%d" % (sp, sp, E+r))
        a("v_add_f32 v%d, v%d, v%d" % (sn, sn, P+r))
    for sw in ("v_permlane16_swap_b32", "v_permlane32_swap_b32"):
        a("v_mov_b32 v%d, v%d" % (t0, sp))
        a("v_mov_b32 v%d, v%d" % (t1, sn))
        a("%s v%d, v%d" % (sw, sp, t0))
        a("%s v%d, v%d" % (sw, sn, t1))
        a("v_add_f32 v%d, v%d, v%d" % (sp, sp, t0))
        a("v_add_f32 v%d, v%d, v%d" % (sn, sn, t1))
    a("v_rcp_f32 v%d, v%d" % (sp, sp))
    a("v_rcp_f32 v%d, v%d" % (sn, sn))
    for r in range(8):
        a("v_mul_f32 v%d, v%d, v%d" % (E+r, E+r, sp))
        a("v_mul_f32 v%d, v%d, v%d" % (P+r, P+r, sn))
    pack4(a, outP, E, E + 4)
    pack4(a, outN, P, P + 4)

def base_cfg(name):
    c = Cfg(); c.name = name
    c.koff = None; c.loader_pre = None; c.jump_at = None; c.jump = None; c.LB = 0; c.rot = None; c.peel_at = 0; c.helper_stage = None
    c.VXA = 2; c.VWA = 6; c.reads_per_gap = 1
    return c

L1_WPHI = 122880; L1_KVF = 126976; L1_ZF = 135168
L1_ST = 135424; L1_CS = 136448; L1_CSA = 137216; L_NONCE = L_TOP
def p1_cfg():
    c = base_cfg("p1"); c.NB = 6; c.TNI = 6
    c.xmode = "row"; c.wmode = "pair"; c.NST = 16; c.NS = 3; c.flag = False
    c.ldx = 2048; c.ldw = 6144; c.strip = [0, 2048, 4096]; c.ntile_bytes = 128
    c.SS = 16384 + 6 * 4096
    c.orient = ["T", "T", "T", "T", "N", "N"]
    c.tmap = lambda a, c: tile_map(a, 8, 4)
    c.wwave_off = 256
    c.wtile = lambda b: (2 * (b >> 1), b & 1, c.VWA + (b & 1))
    c.ACC = [[16 + (t * 6 + b) * 4 for b in range(6)] for t in range(4)]
    c.XF = [[112 + p * 16 + t * 4 for t in range(4)] for p in range(2)]
    c.WF = [[144 + p * 24 + b * 4 for b in range(6)] for p in range(2)]
    def srds_loader(a, c):
        srd(a, SX, P_X, 0, SZ_ACT)
        srd(a, SW, P_WQKV, 0, 1024*3072*2)
        srd(a, SA, P_WPHI, 0, 32*2048)
    c.srds_loader = srds_loader
    def loader_pre(a, c):
        a("v_lshlrev_b32 v20, 4, v1")
        a("s_lshl_b32 s70, s5, 12")
        a("s_lshl_b32 s71, s7, 11")
        a("s_add_u32 s70, s70, s71")
        a("s_add_u32 m0, s71, %d" % L1_WPHI)
        a("s_nop 0")
        a("buffer_load_dwordx4 v20, %s, s70 offen lds" % S(SA))
        a("buffer_load_dwordx4 v20, %s, s70 offen offset:1024 lds" % S(SA))
        return 2
    c.loader_pre = loader_pre
    def rot(a, c):
        a("s_add_u32 s86, s4, s5")
        a("s_and_b32 s86, s86, 15")
    c.rot = rot; c.peel_at = G.p1peel; c.helper_stage = None
    if G.touch_mode == 1:
        c.tail_touch = lambda a, c: touches(a, [(P_WO, 1024*1024*2), (P_W1, 1024*3584*2)], 200, SR=SB)
    if G.touch_mode == 2:
        c.tail_touch = lambda a, c: touches(a, [(P_WO, 1024*1024*2), (P_W1, 1024*3584*2), (P_W2, 3584*1024*2)], 200, SR=SB)
    ONES, CS, RS, RQ = 192, 196, 220, 236
    def extra0(c, p, s):
        out = []
        for b in range(6):
            d = CS + 4*b
            out.append("%s %s, %s, %s, %s" % (MF16, vr(d, 4), vr(c.WF[p][b], 4), vr(ONES, 4), vr(d, 4) if s else "0"))
        for t in range(4):
            d = RS + 4*t
            out.append("%s %s, %s, %s, %s" % (MF16, vr(d, 4), vr(ONES, 4), vr(c.XF[p][t], 4), vr(d, 4) if s else "0"))
            d = RQ + 4*t
            out.append("%s %s, %s, %s, %s" % (MF16, vr(d, 4), vr(c.XF[p][t], 4), vr(c.XF[p][t], 4), vr(d, 4) if s else "0"))
        return out
    c.extra0 = extra0
    def pre_loop(a, c):
        for r in range(4): a("v_mov_b32 v%d, 0x3f803f80" % (ONES + r))
    c.pre_loop = pre_loop
    def after0(a, c):
        a("v_lshrrev_b32 v11, 4, v1")
        a("v_and_b32 v10, 15, v1")
        a("s_cmp_lg_u32 s6, 0")
        a("s_cbranch_scc1 p1a0_nocs")
        a("s_lshl_b32 s70, s7, 7")
        a("s_add_u32 s70, s70, %d" % L1_CSA)
        a("v_lshlrev_b32 v8, 4, v11")
        a("v_add_u32 v8, s70, v8")
        a("s_mov_b32 exec_lo, 0x00010001")
        a("s_mov_b32 exec_hi, 0x00010001")
        for b in range(6):
            a("ds_write_b128 v8, %s offset:%d" % (vr(CS + 4*b, 4), (b >> 1) * 256 + (b & 1) * 64))
        a("s_mov_b64 exec, -1")
        a.label("p1a0_nocs")
        a("s_cmp_lg_u32 s7, 0")
        a("s_cbranch_scc1 p1a0_nors")
        a("v_and_b32 v8, 3, v10")
        a("v_cmp_eq_u32 s[72:73], 1, v8")
        a("v_cmp_eq_u32 s[74:75], 2, v8")
        a("v_cmp_eq_u32 s[76:77], 3, v8")
        a("s_lshl_b32 s70, s6, 9")
        a("s_add_u32 s70, s70, %d" % L1_ST)
        a("v_lshlrev_b32 v9, 3, v10")
        a("v_add_u32 v9, s70, v9")
        for t in range(4):
            d = RQ + 4*t
            a("v_cndmask_b32 v%d, v%d, v%d, s[72:73]" % (RS + 4*t + 1, d, d + 1))
            a("v_cndmask_b32 v%d, v%d, v%d, s[74:75]" % (RS + 4*t + 1, RS + 4*t + 1, d + 2))
            a("v_cndmask_b32 v%d, v%d, v%d, s[76:77]" % (RS + 4*t + 1, RS + 4*t + 1, d + 3))
        a("s_mov_b32 exec_lo, 0x00f0000f")
        a("s_mov_b32 exec_hi, 0xf0000f00")
        for t in range(4):
            a("ds_write_b64 v9, %s offset:%d" % (vr(RS + 4*t, 2), t * 128))
        a("s_mov_b64 exec, -1")
        a.label("p1a0_nors")
    c.after0 = after0
    return c

L3_XT = 139264
def p3_cfg():
    c = base_cfg("p3"); c.NB = 2; c.TNI = 2
    c.xmode = "blk"; c.wmode = "pair"; c.KX = 1024; c.NST = 16; c.NS = 5; c.flag = True
    c.ldw = 2048; c.strip = [0]; c.ntile_bytes = 128
    c.SS = 16384 + 2 * 4096
    c.orient = ["T"] * 2
    c.tmap = lambda a, c: tile_map(a, 4, 8)
    c.wwave_off = 256
    c.wtile = lambda b: (0, b & 1, c.VWA + (b & 1))
    c.ACC = [[16 + (t * 2 + b) * 4 for b in range(2)] for t in range(4)]
    c.XF = [[48 + p * 16 + t * 4 for t in range(4)] for p in range(2)]
    c.WF = [[80 + p * 8 + b * 4 for b in range(2)] for p in range(2)]
    c.reads_per_gap = 2
    def srds_loader(a, c):
        srd(a, SX, P_WS, WS_O, SZ_ACT)
        srd(a, SW, P_WO, 0, 1024*1024*2)
        srd(a, SA, P_X, 0, SZ_ACT)
    c.srds_loader = srds_loader
    def loader_pre(a, c):
        a("v_lshrrev_b32 v10, 3, v1")
        a("v_lshlrev_b32 v10, 11, v10")
        a("v_and_b32 v11, 7, v1")
        a("v_lshrrev_b32 v12, 4, v1")
        a("v_xor_b32 v13, v11, v12")
        a("v_lshl_add_u32 v20, v13, 4, v10")
        a("v_xor_b32 v13, 4, v13")
        a("v_lshl_add_u32 v21, v13, 4, v10")
        a("s_lshl_b32 s70, s4, 7")
        a("s_lshl_b32 s71, s7, 6")
        a("s_add_u32 s70, s70, s71")
        a("s_lshl_b32 s70, s70, 11")
        a("s_lshl_b32 s71, s5, 7")
        a("s_add_u32 s70, s70, s71")
        a("s_lshl_b32 s71, s7, 13")
        a("s_add_u32 s71, s71, %d" % L3_XT)
        for j in range(8):
            a("s_add_u32 m0, s71, %d" % (j * 1024))
            a("s_add_u32 s%d, s70, %d" % (S_TMP, j * 8 * 2048))
            a("buffer_load_dwordx4 v%d, %s, s%d offen lds" % (20 + (j & 1), S(SA), S_TMP))
        return 8
    c.loader_pre = loader_pre
    if G.touch_mode == 1:
        c.tail_touch = lambda a, c: touches(a, [(P_W2, 3584*1024*2)], 200, SR=SB)
    return c

L4_TAB = 135168
def p4_cfg():
    c = base_cfg("p4"); c.NB = 7; c.TNI = 7
    c.xmode = "blk"; c.wmode = "lin7"; c.KX = 1024; c.NST = 16; c.NS = 3; c.flag = True
    c.ldw = 7168; c.ntile_bytes = 448
    c.SS = 16384 + 7 * 4096
    c.orient = ["T"] * 7
    c.tmap = lambda a, c: tile_map(a, 8, 4)
    c.wtile = lambda b: (b >> 1, b & 1, c.VWA + (b & 1))
    c.ACC = [[16 + (t * 7 + b) * 4 for b in range(7)] for t in range(4)]
    c.XF = [[128 + p * 16 + t * 4 for t in range(4)] for p in range(2)]
    c.WF = [[160 + p * 28 + b * 4 for b in range(7)] for p in range(2)]
    def srds_loader(a, c):
        srd(a, SX, P_WS, WS_H, SZ_ACT)
        srd(a, SW, P_W1, 0, 1024*3584*2)
    c.srds_loader = srds_loader
    def rot(a, c): a("s_mov_b32 s86, s4")
    c.rot = None if G.x_norot4 else rot
    ONES, CS = 244, 216
    def extra0(c, p, s):
        return ["%s %s, %s, %s, %s" % (MF16, vr(CS + 4*b, 4), vr(c.WF[p][b], 4), vr(ONES, 4), vr(CS + 4*b, 4) if s else "0") for b in range(7)]
    c.extra0 = extra0
    def pre_loop(a, c):
        for r in range(4): a("v_mov_b32 v%d, 0x3f803f80" % (ONES + r))
    c.pre_loop = pre_loop
    def after0(a, c):
        a("s_cmp_lg_u32 s6, 0")
        a("s_cbranch_scc1 p4a0_nocs")
        a("s_mul_i32 s70, s7, 448")
        a("s_add_u32 s70, s70, %d" % (L4_TAB + 3072))
        a("v_lshrrev_b32 v8, 4, v1")
        a("v_lshlrev_b32 v8, 4, v8")
        a("v_add_u32 v8, s70, v8")
        a("s_mov_b32 exec_lo, 0x00010001")
        a("s_mov_b32 exec_hi, 0x00010001")
        for b in range(7):
            a("ds_write_b128 v8, %s offset:%d" % (vr(CS + 4*b, 4), b * 64))
        a("s_mov_b64 exec, -1")
        a.label("p4a0_nocs")
    c.after0 = after0
    return c

KSEND, KKEEP = 24, 32
def p5_tmap(a, c):
    a("s_and_b32 s82, s30, 1")
    a("s_lshr_b32 s4, s30, 1")
    a("s_lshl_b32 s4, s4, 2")
    a("s_and_b32 s%d, s31, 3" % S_TMP)
    a("s_add_u32 s4, s4, s%d" % S_TMP)
    a("s_lshr_b32 s5, s31, 2")
def p5_cfg():
    c = base_cfg("p5"); c.NB = 4; c.TNI = 4
    c.xmode = "blk"; c.wmode = "pair"; c.KX = 3584; c.NST = KKEEP; c.NS = 4; c.flag = True
    c.ldw = 2048; c.strip = [0, 128]; c.ntile_bytes = 256
    c.SS = 16384 + 4 * 4096
    c.orient = ["T"] * 4
    c.tmap = p5_tmap
    c.wwave_off = 1024
    c.wtile = lambda b: (b >> 1, b & 1, c.VWA + (b & 1))
    c.ACC = [[16 + (t * 4 + b) * 4 for b in range(4)] for t in range(4)]
    c.XF = [[80 + p * 16 + t * 4 for t in range(4)] for p in range(2)]
    c.WF = [[112 + p * 16 + b * 4 for b in range(4)] for p in range(2)]
    def srds_loader(a, c):
        srd(a, SX, P_WS, WS_F, SZ_F)
        srd(a, SW, P_W2, 0, 3584*1024*2)
    c.srds_loader = srds_loader
    def koff(a, c):
        a("s_mul_i32 s%d, s82, %d" % (S_TMP, KKEEP * 4096))
        a("s_add_u32 s%d, s%d, s%d" % (S_XOFF, S_XOFF, S_TMP))
        a("s_mul_i32 s%d, s82, %d" % (S_TMP, KKEEP * 64 * 2048))
        a("s_add_u32 s%d, s%d, s%d" % (S_WOFF, S_WOFF, S_TMP))
    c.koff = koff
    c.jump_at = KSEND
    def jump(a, c):
        a("s_mul_i32 s%d, s82, %d" % (S_TMP, KKEEP * 4096))
        a("s_sub_u32 s%d, s%d, s%d" % (S_XOFF, S_XOFF, S_TMP))
        a("s_mul_i32 s%d, s82, %d" % (S_TMP, KKEEP * 64 * 2048))
        a("s_sub_u32 s%d, s%d, s%d" % (S_WOFF, S_WOFF, S_TMP))
    c.jump = jump
    return c

def kv_gather(a, do_z):
    srd(a, SA, P_WS, WS_KVP, 16*16*8192)
    a("v_lshlrev_b32 v8, 4, v1")
    a("s_lshl_b32 s70, s5, 17")
    a("s_lshl_b32 s71, s3, 10")
    a("s_add_u32 s70, s70, s71")
    L = 32
    for m in range(16):
        a("buffer_load_dwordx4 %s, v8, %s, s70 offen sc1" % (vr(L + 4*m, 4), S(SA)))
        if m < 15: a("s_add_u32 s70, s70, 8192")
    if do_z:
        srd(a, SB, P_WS, WS_ZP, 16*16*512)
        a("v_lshlrev_b32 v9, 2, v1")
        a("s_lshl_b32 s72, s5, 13")
        a("s_sub_u32 s73, s3, 6")
        a("s_lshl_b32 s73, s73, 8")
        a("s_add_u32 s72, s72, s73")
        for m in range(16):
            a("buffer_load_dword v%d, v9, %s, s72 offen sc1" % (96 + m, S(SB)))
            if m < 15: a("s_add_u32 s72, s72, 512")
    a("s_mov_b32 s74, 0x00003f80")
    a("s_mov_b32 s75, 0x3f800000")
    A = 16
    for r in range(8): a("v_mov_b32 v%d, 0" % (A + r))
    a("v_mov_b32 v24, s74")
    a("v_mov_b32 v25, s75")
    a("s_waitcnt vmcnt(%d)" % (16 if do_z else 0))
    for m in range(16):
        for d in range(4):
            a("v_dot2c_f32_bf16 v%d, v%d, v24" % (A + 2*d, L + 4*m + d))
            a("v_dot2c_f32_bf16 v%d, v%d, v25" % (A + 2*d + 1, L + 4*m + d))
    for d in range(4): a("v_cvt_pk_bf16_f32 v%d, v%d, v%d" % (28 + d, A + 2*d, A + 2*d + 1))
    a("s_lshl_b32 s71, s3, 10")
    a("s_add_u32 s71, s71, %d" % L1_KVF)
    a("v_add_u32 v8, s71, v8")
    a("ds_write_b128 v8, v[28:31]")
    if do_z:
        a("s_waitcnt vmcnt(0)")
        for m in range(1, 16): a("v_add_f32 v96, v96, v%d" % (96 + m))
        a("v_cvt_pk_bf16_f32 v96, v96, v96")
        a("v_lshlrev_b32 v9, 1, v1")
        a("s_sub_u32 s73, s3, 6")
        a("s_lshl_b32 s73, s73, 7")
        a("s_add_u32 s73, s73, %d" % L1_ZF)
        a("v_add_u32 v9, s73, v9")
        a("ds_write_b16 v9, v96")
    a("s_waitcnt lgkmcnt(0)")

def off_mn(a):
    a("s_lshl_b32 s70, s4, 7")
    a("s_lshl_b32 s71, s5, 3")
    a("s_add_u32 s71, s71, s70")
def off_nm(a):
    a("s_lshl_b32 s70, s5, 7")
    a("s_lshl_b32 s71, s4, 3")
    a("s_add_u32 s71, s71, s70")

def compute_role(a):
    R = Role(a)
    a("s_lshr_b32 s6, s3, 1")
    a("s_and_b32 s7, s3, 1")
    if G.st_touch:
        a("s_lshl_b32 s76, s2, 2")
        a("s_add_u32 s76, s76, s3")
        start_touch(a, 76, 1)
    c = p1_cfg()
    c.tmap(a, c)
    compute_addr(a, c)
    zero_acc(a, c)
    c.pre_loop(a, c)
    R.bar()
    stamp(a, 1); cstamp(a, 32)
    mainloop(R, c)
    stamp(a, 2); cstamp(a, 33)
    p1_epilogue(R, c)
    if G.stop_after <= 1: return R
    c = p3_cfg()
    c.tmap(a, c)
    compute_addr(a, c)
    zero_acc(a, c)
    R.bar()
    R.bar()
    stamp(a, 6); cstamp(a, 34)
    mainloop(R, c)
    stamp(a, 7); cstamp(a, 35)
    p3_epilogue(a, c)
    if G.stop_after > 3: R.bar()
    a("s_waitcnt vmcnt(0)")
    publish_flag(a, 2, off_mn, FL_C)
    stamp(a, 8)
    if G.stop_after <= 3: return R
    c = p4_cfg()
    c.tmap(a, c)
    compute_addr(a, c)
    zero_acc(a, c)
    c.pre_loop(a, c)
    R.bar(); R.bar()
    stamp(a, 9); cstamp(a, 36)
    mainloop(R, c)
    stamp(a, 10); cstamp(a, 37)
    p4_epilogue(a, c)
    if G.stop_after > 4: R.bar()
    a("s_waitcnt vmcnt(0)")
    publish_flag(a, 3, off_mn, FL_D)
    stamp(a, 11)
    if G.stop_after <= 4: return R
    c = p5_cfg()
    c.tmap(a, c)
    compute_addr(a, c)
    zero_acc(a, c)
    R.bar()
    p5_pre(a, c)
    R.bar()
    stamp(a, 12); cstamp(a, 38)
    a("s_cmp_eq_u32 s6, s82")
    a("s_cselect_b32 s81, %d, %d" % (KKEEP, KSEND))
    mainloop(R, c, niter_sgpr=81, nbar=KKEEP)
    stamp(a, 13); cstamp(a, 39)
    p5_epilogue(a, c)
    return R

def p1_epilogue(R, c):
    a = R.a
    a("v_mov_b32 v14, %d" % L_NONCE)
    a("ds_read_b64 v[8:9], v14")
    a("s_waitcnt lgkmcnt(0)")
    a("v_readfirstlane_b32 s%d, v8" % S_NONCE)
    a("v_readfirstlane_b32 s%d, v9" % (S_NONCE + 1))
    a("s_mov_b32 s%d, 0x%x" % (S_L2E, LOG2E))
    srd(a, SA, P_WS, WS_KVP, 16*16*8192)
    srd(a, SB, P_WS, WS_ZP, 16*16*512)
    srd(a, SC, P_WS, WS_O, SZ_ACT)
    a("v_and_b32 v10, 15, v1")
    a("v_lshrrev_b32 v11, 4, v1")
    a("v_bfe_u32 v12, v1, 2, 2")
    a("v_and_b32 v13, 3, v1")
    WP = 112
    a("v_lshlrev_b32 v14, 8, v11")
    a("v_lshl_add_u32 v14, v12, 6, v14")
    a("v_lshl_add_u32 v14, v13, 3, v14")
    a("s_lshl_b32 s70, s7, 11")
    a("s_add_u32 s70, s70, %d" % L1_WPHI)
    a("v_add_u32 v14, s70, v14")
    for b in range(2):
        for e in range(2):
            a("ds_read_b64_tr_b16 %s, v14 offset:%d" % (vr(WP + 4*b + 2*e, 2), e * 1024 + b * 32))
    LS = 192
    a("s_lshl_b32 s70, s6, 9")
    a("s_add_u32 s70, s70, %d" % L1_ST)
    a("v_lshlrev_b32 v14, 3, v10")
    a("v_add_u32 v14, s70, v14")
    for t in range(4): a("ds_read_b64 %s, v14 offset:%d" % (vr(LS + 2*t, 2), t * 128))
    a("v_lshlrev_b32 v14, 5, v11")
    a("v_add_u32 v14, s70, v14")
    for t in range(4):
        for hh in range(2): a("ds_read_b128 %s, v14 offset:%d" % (vr(200 + 8*t + 4*hh, 4), t * 128 + hh * 16))
    a("s_lshl_b32 s70, s7, 7")
    a("s_add_u32 s70, s70, %d" % L1_CS)
    a("v_lshlrev_b32 v14, 4, v11")
    a("v_add_u32 v14, s70, v14")
    for b in range(4): a("ds_read_b128 %s, v14 offset:%d" % (vr(232 + 4*b, 4), (b >> 1) * 256 + (b & 1) * 64))
    a("v_lshlrev_b32 v14, 2, v10")
    a("v_add_u32 v14, s70, v14")
    for nt in range(2): a("ds_read_b32 v%d, v14 offset:%d" % (248 + nt, 512 + nt * 64))
    a("s_waitcnt lgkmcnt(0)")
    for t in range(4):
        for b in range(4):
            acc = c.ACC[t][b]
            for r in range(4): a("v_mul_f32 v%d, v%d, v%d" % (250 + (r & 3), LS + 2*t + 1, 232 + 4*b + r))
            for r in range(4): a("v_fma_f32 v%d, v%d, v%d, v%d" % (acc + r, acc + r, LS + 2*t, 250 + (r & 3)))
        for nt in range(2):
            acc = c.ACC[t][4 + nt]
            for r in range(4): a("v_mul_f32 v%d, v%d, v%d" % (250 + r, 200 + 8*t + 2*r + 1, 248 + nt))
            for r in range(4): a("v_fma_f32 v%d, v%d, v%d, v%d" % (acc + r, acc + r, 200 + 8*t + 2*r, 250 + r))
    QF = 120; KF = 136; VF = 152
    for t in range(4):
        pack4(a, QF + 4*t, c.ACC[t][0], c.ACC[t][1])
        pack4(a, KF + 4*t, c.ACC[t][2], c.ACC[t][3])
    for u in range(2):
        for nt in range(2):
            pack4(a, VF + (u*2 + nt)*4, c.ACC[2*u][4 + nt], c.ACC[2*u + 1][4 + nt])
    WA = 8; RA = 4
    a("s_lshl_b32 s70, s3, 13")
    a("v_bfe_u32 v14, v10, 1, 2")
    a("v_bfe_u32 v15, v10, 2, 1")
    a("v_lshl_or_b32 v14, v15, 2, v14")
    a("v_xor_b32 v14, v14, v11")
    a("v_lshlrev_b32 v15, 6, v10")
    a("v_lshl_add_u32 v15, v14, 3, v15")
    a("v_add_u32 v%d, s70, v15" % WA)
    a("v_xor_b32 v%d, 32, v%d" % (WA + 1, WA))
    a("v_lshl_add_u32 v14, v11, 2, v12")
    a("v_bfe_u32 v15, v14, 1, 2")
    a("v_bfe_u32 v2, v14, 2, 1")
    a("v_lshl_or_b32 v15, v2, 2, v15")
    a("v_xor_b32 v15, v15, v13")
    a("v_lshlrev_b32 v14, 6, v14")
    a("v_lshl_add_u32 v14, v15, 3, v14")
    a("v_add_u32 v%d, s70, v14" % RA)
    a("v_xor_b32 v%d, 32, v%d" % (RA + 1, RA))
    ONES = 168
    for r in range(4): a("v_mov_b32 v%d, 0x3f803f80" % (ONES + r))
    a("s_waitcnt lgkmcnt(0)")
    PK = 16; E = 24; T = 32; PP = 40; PN = 44
    for t in range(4):
        o = (t & 1) * 32
        MF(a, PK + o, WP, KF + 4*t, None)
        MF(a, PK + o + 4, WP + 4, KF + 4*t, None)
        softmax16(a, PK + o, E + o, T + o, PP + o, PN + o)
        for sg, PX in enumerate((PP + o, PN + o)):
            for b in range(2):
                a("ds_write_b64 v%d, %s offset:%d" % (WA + b, vr(PX + 2*b, 2), sg * 4096 + t * 1024))
    KV = 172
    Z = 204
    PH = 80
    k = 0
    for u in range(2):
        for sg in range(2):
            for b in range(2):
                ph = PH + 4 * (k & 1); k += 1
                for e in range(2):
                    a("ds_read_b64_tr_b16 %s, v%d offset:%d" % (vr(ph + 2*e, 2), RA + b, sg * 4096 + u * 2048 + e * 1024))
                a("s_waitcnt lgkmcnt(0)")
                for nt in range(2):
                    d = KV + ((sg*2 + b)*2 + nt)*4
                    MF(a, d, ph, VF + (u*2 + nt)*4, None if u == 0 else d)
                d = Z + (sg*2 + b)*4
                MF(a, d, ph, ONES, None if u == 0 else d)
    a("v_lshlrev_b32 v12, 4, v1")
    a("s_lshl_b32 s70, s3, 13")
    a("s_add_u32 s70, s70, 32768")
    a("v_add_u32 v13, s70, v12")
    a("s_xor_b32 s71, s3, 2")
    a("s_lshl_b32 s71, s71, 13")
    a("s_add_u32 s71, s71, 32768")
    a("v_add_u32 v14, s71, v12")
    a("s_cmp_eq_u32 s6, 0")
    a("s_cbranch_scc1 p1e_i0")
    nb0 = R.nb
    for keep, lab in ((1, None), (0, "p1e_i0")):
        if lab: a.label(lab)
        send = 1 - keep
        for q in range(4):
            a("ds_write_b128 v13, %s offset:%d" % (vr(KV + send*16 + 4*q, 4), q * 1024))
        for q in range(2):
            a("ds_write_b128 v13, %s offset:%d" % (vr(Z + send*8 + 4*q, 4), 4096 + q * 1024))
        a("s_waitcnt lgkmcnt(0)")
        R.nb = nb0
        R.bar()
        X = 48
        for q in range(4):
            a("ds_read_b128 %s, v14 offset:%d" % (vr(X + 4*q, 4), q * 1024))
        for q in range(2):
            a("ds_read_b128 %s, v14 offset:%d" % (vr(X + 16 + 4*q, 4), 4096 + q * 1024))
        a("s_waitcnt lgkmcnt(0)")
        for r in range(16): a("v_add_f32 v%d, v%d, v%d" % (KV + keep*16 + r, KV + keep*16 + r, X + r))
        for r in range(8): a("v_add_f32 v%d, v%d, v%d" % (Z + keep*8 + r, Z + keep*8 + r, X + 16 + r))
        a("s_lshl_b32 s70, s5, 4")
        a("s_add_u32 s70, s70, s4")
        a("s_lshl_b32 s72, s70, 9")
        a("s_lshl_b32 s70, s70, 3")
        a("s_lshl_b32 s71, s7, 2")
        a("s_add_u32 s70, s70, s71")
        a("s_add_u32 s70, s70, %d" % (keep * 2))
        a("s_lshl_b32 s70, s70, 10")
        for nt in range(2):
            pack4(a, X + 4*nt, KV + (keep*4 + 0 + nt)*4, KV + (keep*4 + 2 + nt)*4)
            a("buffer_store_dwordx4 %s, v12, %s, s70 offen offset:%d sc1" % (vr(X + 4*nt, 4), S(SA), nt * 1024))
        a("s_lshl_b32 s71, s7, 8")
        a("s_add_u32 s72, s72, s71")
        a("s_add_u32 s72, s72, %d" % (keep * 128))
        a("v_lshlrev_b32 v15, 5, v11")
        a("s_mov_b32 exec_lo, 0x00010001")
        a("s_mov_b32 exec_hi, 0x00010001")
        for b in range(2):
            a("buffer_store_dwordx4 %s, v15, %s, s72 offen offset:%d sc1" % (vr(Z + keep*8 + 4*b, 4), S(SB), b * 16))
        a("s_mov_b64 exec, -1")
        if keep == 1: a("s_branch p1e_done")
    a.label("p1e_done")
    PHQ = 220
    for t in range(4):
        o = (t & 1) * 32
        MF(a, PK + o, WP, QF + 4*t, None)
        MF(a, PK + o + 4, WP + 4, QF + 4*t, None)
        softmax16(a, PK + o, E + o, T + o, PHQ + t*8, PHQ + t*8 + 4)
        if t == 1:
            a("s_waitcnt vmcnt(0)")
            publish_flag(a, 0, off_nm, FL_A)
            stamp(a, 3)
    R.bar()
    stamp(a, 4)
    kv_gather(a, False)
    R.bar()
    a("v_lshrrev_b32 v11, 4, v1")
    a("v_lshlrev_b32 v12, 4, v1")
    a("s_lshl_b32 s70, s7, 12")
    a("s_add_u32 s70, s70, %d" % L1_KVF)
    a("v_add_u32 v13, s70, v12")
    KF2 = 112; ZF2 = 128
    for k in range(4): a("ds_read_b128 %s, v13 offset:%d" % (vr(KF2 + 4*k, 4), k * 1024))
    a("s_lshl_b32 s70, s7, 7")
    a("s_add_u32 s70, s70, %d" % L1_ZF)
    a("v_lshlrev_b32 v14, 4, v11")
    a("v_add_u32 v14, s70, v14")
    for sg in range(2): a("ds_read_b128 %s, v14 offset:%d" % (vr(ZF2 + 4*sg, 4), sg * 64))
    a("s_lshl_b32 s70, s4, 2")
    a("s_lshl_b32 s71, s6, 1")
    a("s_add_u32 s70, s70, s71")
    a("s_lshl_b32 s70, s70, 7")
    a("s_lshl_b32 s71, s5, 3")
    a("s_add_u32 s70, s70, s71")
    a("s_lshl_b32 s71, s7, 2")
    a("s_add_u32 s70, s70, s71")
    a("s_lshl_b32 s70, s70, 9")
    a("s_waitcnt lgkmcnt(0)")
    O = 16
    for t in range(4):
        for nt in range(2):
            d = O + (t*2 + nt)*4
            MF(a, d, KF2 + (0*2 + nt)*4, PHQ + t*8, None)
            MF(a, d, KF2 + (1*2 + nt)*4, PHQ + t*8 + 4, d)
        d = 48 + 4*t
        MF(a, d, ZF2, PHQ + t*8, None)
        MF(a, d, ZF2 + 4, PHQ + t*8 + 4, d)
    for t in range(4):
        a("v_add_f32 v%d, 0x358637bd, v%d" % (64 + t, 48 + 4*t))
    for t in range(4):
        a("v_rcp_f32 v%d, v%d" % (64 + t, 64 + t))
    for t in range(4):
        for r in range(8): a("v_mul_f32 v%d, v%d, v%d" % (O + t*8 + r, O + t*8 + r, 64 + t))
    for u in range(2):
        for nt in range(2):
            P = 72 + (u*2 + nt)*4
            pack_pair(a, O + (2*u*2 + nt)*4, O + ((2*u + 1)*2 + nt)*4, P)
            a("buffer_store_dwordx4 %s, v12, %s, s70 offen offset:%d sc1" % (vr(P, 4), S(SC), nt * 1024))
        if u == 0: a("s_add_u32 s70, s70, %d" % (128 * 512))
    if G.stop_after > 1: R.bar()
    a("s_waitcnt vmcnt(0)")
    publish_flag(a, 1, off_mn, FL_B)
    stamp(a, 5)

def p3_epilogue(a, c):
    srd(a, SA, P_WS, WS_H, SZ_ACT)
    srd(a, SB, P_WS, WS_HSTP, 32*2048*8)
    a("v_and_b32 v10, 15, v1")
    a("v_lshrrev_b32 v11, 4, v1")
    a("v_bfe_u32 v12, v10, 1, 3")
    a("v_lshrrev_b32 v13, 1, v11")
    a("s_lshl_b32 s70, s7, 2")
    a("v_add_u32 v13, s70, v13")
    a("v_xor_b32 v12, v12, v13")
    a("s_lshl_b32 s70, s6, 13")
    a("s_add_u32 s70, s70, %d" % L3_XT)
    a("v_lshlrev_b32 v13, 7, v10")
    a("v_and_b32 v14, 1, v11")
    a("v_lshl_add_u32 v13, v14, 3, v13")
    a("v_add_u32 v13, s70, v13")
    a("v_lshl_add_u32 v96, v12, 4, v13")
    a("v_xor_b32 v12, 2, v12")
    a("v_lshl_add_u32 v97, v12, 4, v13")
    XR = 100
    for t in range(4):
        for b in range(2):
            a("ds_read_b64 %s, v%d offset:%d" % (vr(XR + (t*2 + b)*2, 2), 96 + b, t * 2048))
    a("v_lshlrev_b32 v15, 4, v1")
    a("s_lshl_b32 s70, s4, 2")
    a("s_lshl_b32 s71, s6, 1")
    a("s_add_u32 s70, s70, s71")
    a("s_mov_b32 s72, s70")
    a("s_lshl_b32 s70, s70, 7")
    a("s_lshl_b32 s71, s5, 3")
    a("s_add_u32 s70, s70, s71")
    a("s_lshl_b32 s71, s7, 2")
    a("s_add_u32 s70, s70, s71")
    a("s_lshl_b32 s70, s70, 9")
    a("s_lshl_b32 s71, s5, 1")
    a("s_add_u32 s71, s71, s7")
    a("s_lshl_b32 s71, s71, 11")
    a("s_lshl_b32 s73, s72, 5")
    a("s_add_u32 s71, s71, s73")
    a("s_lshl_b32 s71, s71, 3")
    a("v_lshlrev_b32 v9, 3, v10")
    a("v_and_b32 v14, 1, v11")
    a("v_lshl_add_u32 v9, v14, 2, v9")
    a("v_lshrrev_b32 v14, 1, v11")
    a("v_lshl_add_u32 v9, v14, 7, v9")
    a("v_and_b32 v14, 1, v11")
    a("v_cmp_eq_u32 s[74:75], 0, v14")
    a("v_cmp_gt_u32 s[76:77], 2, v11")
    a("s_waitcnt lgkmcnt(0)")
    St = 120; P = 128
    for u in range(2):
        for tt in range(2):
            t = 2*u + tt
            for b in range(2):
                acc = c.ACC[t][b]
                for d in range(2):
                    x = XR + (t*2 + b)*2 + d
                    a("v_lshlrev_b32 v124, 16, v%d" % x)
                    a("v_and_b32 v125, 0xffff0000, v%d" % x)
                    a("v_add_f32 v%d, v%d, v124" % (acc + 2*d, acc + 2*d))
                    a("v_add_f32 v%d, v%d, v125" % (acc + 2*d + 1, acc + 2*d + 1))
            s1 = St + 2*tt; s2 = s1 + 1
            A0 = c.ACC[t][0]
            a("v_add_f32 v%d, v%d, v%d" % (s1, A0, A0 + 1))
            a("v_mul_f32 v%d, v%d, v%d" % (s2, A0, A0))
            a("v_fmac_f32 v%d, v%d, v%d" % (s2, A0 + 1, A0 + 1))
            for r in range(2, 8):
                a("v_add_f32 v%d, v%d, v%d" % (s1, s1, A0 + r))
                a("v_fmac_f32 v%d, v%d, v%d" % (s2, A0 + r, A0 + r))
            xq(a, "v_add_f32", s1, 124)
            xq(a, "v_add_f32", s2, 125)
        a("v_cndmask_b32 v124, v%d, v%d, s[74:75]" % (St + 1, St))
        a("v_cndmask_b32 v125, v%d, v%d, s[74:75]" % (St + 3, St + 2))
        a("v_cndmask_b32 v124, v125, v124, s[76:77]")
        a("buffer_store_dword v124, v9, %s, s71 offen sc1" % S(SB))
        for b in range(2):
            pack_pair(a, c.ACC[2*u][b], c.ACC[2*u + 1][b], P + 4*b)
            a("buffer_store_dwordx4 %s, v15, %s, s70 offen offset:%d sc1" % (vr(P + 4*b, 4), S(SA), b * 1024))
        if u == 0:
            a("s_add_u32 s70, s70, %d" % (128 * 512))
            a("s_add_u32 s71, s71, %d" % (32 * 8))

def p4_epilogue(a, c):
    srd(a, SA, P_WS, WS_F, SZ_F)
    a("v_and_b32 v10, 15, v1")
    a("v_lshrrev_b32 v11, 4, v1")
    a("s_mul_i32 s70, s7, 448")
    a("s_add_u32 s70, s70, %d" % L4_TAB)
    a("v_lshlrev_b32 v12, 4, v11")
    a("v_add_u32 v12, s70, v12")
    a("s_lshl_b32 s70, s6, 9")
    a("s_add_u32 s70, s70, %d" % (L4_TAB + 2048))
    a("v_lshlrev_b32 v13, 3, v10")
    a("v_add_u32 v13, s70, v13")
    ST = 128
    for t in range(4):
        a("ds_read_b64 %s, v13 offset:%d" % (vr(ST + 2*t, 2), t * 128))
    a("v_lshlrev_b32 v15, 4, v1")
    a("s_lshl_b32 s70, s4, 2")
    a("s_lshl_b32 s71, s6, 1")
    a("s_add_u32 s70, s70, s71")
    a("s_mul_i32 s70, s70, 448")
    a("s_mul_i32 s71, s5, 28")
    a("s_add_u32 s70, s70, s71")
    a("s_mul_i32 s71, s7, 14")
    a("s_add_u32 s70, s70, s71")
    a("s_lshl_b32 s70, s70, 9")
    a("s_add_u32 s71, s70, %d" % (448 * 512))
    TB = 136
    for b in range(7):
        a("ds_read_b128 %s, v12 offset:%d" % (vr(TB + 8*b, 4), 64 * b))
        a("ds_read_b128 %s, v12 offset:%d" % (vr(TB + 8*b + 4, 4), 1024 + 64 * b))
    a("v_add_u32 v14, 4096, v15")
    a("s_waitcnt lgkmcnt(0)")
    T = 192; P = 208
    for b in range(7):
        cs = TB + 8*b; b1 = cs + 4
        for t in range(4):
            acc = c.ACC[t][b]; tmp = T + 4*t
            for r in range(4):
                a("v_fma_f32 v%d, v%d, v%d, v%d" % (tmp + r, ST + 2*t + 1, cs + r, b1 + r))
            for r in range(4):
                a("v_fma_f32 v%d, v%d, v%d, v%d" % (acc + r, ST + 2*t, acc + r, tmp + r))
        for t in range(4):
            acc = c.ACC[t][b]
            for r in range(4): a("v_max_f32 v%d, 0, v%d" % (acc + r, acc + r))
            for r in range(4): a("v_mul_f32 v%d, v%d, v%d" % (acc + r, acc + r, acc + r))
        for u in range(2):
            pk = P + 4*u + 8*(b & 1)
            pack_pair(a, c.ACC[2*u][b], c.ACC[2*u + 1][b], pk)
            off = b * 1024
            so = "s70" if u == 0 else "s71"
            if off < 4096:
                a("buffer_store_dwordx4 %s, v15, %s, %s offen offset:%d sc1" % (vr(pk, 4), S(SA), so, off))
            else:
                a("buffer_store_dwordx4 %s, v14, %s, %s offen offset:%d sc1" % (vr(pk, 4), S(SA), so, off - 4096))

HR5 = 144; BR5 = 176
def p5_pre(a, c):
    srd(a, SA, P_WS, WS_H, SZ_ACT)
    srd(a, SB, P_B2, 0, 2048)
    a("v_and_b32 v10, 15, v1")
    a("v_lshrrev_b32 v11, 4, v1")
    a("v_lshlrev_b32 v12, 4, v10")
    a("v_lshrrev_b32 v13, 1, v11")
    a("v_lshl_add_u32 v12, v13, 9, v12")
    a("v_and_b32 v13, 1, v11")
    a("v_lshl_add_u32 v12, v13, 3, v12")
    a("s_lshl_b32 s70, s4, 2")
    a("s_lshl_b32 s71, s6, 1")
    a("s_add_u32 s70, s70, s71")
    a("s_lshl_b32 s70, s70, 7")
    a("s_lshl_b32 s71, s5, 4")
    a("s_add_u32 s70, s70, s71")
    a("s_lshl_b32 s71, s7, 3")
    a("s_add_u32 s70, s70, s71")
    a("s_lshl_b32 s70, s70, 9")
    a("s_cmp_eq_u32 s6, s82")
    a("s_cbranch_scc0 p5pre_skip")
    for t in range(4):
        for b in range(4):
            a("buffer_load_dwordx2 %s, v12, %s, s70 offen offset:%d sc1" % (vr(HR5 + (t*4 + b)*2, 2), S(SA), b * 1024 + (t & 1) * 256))
        if t == 1: a("s_add_u32 s70, s70, %d" % (128 * 512))
    a("v_lshlrev_b32 v13, 3, v11")
    a("s_lshl_b32 s70, s5, 8")
    a("s_lshl_b32 s71, s7, 7")
    a("s_add_u32 s70, s70, s71")
    for b in range(4):
        a("buffer_load_dwordx2 %s, v13, %s, s70 offen offset:%d" % (vr(BR5 + 2*b, 2), S(SB), b * 32))
    a.label("p5pre_skip")

def p5_epilogue(a, c):
    srd(a, SC, P_WS, WS_PX, 128*2*2*16384)
    srd(a, SD, P_OUT, 0, SZ_ACT)
    srd(a, SF, P_WS, WS_FLAG, FLAG_SZ)
    a("s_lshl_b32 s72, s4, 3")
    a("s_add_u32 s72, s72, s5")
    a("v_lshlrev_b32 v15, 4, v1")
    a("s_cmp_eq_u32 s6, s82")
    a("s_cbranch_scc1 p5_keep")
    a("s_lshl_b32 s73, s72, 2")
    a("s_lshl_b32 s74, s82, 1")
    a("s_add_u32 s73, s73, s74")
    a("s_add_u32 s73, s73, s7")
    a("s_lshl_b32 s74, s73, 14")
    for q in range(16):
        if q and q % 4 == 0: a("s_add_u32 s74, s74, 4096")
        a("buffer_store_dwordx4 %s, v15, %s, s74 offen offset:%d sc1" % (vr(16 + 4*q, 4), S(SC), (q % 4) * 1024))
    for k in range(KSEND, KKEEP):
        a("s_barrier")
        if k == KSEND + 3:
            a("s_waitcnt vmcnt(0)")
            a("s_lshl_b32 s74, s73, 3")
            flag_write(a, 74, FL_X)
    a("s_endpgm")
    a.label("p5_keep")
    a("s_lshl_b32 s73, s72, 2")
    a("s_xor_b32 s74, s82, 1")
    a("s_lshl_b32 s74, s74, 1")
    a("s_add_u32 s73, s73, s74")
    a("s_add_u32 s73, s73, s7")
    a("s_lshl_b32 s74, s73, 3")
    flag_poll(a, 74, FL_X, 1, vtmp=8)
    a("s_lshl_b32 s74, s73, 14")
    PR = 80
    for q in range(16):
        if q and q % 4 == 0: a("s_add_u32 s74, s74, 4096")
        a("buffer_load_dwordx4 %s, v15, %s, s74 offen offset:%d sc1" % (vr(PR + 4*q, 4), S(SC), (q % 4) * 1024))
    a("v_and_b32 v10, 15, v1")
    a("v_lshrrev_b32 v11, 4, v1")
    a("v_and_b32 v13, 1, v11")
    a("v_lshl_add_u32 v12, v13, 4, v10")
    a("v_lshlrev_b32 v12, 11, v12")
    a("v_lshrrev_b32 v13, 1, v11")
    a("v_lshl_add_u32 v12, v13, 4, v12")
    a("s_lshl_b32 s70, s4, 7")
    a("s_lshl_b32 s71, s6, 6")
    a("s_add_u32 s70, s70, s71")
    a("s_lshl_b32 s70, s70, 11")
    a("s_lshl_b32 s71, s5, 8")
    a("s_add_u32 s70, s70, s71")
    a("s_lshl_b32 s71, s7, 7")
    a("s_add_u32 s70, s70, s71")
    BF = 184
    a("s_waitcnt vmcnt(16)")
    for b in range(4):
        for d in range(2):
            a("v_lshlrev_b32 v%d, 16, v%d" % (BF + 4*b + 2*d, BR5 + 2*b + d))
            a("v_and_b32 v%d, 0xffff0000, v%d" % (BF + 4*b + 2*d + 1, BR5 + 2*b + d))
    for t in range(4):
        for b in range(4):
            acc = c.ACC[t][b]
            for d in range(2):
                x = HR5 + (t*4 + b)*2 + d
                a("v_lshlrev_b32 v8, 16, v%d" % x)
                a("v_and_b32 v9, 0xffff0000, v%d" % x)
                a("v_add_f32 v%d, v%d, v%d" % (acc + 2*d, acc + 2*d, BF + 4*b + 2*d))
                a("v_add_f32 v%d, v%d, v%d" % (acc + 2*d + 1, acc + 2*d + 1, BF + 4*b + 2*d + 1))
                a("v_add_f32 v%d, v%d, v8" % (acc + 2*d, acc + 2*d))
                a("v_add_f32 v%d, v%d, v9" % (acc + 2*d + 1, acc + 2*d + 1))
    a("s_waitcnt vmcnt(0)")
    for r in range(64): a("v_add_f32 v%d, v%d, v%d" % (16 + r, 16 + r, PR + r))
    P = 200
    for u in range(2):
        for b in range(4):
            pk = P + 4 * (b & 1) + 8 * u
            pack_pair(a, c.ACC[2*u][b], c.ACC[2*u + 1][b], pk)
            a("buffer_store_dwordx4 %s, v12, %s, s70 offen offset:%d" % (vr(pk, 4), S(SD), b * 32))
        if u == 0: a("s_add_u32 s70, s70, %d" % (32 * 2048))
    stamp(a, 14)

def loader_role(a):
    R = Role(a)
    a("s_sub_u32 s7, s3, 4")
    c = p1_cfg()
    loader_phase(R, c)
    R.bar()
    R.bar()
    kv_gather(a, False)
    R.bar()
    if G.stop_after <= 1: return R
    a("s_sub_u32 s7, s3, 4")
    loader_phase(R, p3_cfg())
    if G.stop_after <= 3: return R
    loader_phase(R, p4_cfg())
    if G.stop_after <= 4: return R
    loader_phase(R, p5_cfg())
    return R

def bar_loop(R, n, name):
    a = R.a
    a("s_mov_b32 s%d, 0" % S_CNT)
    a.label(name)
    R.bar(n)
    a("s_add_u32 s%d, s%d, 1" % (S_CNT, S_CNT))
    a("s_cmp_lt_u32 s%d, %d" % (S_CNT, n))
    a("s_cbranch_scc1 %s" % name)


def touches(a, items, vbase, SR=SX):
    a("s_lshl_b32 s70, s2, 1")
    a("s_add_u32 s70, s70, s7")
    a("s_lshl_b32 s70, s70, 13")
    a("v_lshlrev_b32 v16, 7, v1")
    k = 0
    for (p, nbytes) in items:
        srd(a, SR, p, 0, nbytes)
        n = (nbytes // 8192 + 511) // 512
        a("s_mov_b32 s71, s70")
        for i in range(n):
            a("buffer_load_dword v%d, v16, %s, s71 offen" % (vbase + k, S(SR))); k += 1
            if i < n - 1: a("s_add_u32 s71, s71, %d" % (512 * 8192))
    return k

def code_prefetch(a, vtmp):
    a("s_getpc_b64 s[72:73]")
    a.label("kp_pc")
    a("s_sub_u32 s72, s72, kp_pc-kp_kernel")
    a("s_subb_u32 s73, s73, 0")
    a("v_lshlrev_b32 v%d, 7, v1" % vtmp)
    a("s_mov_b32 s74, (kp_codeend-kp_kernel+8191)/8192")
    a("s_mov_b32 s75, kp_codeend-kp_kernel")
    a.label("kp_cpf")
    a("v_cmp_gt_u32 vcc, s75, v%d" % vtmp)
    a("s_and_saveexec_b64 s[76:77], vcc")
    a("s_cbranch_execz kp_cpf_skip")
    a("global_load_dword v%d, v%d, s[72:73]" % (vtmp + 1, vtmp))
    a.label("kp_cpf_skip")
    a("s_mov_b64 exec, s[76:77]")
    a("v_add_u32 v%d, 8192, v%d" % (vtmp, vtmp))
    a("s_sub_u32 s74, s74, 1")
    a("s_cmp_lg_u32 s74, 0")
    a("s_cbranch_scc1 kp_cpf")

def start_touch(a, wid_sgpr, batch):
    a("v_lshlrev_b32 v16, 7, v1")
    if batch == 1:
        a("s_cmp_lt_u32 s%d, 512" % wid_sgpr)
        a("s_cbranch_scc0 st_w_%d" % wid_sgpr)
        srd(a, SX, P_X, 0, SZ_ACT)
        a("s_lshl_b32 s71, s%d, 13" % wid_sgpr)
        a("s_branch st_d_%d" % wid_sgpr)
        a.label("st_w_%d" % wid_sgpr)
        srd(a, SX, P_WQKV, 0, 288 * 8192)
        a("s_sub_u32 s71, s%d, 512" % wid_sgpr)
        a("s_lshl_b32 s71, s71, 13")
        a.label("st_d_%d" % wid_sgpr)
    else:
        srd(a, SX, P_WQKV, 0, 1024*3072*2)
        a("s_add_u32 s71, s%d, 288" % wid_sgpr)
        a("s_lshl_b32 s71, s71, 13")
    a("buffer_load_dword v254, v16, %s, s71 offen" % S(SX))

def helper_p1(R):
    a = R.a
    if G.hstage:
        c = p1_cfg()
        c.srds_loader(a, c)
        loader_setup(a, c)
        rot_begin(a, c)
        IX(a, c, 2 * c.SS, k=2); IW(a, c, 2 * c.SS, k=2)
    if G.st_touch:
        a("s_lshl_b32 s75, s2, 1")
        a("s_add_u32 s75, s75, s7")
        a("s_sleep %d" % G.t2sleep)
        start_touch(a, 75, 2)
    if G.tlb_warm:
        srd(a, SX, P_WS, 0, 0x3000000)
        a("v_lshlrev_b32 v16, 21, v1")
        a("v_add_u32 v16, 0x1fff80, v16")
        a("buffer_load_dword v253, v16, %s, 0 offen" % S(SX))
        srd(a, SX, P_OUT, 0, SZ_ACT)
        a("v_lshlrev_b32 v16, 20, v1")
        a("buffer_load_dword v252, v16, %s, 0 offen" % S(SX))
    if G.code_pf:
        a("s_cmp_lg_u32 s7, 1")
        a("s_cbranch_scc1 h_nocpf")
        code_prefetch(a, 30)
        a.label("h_nocpf")
    srd(a, SX, P_DBG, 0, 256)
    a("s_or_b32 s70, s2, s7")
    a("s_cmp_lg_u32 s70, 0")
    a("s_cbranch_scc1 h_nononce")
    a("s_memrealtime s[70:71]")
    a("s_waitcnt lgkmcnt(0)")
    a("s_or_b32 s70, s70, 1")
    a("s_xor_b32 s71, s71, 0x5bd1e995")
    a("v_mov_b32 v20, s70")
    a("v_mov_b32 v21, s71")
    a("v_mov_b32 v22, 0")
    a("s_mov_b64 exec, 1")
    a("buffer_store_dwordx2 v[20:21], v22, %s, 0 offen sc1" % S(SX))
    a("s_mov_b64 exec, -1")
    a.label("h_nononce")
    a("v_mov_b32 v22, 0")
    R.bar()
    a("buffer_load_dwordx2 v[20:21], v22, %s, 0 offen sc1" % S(SX))
    R.bar(); R.bar()
    a("s_mov_b32 s80, 0")
    a.label("h_npoll")
    a("s_waitcnt vmcnt(0)")
    a("v_readfirstlane_b32 s%d, v20" % S_NONCE)
    a("v_readfirstlane_b32 s%d, v21" % (S_NONCE + 1))
    a("s_cmp_lg_u32 s%d, 0" % S_NONCE)
    a("s_cbranch_scc1 h_nok")
    a("buffer_load_dwordx2 v[20:21], v22, %s, 0 offen sc1" % S(SX))
    a("s_add_u32 s80, s80, 1")
    a("s_cmp_lt_u32 s80, 0x40000")
    a("s_cbranch_scc1 h_npoll")
    a.label("h_nok")
    a("v_mov_b32 v22, %d" % L_NONCE)
    a("ds_write_b64 v22, v[20:21]")
    a("s_waitcnt lgkmcnt(0)")
    P = G.p1peel
    for _ in range(P): R.bar()
    a("s_cmp_lg_u32 s7, 0")
    a("s_cbranch_scc1 h1_path")
    nb0 = R.nb; tk0 = R.tk
    srd(a, SC, P_WS, WS_RSP, 16*2048*16)
    a("v_lshlrev_b32 v18, 4, v1")
    a("v_add_u32 v19, %d, v18" % L1_ST)
    a("ds_read_b128 v[24:27], v19")
    a("v_lshlrev_b32 v17, 5, v1")
    a("s_lshl_b32 s70, s5, 11")
    a("s_lshl_b32 s71, s4, 7")
    a("s_add_u32 s70, s70, s71")
    a("s_lshl_b32 s70, s70, 4")
    a("s_waitcnt lgkmcnt(0)")
    a("v_mov_b32 v28, v24\nv_mov_b32 v29, v25\nv_mov_b32 v30, s%d\nv_mov_b32 v31, s%d" % (S_NONCE, S_NONCE))
    a("v_mov_b32 v24, v26\nv_mov_b32 v25, v27\nv_mov_b32 v26, s%d\nv_mov_b32 v27, s%d" % (S_NONCE, S_NONCE))
    a("buffer_store_dwordx4 v[28:31], v17, %s, s70 offen sc1" % S(SC))
    a("buffer_store_dwordx4 v[24:27], v17, %s, s70 offen offset:16 sc1" % S(SC))
    LD = min(P + 5, 11)
    for _ in range(LD - 1 - (P + 1)): R.bar()
    def rs_loads(first=0, last=16):
        for k in range(first, last):
            a("s_lshl_b32 s70, s4, 11")
            a("s_add_u32 s70, s70, %d" % (k * 2048 * 16))
            a("buffer_load_dwordx4 %s, v17, %s, s70 offen sc1" % (vr(32 + 8*k, 4), S(SC)))
            a("buffer_load_dwordx4 %s, v17, %s, s70 offen offset:16 sc1" % (vr(36 + 8*k, 4), S(SC)))
    rs_loads(0, 16)
    for _ in range(13 - (LD - 1)): R.bar()
    tag_check(a, [32 + 4*k + 2 for k in range(32)], 160, "rs", rs_loads)
    for k in range(1, 16):
        a("v_pk_add_f32 v[32:33], v[32:33], %s" % vr(32 + 8*k, 2))
        a("v_pk_add_f32 v[36:37], v[36:37], %s" % vr(36 + 8*k, 2))
    R.bar()
    for e in (32, 36):
        a("v_mul_f32 v%d, 0x3a800000, v%d" % (e, e))
        a("v_mul_f32 v%d, 0x3a800000, v%d" % (e + 1, e + 1))
        a("v_fma_f32 v%d, -v%d, v%d, v%d" % (e + 1, e, e, e + 1))
        a("v_max_f32 v%d, 0, v%d" % (e + 1, e + 1))
        a("v_add_f32 v%d, 0x3727c5ac, v%d" % (e + 1, e + 1))
    a("v_rsq_f32 v40, v33")
    a("v_rsq_f32 v42, v37")
    a("v_mul_f32 v41, v32, v40")
    a("v_mul_f32 v43, v36, v42")
    a("v_sub_f32 v41, 0, v41")
    a("v_sub_f32 v43, 0, v43")
    a("ds_write_b128 v19, v[40:43]")
    a("s_waitcnt lgkmcnt(0)")
    R.bar()
    a("s_branch h_p1done")
    a.label("h1_path")
    R.nb = nb0; R.tk = tk0
    srd(a, SD, P_WS, WS_CSQ, 16*16*1024)
    a("v_mul_u32_u24 v19, 12, v1")
    a("v_add_u32 v19, %d, v19" % L1_CSA)
    for e in range(3): a("ds_read_b32 v%d, v19 offset:%d" % (24 + e, 4 * e))
    a("v_mov_b32 v27, s%d" % S_NONCE)
    a("v_lshlrev_b32 v18, 4, v1")
    a("s_lshl_b32 s70, s4, 4")
    a("s_add_u32 s70, s70, s5")
    a("s_lshl_b32 s70, s70, 10")
    a("s_waitcnt lgkmcnt(0)")
    a("buffer_store_dwordx4 v[24:27], v18, %s, s70 offen sc1" % S(SD))
    for _ in range(LD - 1 - (P + 1)): R.bar()
    def cs_loads():
        for mm in range(16):
            a("s_lshl_b32 s70, s5, 10")
            a("s_add_u32 s70, s70, %d" % (mm * 16 * 1024))
            a("buffer_load_dwordx4 %s, v18, %s, s70 offen sc1" % (vr(32 + 4*mm, 4), S(SD)))
    cs_loads()
    for _ in range(13 - (LD - 1)): R.bar()
    tag_check(a, [32 + 4*k + 3 for k in range(16)], 160, "cs", cs_loads)
    for k in range(1, 16):
        a("v_pk_add_f32 v[32:33], v[32:33], %s" % vr(32 + 4*k, 2))
        a("v_add_f32 v34, v34, v%d" % (32 + 4*k + 2))
    a("v_mul_u32_u24 v19, 12, v1")
    a("v_add_u32 v19, %d, v19" % L1_CS)
    for e in range(3): a("ds_write_b32 v19, v%d offset:%d" % (32 + e, 4 * e))
    a("s_waitcnt lgkmcnt(0)")
    R.bar(); R.bar()
    a.label("h_p1done")
    if G.touch_mode == 0:
        touches(a, [(P_WO, 1024*1024*2), (P_W1, 1024*3584*2), (P_W2, 3584*1024*2)], 200)

def helper_role(a):
    R = Role(a)
    a("s_sub_u32 s7, s3, 6")
    if G.hprio: a("s_setprio 3")
    srd(a, SF, P_WS, WS_FLAG, FLAG_SZ)
    a("v_mov_b32 v20, 0")
    a("v_lshlrev_b32 v21, 2, v1")
    a("v_add_u32 v21, %d, v21" % (L_TOP + 16))
    a("s_mov_b64 exec, 0xff")
    a("ds_write_b32 v21, v20")
    a("s_mov_b64 exec, -1")
    a("s_waitcnt lgkmcnt(0)")
    c = p1_cfg(); c.tmap(a, c)
    R.trace = True
    helper_p1(R)
    R.trace = False
    if G.prof:
        srd(a, SX, P_WS, WS_PROF + 0x10000, 0x40000)
        a("s_lshl_b32 s70, s2, 1")
        a("s_add_u32 s70, s70, s7")
        a("s_lshl_b32 s70, s70, 8")
        a("v_lshlrev_b32 v2, 2, v1")
        a("buffer_store_dword v255, v2, %s, s70 offen" % S(SX))
    R.bar()
    def poll_if_h0(name, pre, grp):
        a("s_cmp_lg_u32 s7, 0")
        a("s_cbranch_scc1 %s" % name)
        pre(a)
        flag_poll(a, 70, grp, 16)
        a.label(name)
    poll_if_h0("h_a_skip", lambda a: a("s_lshl_b32 s70, s5, 7"), FL_A)
    R.bar()
    kv_gather(a, True)
    R.bar()
    if G.stop_after <= 1: return R
    c3 = p3_cfg(); c3.tmap(a, c3)
    R.bar()
    poll_if_h0("h_b_skip", lambda a: a("s_lshl_b32 s70, s4, 7"), FL_B)
    R.bar()
    bar_loop(R, 17, "h3_loop")
    if G.stop_after <= 3: return R
    c4 = p4_cfg(); c4.tmap(a, c4)
    R.bar()
    poll_if_h0("h_c_skip", lambda a: a("s_lshl_b32 s70, s4, 7"), FL_C)
    R.bar()
    if G.x_noh4: bar_loop(R, 17, "h4x_loop")
    else: p4_tables(R)
    if G.stop_after <= 4: return R
    c5 = p5_cfg(); c5.tmap(a, c5)
    R.bar()
    poll_if_h0("h_d_skip", lambda a: a("s_lshl_b32 s70, s4, 7"), FL_D)
    R.bar()
    R.nb += 1 + KKEEP
    return R

def p4_tables(R):
    a = R.a
    srd(a, SA, P_WS, WS_HSTP, 32*2048*8)
    srd(a, SB, P_WS, WS_CS2, 16*16*2*1024)
    srd(a, SC, P_B1, 0, 3584*2)
    a("v_lshlrev_b32 v16, 3, v1")
    a("s_lshl_b32 s70, s4, 7")
    a("s_lshl_b32 s71, s7, 6")
    a("s_add_u32 s70, s70, s71")
    a("s_lshl_b32 s70, s70, 3")
    L = 32
    for p in range(32):
        a("buffer_load_dwordx2 %s, v16, %s, s70 offen sc1" % (vr(L + 2*p, 2), S(SA)))
        if p < 31: a("s_add_u32 s70, s70, %d" % (2048 * 8))
        if p == 15: R.bar()
    a("v_lshlrev_b32 v17, 2, v1")
    a("s_mul_i32 s72, s5, 448")
    a("s_mul_i32 s73, s7, 224")
    a("s_add_u32 s72, s72, s73")
    a("buffer_load_dword v100, v17, %s, s72 offen" % S(SC))
    R.bar(); R.bar()
    a("v_mul_u32_u24 v19, 12, v1")
    a("s_mul_i32 s70, s7, 448")
    a("s_add_u32 s70, s70, %d" % (L4_TAB + 3072))
    a("v_add_u32 v19, s70, v19")
    for e in range(3): a("ds_read_b32 v%d, v19 offset:%d" % (24 + e, 4 * e))
    a("v_mov_b32 v27, s%d" % S_NONCE)
    a("v_lshlrev_b32 v18, 4, v1")
    a("s_lshl_b32 s70, s4, 4")
    a("s_add_u32 s70, s70, s5")
    a("s_lshl_b32 s70, s70, 1")
    a("s_add_u32 s70, s70, s7")
    a("s_lshl_b32 s70, s70, 10")
    a("s_waitcnt lgkmcnt(0)")
    a("buffer_store_dwordx4 v[24:27], v18, %s, s70 offen sc1" % S(SB))
    R.bar(); R.bar(); R.bar()
    a("s_waitcnt vmcnt(1)")
    for p in range(1, 32): a("v_pk_add_f32 v[32:33], v[32:33], %s" % vr(L + 2*p, 2))
    R.bar()
    a("v_mul_f32 v%d, 0x3a800000, v%d" % (L, L))
    a("v_mul_f32 v%d, 0x3a800000, v%d" % (L + 1, L + 1))
    a("v_fma_f32 v%d, -v%d, v%d, v%d" % (L + 1, L, L, L + 1))
    a("v_max_f32 v%d, 0, v%d" % (L + 1, L + 1))
    a("v_add_f32 v%d, 0x3727c5ac, v%d" % (L + 1, L + 1))
    a("v_rsq_f32 v%d, v%d" % (L + 2, L + 1))
    a("v_mul_f32 v%d, v%d, v%d" % (L + 3, L, L + 2))
    a("v_sub_f32 v%d, 0, v%d" % (L + 3, L + 3))
    a("s_lshl_b32 s70, s7, 9")
    a("s_add_u32 s70, s70, %d" % (L4_TAB + 2048))
    a("v_add_u32 v20, s70, v16")
    a("ds_write_b64 v20, %s" % vr(L + 2, 2))
    a("v_lshlrev_b32 v102, 16, v100")
    a("v_and_b32 v103, 0xffff0000, v100")
    a("s_mul_i32 s70, s7, 448")
    a("s_add_u32 s70, s70, %d" % (L4_TAB + 1024))
    a("v_add_u32 v20, s70, v16")
    a("s_mov_b32 exec_lo, -1")
    a("s_mov_b32 exec_hi, 0x00ffffff")
    a("ds_write_b64 v20, v[102:103]")
    a("s_mov_b64 exec, -1")
    R.bar(); R.bar()
    def cs_loads():
        for mm in range(16):
            a("s_lshl_b32 s70, s5, 1")
            a("s_add_u32 s70, s70, s7")
            a("s_lshl_b32 s70, s70, 10")
            a("s_add_u32 s70, s70, %d" % (mm * 16 * 2 * 1024))
            a("buffer_load_dwordx4 %s, v18, %s, s70 offen sc1" % (vr(32 + 4*mm, 4), S(SB)))
    cs_loads()
    for _ in range(4): R.bar()
    tag_check(a, [32 + 4*k + 3 for k in range(16)], 160, "cs4", cs_loads)
    for k in range(1, 16):
        a("v_pk_add_f32 v[32:33], v[32:33], %s" % vr(32 + 4*k, 2))
        a("v_add_f32 v34, v34, v%d" % (32 + 4*k + 2))
    a("v_mul_u32_u24 v19, 12, v1")
    a("s_mul_i32 s70, s7, 448")
    a("s_add_u32 s70, s70, %d" % L4_TAB)
    a("v_add_u32 v19, s70, v19")
    a("s_mov_b32 exec_lo, -1")
    a("s_mov_b32 exec_hi, 0x1f")
    for e in range(3): a("ds_write_b32 v19, v%d offset:%d" % (32 + e, 4 * e))
    a("s_mov_b32 exec_lo, 0")
    a("s_mov_b32 exec_hi, 0x20")
    a("ds_write_b32 v19, v32")
    a("s_mov_b64 exec, -1")
    a("s_waitcnt lgkmcnt(0)")
    for _ in range(4): R.bar()

def wave_sum(a, v, t):
    for r in (8, 4, 2, 1):
        a("v_add_f32_dpp v%d, v%d, v%d row_ror:%d row_mask:0xf bank_mask:0xf" % (v, v, v, r))
    xq(a, "v_add_f32", v, t)

def k1(a):
    n = "k1_kernel"
    kernel_begin(a, n)
    a("s_cmp_ge_u32 s2, 480")
    a("s_cbranch_scc1 k1_end")
    for sdst, nm in ((32, "x"), (34, "ws"), (36, "w1"), (38, "wqkv")):
        a("s_load_dwordx2 %s, s[0:1], %d" % (sr(sdst, 2), KA[nm]))
    a("v_lshrrev_b32 v2, 6, v0")
    a("v_and_b32 v1, 63, v0")
    a("v_readfirstlane_b32 s3, v2")
    a("s_waitcnt lgkmcnt(0)")
    a("s_cmp_ge_u32 s2, 256")
    a("s_cbranch_scc1 k1_cs")
    srd(a, 8, 32, 0, SZ_ACT)
    srd(a, 12, 34, WS_XN, SZ_ACT)
    a("s_lshl_b32 s4, s2, 3")
    a("s_add_u32 s4, s4, s3")
    a("s_lshl_b32 s20, s4, 13")
    a("s_lshl_b32 s4, s4, 11")
    a("v_lshlrev_b32 v2, 4, v1")
    a("buffer_load_dwordx4 v[4:7], v2, s[8:11], s4 offen")
    a("buffer_load_dwordx4 v[8:11], v2, s[8:11], s4 offen offset:1024")
    srd(a, 16, 38, 0, 1024*3072*2)
    a("v_lshlrev_b32 v3, 7, v1")
    a("buffer_load_dword v40, v3, s[16:19], s20 offen")
    a("s_or_b32 s21, s2, s3")
    a("s_cmp_lg_u32 s21, 0")
    a("s_cbranch_scc1 k1_nononce")
    a("s_memrealtime s[22:23]")
    srd(a, 24, 34, WS_NONCE, 64)
    a("s_waitcnt lgkmcnt(0)")
    a("s_or_b32 s22, s22, 1")
    a("s_xor_b32 s23, s23, 0x5bd1e995")
    a("v_mov_b32 v42, s22")
    a("v_mov_b32 v43, s23")
    a("v_mov_b32 v44, 0")
    a("s_mov_b64 exec, 1")
    a("buffer_store_dwordx2 v[42:43], v44, s[24:27], 0 offen")
    a("s_mov_b64 exec, -1")
    a.label("k1_nononce")
    a("s_waitcnt vmcnt(1)")
    X = 16
    for i in range(8):
        a("v_lshlrev_b32 v%d, 16, v%d" % (X + 2*i, 4 + i))
        a("v_and_b32 v%d, 0xffff0000, v%d" % (X + 2*i + 1, 4 + i))
    a("v_add_f32 v12, v%d, v%d" % (X, X+1))
    for i in range(2, 16): a("v_add_f32 v12, v12, v%d" % (X + i))
    wave_sum(a, 12, 13)
    a("v_mul_f32 v12, 0x3a800000, v12")
    for i in range(16): a("v_sub_f32 v%d, v%d, v12" % (X + i, X + i))
    a("v_mul_f32 v14, v%d, v%d" % (X, X))
    for i in range(1, 16): a("v_fmac_f32 v14, v%d, v%d" % (X + i, X + i))
    wave_sum(a, 14, 13)
    a("v_mov_b32 v15, 0x3727c5ac")
    a("v_fmac_f32 v15, 0x3a800000, v14")
    a("v_rsq_f32 v15, v15")
    for i in range(16): a("v_mul_f32 v%d, v%d, v15" % (X + i, X + i))
    for i in range(8): a("v_cvt_pk_bf16_f32 v%d, v%d, v%d" % (4 + i, X + 2*i, X + 2*i + 1))
    a("buffer_store_dwordx4 v[4:7], v2, s[12:15], s4 offen sc1")
    a("buffer_store_dwordx4 v[8:11], v2, s[12:15], s4 offen offset:1024 sc1")
    a("s_endpgm")
    a.label("k1_cs")
    srd(a, 8, 36, 0, 1024*3584*2)
    srd(a, 12, 34, WS_CS1P, 8*3584*4)
    a("s_sub_u32 s4, s2, 256")
    a("s_mul_hi_u32 s5, s4, 0x%x" % ((2**32 + 27)//28))
    a("s_mul_i32 s6, s5, 28")
    a("s_sub_u32 s6, s4, s6")
    a("v_lshrrev_b32 v2, 4, v0")
    a("v_mul_u32_u24 v2, 7168, v2")
    a("v_and_b32 v3, 15, v0")
    a("v_lshl_add_u32 v2, v3, 4, v2")
    a("s_mul_i32 s7, s5, %d" % (128*7168))
    a("s_lshl_b32 s16, s6, 8")
    a("s_add_u32 s7, s7, s16")
    for i in range(4):
        a("buffer_load_dwordx4 %s, v2, s[8:11], s7 offen" % vr(4 + 4*i, 4))
        if i < 3: a("s_add_u32 s7, s7, %d" % (32*7168))
    A = 24
    a("s_waitcnt vmcnt(0)")
    for d in range(4):
        a("v_lshlrev_b32 v%d, 16, v%d" % (A + 2*d, 4 + d))
        a("v_and_b32 v%d, 0xffff0000, v%d" % (A + 2*d + 1, 4 + d))
    for i in range(1, 4):
        for d in range(4):
            a("v_lshlrev_b32 v20, 16, v%d" % (4 + 4*i + d))
            a("v_and_b32 v21, 0xffff0000, v%d" % (4 + 4*i + d))
            a("v_add_f32 v%d, v%d, v20" % (A + 2*d, A + 2*d))
            a("v_add_f32 v%d, v%d, v21" % (A + 2*d + 1, A + 2*d + 1))
    for e in range(8): xq(a, "v_add_f32", A + e, 20)
    a("v_and_b32 v3, 15, v1")
    a("v_lshlrev_b32 v3, 5, v3")
    a("s_lshl_b32 s16, s3, 9")
    a("v_add_u32 v3, s16, v3")
    a("ds_write_b128 v3, %s" % vr(A, 4))
    a("ds_write_b128 v3, %s offset:16" % vr(A + 4, 4))
    a("s_waitcnt lgkmcnt(0)")
    a("s_barrier")
    a("s_cmp_ge_u32 s3, 2")
    a("s_cbranch_scc1 k1_end")
    a("v_lshlrev_b32 v3, 2, v0")
    for w in range(8): a("ds_read_b32 v%d, v3 offset:%d" % (4 + w, w * 512))
    a("s_waitcnt lgkmcnt(0)")
    for w in range(1, 8): a("v_add_f32 v4, v4, v%d" % (4 + w))
    a("s_mul_i32 s7, s5, %d" % (3584*4))
    a("s_lshl_b32 s16, s6, 9")
    a("s_add_u32 s7, s7, s16")
    a("buffer_store_dword v4, v3, s[12:15], s7 offen sc1")
    a.label("k1_end")
    a("s_endpgm")
    return dict(name=n, grid=480, block=512, lds=4096, vgpr=48)

def kp(a):
    n = "kp_kernel"
    kernel_begin(a, n)
    a("s_cmp_ge_u32 s2, 256")
    a("s_cbranch_scc1 kp_end")
    if G.prof:
        a("s_memrealtime s[96:97]")
    for sdst, nm in ((P_WS, "ws"), (P_X, "x"), (P_WQKV, "wqkv"), (P_WPHI, "wphi"), (P_WO, "wo"), (P_W1, "w1"),
                     (P_B1, "b1"), (P_W2, "w2"), (P_B2, "b2"), (P_OUT, "out"), (P_DBG, "dbg")):
        a("s_load_dwordx2 %s, s[0:1], %d" % (sr(sdst, 2), KA[nm]))
    a("s_and_b32 s30, s2, 7")
    a("s_lshr_b32 s31, s2, 3")
    a("v_lshrrev_b32 v2, 6, v0")
    a("v_and_b32 v1, 63, v0")
    a("v_readfirstlane_b32 s3, v2")
    a("s_waitcnt lgkmcnt(0)")
    a("s_cmp_ge_u32 s3, 6")
    a("s_cbranch_scc1 kp_helper")
    a("s_cmp_ge_u32 s3, 4")
    a("s_cbranch_scc1 kp_loader")
    if G.prof: a("v_writelane_b32 v255, s96, 0")
    a("s_waitcnt lgkmcnt(0)")
    Rc = compute_role(a)
    if G.prof:
        a("s_waitcnt vmcnt(0)")
        stamp(a, 15)
        a("s_cmp_lg_u32 s7, 0")
        a("s_cbranch_scc1 kp_end")
        srd(a, SA, P_WS, WS_PROF, 256*256)
        a("s_lshl_b32 s70, s2, 8")
        a("v_lshlrev_b32 v2, 2, v1")
        a("buffer_store_dword v255, v2, %s, s70 offen" % S(SA))
    a("s_endpgm")
    a.label("kp_loader")
    a("s_waitcnt lgkmcnt(0)")
    Rl = loader_role(a)
    a("s_endpgm")
    a.label("kp_helper")
    a("s_waitcnt lgkmcnt(0)")
    Rh = helper_role(a)
    a("s_endpgm")
    a.label("kp_end")
    a("s_endpgm")
    a.label("kp_codeend")
    print("barriers: compute %d loader %d helper %d" % (Rc.nb, Rl.nb, Rh.nb))
    assert Rc.nb == Rl.nb == Rh.nb
    return dict(name=n, grid=256, block=512, lds=163840, vgpr=256)

def build(prof=False, stop_after=5):
    G.prof = prof; G.stop_after = stop_after
    body = Asm()
    descs = [kp(body)]
    head = HEADER
    for d in descs:
        head += "; @launch kernel=%s grid=(%d,1,1) block=(%d,1,1) lds=%d\n" % (d["name"], d["grid"], d["block"], d["lds"])
    txt = head + '.amdgcn_target "amdgcn-amd-amdhsa--gfx950"\n' + body.text()
    txt += '.section .rodata,"a"\n'
    for d in descs:
        txt += ".p2align 6\n" + kernel_desc(d["name"], d["vgpr"], 102)
    return txt

if __name__ == "__main__":
    import sys
    stop = 5
    G.st_touch = "nost" not in sys.argv
    G.code_pf = "nocpf" not in sys.argv
    G.tlb_warm = "tlb" in sys.argv
    G.hprio = "nohprio" not in sys.argv
    G.hstage = False
    G.t2sleep = 16
    G.x_noh4 = "noh4" in sys.argv
    G.x_norot4 = "norot4" in sys.argv
    G.touch_mode = 1
    for x in sys.argv:
        if x.startswith("tm"): G.touch_mode = int(x[2:])
    for x in sys.argv:
        if x.startswith("peel"): G.p1peel = int(x[4:])
        if x.startswith("sleep"): G.t2sleep = int(x[5:])
    for x in sys.argv:
        if x.startswith("stop"): stop = int(x[4:])
    open(sys.argv[1], "w").write(build(prof="prof" in sys.argv, stop_after=stop))
```

```python
from asmgen import *

WS_XN   = 0x0000000
WS_ST1  = 0x0000000
WS_CSQ  = 0x0010000
WS_RSP  = 0x0080000
WS_CS2  = 0x0100000
WS_KVP  = 0x0400000
WS_ZP   = 0x0700000
WS_O    = 0x0800000
WS_H    = 0x0C00000
WS_HSTP = 0x1000000
WS_CS1P = 0x1100000
WS_FLAG = 0x1200000
WS_NONCE= 0x1280000
WS_F    = 0x1400000
WS_PX   = 0x2400000
WS_PROF = 0x4000000
SZ_ACT  = 2048*1024*2
SZ_F    = 2048*3584*2
FL_A, FL_B, FL_C, FL_D, FL_X, FL_E, FL_G = 0x0000, 0x1000, 0x2000, 0x3000, 0x4000, 0x6000, 0x7000
FLAG_SZ = 0x8000

KA = dict(x=0, wqkv=8, wphi=16, wo=24, w1=40, b1=48, w2=56, b2=64, out=72, dbg=80, ws=88)
P_WS, P_X, P_WQKV, P_WPHI, P_WO, P_W1, P_B1, P_W2, P_B2, P_OUT = 8, 10, 12, 14, 16, 18, 20, 22, 24, 26
P_DBG = 84
S_NONCE = 28
SX, SW, SA, SB, SC, SD, SF = 32, 36, 40, 44, 48, 52, 56
S_XOFF, S_WOFF, S_LDSX, S_LDSW, S_TMP, S_CNT, S_DELTA, S_BUF, S_SS, S_NEG = 60, 61, 62, 63, 64, 65, 66, 67, 68, 69
S_L2E = 83
LOG2E = 0x3fb8aa3b
MF16 = "v_mfma_f32_16x16x32_bf16"

class G:
    prof = False
    stop_after = 5
    nstamp = 0
    st_touch = True
    code_pf = True
    tlb_warm = False
    hprio = True
    hstage = False
    p1peel = 2
    touch2 = False
    staged = True
    jit_cpf = True
    p5skip = True
    p5pre = True
    x_noh4 = False
    x_norot4 = False
    touch_mode = 1

def srd(a, d, p, off, size):
    if off:
        a("s_add_u32 s%d, s%d, 0x%x" % (d, p, off))
        a("s_addc_u32 s%d, s%d, 0" % (d + 1, p + 1))
    else:
        a("s_mov_b32 s%d, s%d" % (d, p))
        a("s_mov_b32 s%d, s%d" % (d + 1, p + 1))
    a("s_mov_b32 s%d, 0x%x" % (d + 2, size))
    a("s_mov_b32 s%d, 0x20000" % (d + 3))

def S(b): return sr(b, 4)

def stamp(a, k):
    if G.prof:
        a("s_memrealtime s[98:99]")
        a("s_waitcnt lgkmcnt(0)")
        a("v_writelane_b32 v255, s98, %d" % k)

def cstamp(a, k):
    if G.prof:
        a("s_memtime s[98:99]")
        a("s_waitcnt lgkmcnt(0)")
        a("v_writelane_b32 v255, s98, %d" % k)

class Role:
    def __init__(self, a): self.a = a; self.nb = 0; self.trace = False; self.tk = 0
    def bar(self, n=1):
        if self.trace and G.prof and n == 1 and self.tk < 62:
            stamp(self.a, self.tk); self.tk += 1
        self.a("s_barrier"); self.nb += n

def tile_map(a, mx, nx):
    import math
    mgroups = 16 // mx
    lm = int(math.log2(mgroups)); lmx = int(math.log2(mx))
    a("s_and_b32 s4, s30, %d" % (mgroups - 1))
    a("s_lshr_b32 s5, s30, %d" % lm)
    a("s_mul_i32 s4, s4, %d" % mx)
    a("s_mul_i32 s5, s5, %d" % nx)
    a("s_and_b32 s%d, s31, %d" % (S_TMP, mx - 1))
    a("s_add_u32 s4, s4, s%d" % S_TMP)
    a("s_lshr_b32 s%d, s31, %d" % (S_TMP, lmx))
    a("s_add_u32 s5, s5, s%d" % S_TMP)

class Cfg: pass

def loader_setup(a, c):
    if c.xmode == "row":
        a("v_lshrrev_b32 v10, 3, v1")
        a("v_mul_u32_u24 v10, %d, v10" % c.ldx)
        a("v_and_b32 v11, 7, v1")
        a("v_lshrrev_b32 v12, 4, v1")
        a("v_xor_b32 v13, v11, v12")
        a("v_lshl_add_u32 v2, v13, 4, v10")
        a("v_xor_b32 v13, 4, v13")
        a("v_lshl_add_u32 v3, v13, 4, v10")
        a("s_lshl_b32 s%d, s4, 7" % S_XOFF)
        a("s_lshl_b32 s%d, s7, 6" % S_TMP)
        a("s_add_u32 s%d, s%d, s%d" % (S_XOFF, S_XOFF, S_TMP))
        a("s_mul_i32 s%d, s%d, %d" % (S_XOFF, S_XOFF, c.ldx))
    else:
        a("v_lshlrev_b32 v2, 4, v1")
        a("s_lshl_b32 s%d, s4, 2" % S_XOFF)
        a("s_lshl_b32 s%d, s7, 1" % S_TMP)
        a("s_add_u32 s%d, s%d, s%d" % (S_XOFF, S_XOFF, S_TMP))
        a("s_mul_i32 s%d, s%d, %d" % (S_XOFF, S_XOFF, c.KX // 8 * 512))
    if c.wmode == "pair":
        a("v_lshrrev_b32 v10, 5, v1")
        a("v_lshlrev_b32 v10, 2, v10")
        a("v_bfe_u32 v11, v1, 2, 2")
        a("v_add_u32 v10, v10, v11")
        a("v_mul_u32_u24 v10, %d, v10" % c.ldw)
        a("v_bfe_u32 v11, v1, 4, 1")
        a("v_lshl_add_u32 v10, v11, 6, v10")
        a("v_and_b32 v11, 3, v1")
        a("v_lshl_add_u32 v4, v11, 4, v10")
        a("v_xor_b32 v11, 2, v11")
        a("v_lshl_add_u32 v5, v11, 4, v10")
        a("s_mul_i32 s%d, s7, %d" % (S_WOFF, 32 * c.ldw))
        a("s_mul_i32 s%d, s5, %d" % (S_TMP, c.ntile_bytes))
        a("s_add_u32 s%d, s%d, s%d" % (S_WOFF, S_WOFF, S_TMP))
        a("s_mul_i32 s%d, s7, %d" % (S_LDSW, 4 * (c.NB // 2) * 1024))
    else:
        a("v_lshrrev_b32 v12, 4, v1")
        a("v_bfe_u32 v13, v1, 2, 2")
        a("v_and_b32 v14, 3, v1")
        for t in range(7):
            a("v_add_u32 v15, %d, v12" % (4 * t))
            a("v_mul_u32_u24 v16, 37, v15")
            a("v_lshrrev_b32 v16, 8, v16")
            a("v_mul_u32_u24 v17, 7, v16")
            a("v_sub_u32 v17, v15, v17")
            a("v_and_b32 v18, 2, v16")
            a("v_xor_b32 v18, v18, v14")
            a("v_lshl_add_u32 v16, v16, 2, v13")
            a("v_mul_u32_u24 v16, %d, v16" % c.ldw)
            a("v_lshl_add_u32 v16, v17, 6, v16")
            a("v_lshl_add_u32 v%d, v18, 4, v16" % (4 + t))
        a("s_mul_i32 s%d, s7, %d" % (S_WOFF, 32 * c.ldw))
        a("s_mul_i32 s%d, s5, %d" % (S_TMP, c.ntile_bytes))
        a("s_add_u32 s%d, s%d, s%d" % (S_WOFF, S_WOFF, S_TMP))
        a("s_mul_i32 s%d, s7, 14336" % S_LDSW)
    if c.koff: c.koff(a, c)
    a("s_add_u32 s%d, s%d, %d" % (S_LDSW, S_LDSW, c.LB + 16384))
    a("s_lshl_b32 s%d, s7, 13" % S_LDSX)
    if c.LB: a("s_add_u32 s%d, s%d, %d" % (S_LDSX, S_LDSX, c.LB))
    a("s_mov_b32 s%d, %d" % (S_SS, c.SS))
    a("s_mov_b32 s%d, 0x%x" % (S_NEG, (-(c.NS - 1) * c.SS) & 0xffffffff))

def nX(c): return 8
def nW(c): return c.NB * 2

def issue_x(a, c, ldsoff=0):
    if c.xmode == "row":
        for j in range(8):
            a("s_add_u32 m0, s%d, %d" % (S_LDSX, ldsoff + j * 1024))
            a("s_add_u32 s%d, s%d, %d" % (S_TMP, S_XOFF, j * 8 * c.ldx))
            a("buffer_load_dwordx4 v%d, %s, s%d offen lds" % (2 + (j & 1), S(SX), S_TMP))
        a("s_add_u32 s%d, s%d, 128" % (S_XOFF, S_XOFF))
    else:
        a("s_add_u32 m0, s%d, %d" % (S_LDSX, ldsoff))
        a("s_add_u32 s%d, s%d, %d" % (S_TMP, S_XOFF, c.KX // 8 * 512))
        for j in range(4):
            a("buffer_load_dwordx4 v2, %s, s%d offen offset:%d lds" % (S(SX), S_XOFF, j * 1024))
        a("s_add_u32 m0, s%d, %d" % (S_LDSX, ldsoff + 4096))
        a("s_add_u32 s%d, s%d, 4096" % (S_XOFF, S_XOFF))
        for j in range(4):
            a("buffer_load_dwordx4 v2, %s, s%d offen offset:%d lds" % (S(SX), S_TMP, j * 1024))

def issue_w(a, c, ldsoff=0):
    if c.wmode == "pair":
        NP = c.NB // 2
        for kpl in range(4):
            for np_ in range(NP):
                a("s_add_u32 m0, s%d, %d" % (S_LDSW, ldsoff + (kpl * NP + np_) * 1024))
                a("s_add_u32 s%d, s%d, %d" % (S_TMP, S_WOFF, kpl * 8 * c.ldw + c.strip[np_]))
                a("buffer_load_dwordx4 v%d, %s, s%d offen lds" % (4 + (kpl & 1), S(SW), S_TMP))
    else:
        for g in range(2):
            if g == 1: a("s_add_u32 s%d, s%d, %d" % (S_TMP, S_WOFF, 16 * c.ldw))
            for t in range(7):
                a("s_add_u32 m0, s%d, %d" % (S_LDSW, ldsoff + g * 7168 + t * 1024))
                a("s_nop 0")
                a("buffer_load_dwordx4 v%d, %s, s%d offen lds" % (4 + t, S(SW), S_WOFF if g == 0 else S_TMP))
    a("s_add_u32 s%d, s%d, %d" % (S_WOFF, S_WOFF, 64 * c.ldw))

S_S0 = 86
def xstride(c): return 128 if c.xmode == "row" else 4096
def rot_begin(a, c):
    if not c.rot: return
    c.rot(a, c)
    a("s_mul_i32 s%d, s%d, %d" % (S_TMP, S_S0, xstride(c)))
    a("s_add_u32 s92, s%d, s%d" % (S_XOFF, S_TMP))
    a("s_mul_i32 s%d, s%d, %d" % (S_TMP, S_S0, 64 * c.ldw))
    a("s_add_u32 s93, s%d, s%d" % (S_WOFF, S_TMP))
    a("s_mov_b32 s90, 0")
    a("s_mov_b32 s91, 0")
def IX(a, c, off=0, k=None):
    if c.rot and k == c.peel_at:
        a("s_mov_b32 s89, s%d" % S_XOFF)
        a("s_mov_b32 s%d, s92" % S_XOFF)
        issue_x(a, c, off)
        a("s_mov_b32 s%d, s89" % S_XOFF)
        return
    if c.rot:
        a("s_cmp_eq_u32 s90, s%d" % S_S0)
        a("s_cselect_b32 s%d, %d, 0" % (S_TMP, xstride(c)))
        a("s_add_u32 s%d, s%d, s%d" % (S_XOFF, S_XOFF, S_TMP))
        a("s_add_u32 s90, s90, 1")
    issue_x(a, c, off)
def IW(a, c, off=0, k=None):
    if c.rot and k == c.peel_at:
        a("s_mov_b32 s89, s%d" % S_WOFF)
        a("s_mov_b32 s%d, s93" % S_WOFF)
        issue_w(a, c, off)
        a("s_mov_b32 s%d, s89" % S_WOFF)
        return
    if c.rot:
        a("s_cmp_eq_u32 s91, s%d" % S_S0)
        a("s_cselect_b32 s%d, %d, 0" % (S_TMP, 64 * c.ldw))
        a("s_add_u32 s%d, s%d, s%d" % (S_WOFF, S_WOFF, S_TMP))
        a("s_add_u32 s91, s91, 1")
    issue_w(a, c, off)

def trickle_setup(a, c):
    tr = getattr(c, "trickle", None)
    if not tr: return
    for k, (p, nbytes, K, start) in enumerate(tr):
        srd(a, (SC, SD)[k], p, 0, nbytes)
        a("s_lshl_b32 s%d, s2, 1" % (78 + k))
        a("s_add_u32 s%d, s%d, s7" % (78 + k, 78 + k))
        a("s_lshl_b32 s%d, s%d, 7" % (78 + k, 78 + k))
        if start: a("s_add_u32 s%d, s%d, %d" % (78 + k, 78 + k, start * 65536))
def trickle(a, c):
    tr = getattr(c, "trickle", None)
    if not tr: return
    for k, (p, nbytes, K, start) in enumerate(tr):
        for _ in range(K):
            a("s_buffer_load_dword s87, %s, s%d" % (S((SC, SD)[k]), 78 + k))
            a("s_add_u32 s%d, s%d, 65536" % (78 + k, 78 + k))

def adv_buf(a, c):
    a("s_add_u32 s%d, s%d, 1" % (S_BUF, S_BUF))
    a("s_cmp_eq_u32 s%d, %d" % (S_BUF, c.NS))
    a("s_cselect_b32 s%d, s%d, s%d" % (S_DELTA, S_NEG, S_SS))
    a("s_cselect_b32 s%d, 0, s%d" % (S_BUF, S_BUF))
    a("s_add_u32 s%d, s%d, s%d" % (S_LDSX, S_LDSX, S_DELTA))
    a("s_add_u32 s%d, s%d, s%d" % (S_LDSW, S_LDSW, S_DELTA))

def loader_phase(R, c):
    a = R.a; n = c.name + "_ld"
    c.tmap(a, c)
    c.srds_loader(a, c)
    loader_setup(a, c)
    NS, NST = c.NS, c.NST
    x, w = nX(c), nW(c); nn = x + w
    order = []
    pre = 0
    if c.loader_pre: pre = c.loader_pre(a, c) or 0
    rot_begin(a, c)
    trickle_setup(a, c)
    if c.flag:
        R.bar()
        if getattr(c, "pre_t_hook", None): c.pre_t_hook(a, pre)
        for s in range(NS):
            IW(a, c, s * c.SS, k=s); order.append((s, w))
        R.bar()
        IX(a, c, 0, k=0); IX(a, c, c.SS, k=1); order += [(0, x), (1, x)]
        a("s_waitcnt vmcnt(%d)" % x)
        R.bar()
        for s in range(2, NS):
            IX(a, c, s * c.SS, k=s); order.append((s, x))
    else:
        IX(a, c, 0, k=0); IW(a, c, 0, k=0); IX(a, c, c.SS, k=1); IW(a, c, c.SS, k=1)
        order += [(0, nn), (1, nn)]
        a("s_waitcnt vmcnt(%d)" % nn)
        R.bar()
        for s in range(2, NS):
            if c.helper_stage == s:
                order.append((s, 0))
            else:
                IX(a, c, s * c.SS, k=s); IW(a, c, s * c.SS, k=s); order.append((s, nn))
    a("s_mov_b32 s%d, 0" % S_BUF)
    def allowed(need_stage):
        last = max(k for k, (s, _) in enumerate(order) if s == need_stage)
        return min(63, sum(cnt for (s, cnt) in order[last + 1:]))
    i = 0
    steady = (NS - 2) * nn
    while i < NST - NS and allowed(i + 1) != steady:
        a("s_waitcnt vmcnt(%d)" % allowed(i + 1)); R.bar()
        if c.jump_at is not None and i + NS == c.jump_at: c.jump(a, c)
        IX(a, c, k=i + NS); IW(a, c, k=i + NS); adv_buf(a, c); trickle(a, c); order.append((i + NS, nn))
        i += 1
    first = i
    nloop = NST - NS - first
    if nloop > 0:
        a("s_mov_b32 s%d, %d" % (S_CNT, first))
        a.label(n + "_loop")
        a("s_waitcnt vmcnt(%d)" % steady); R.bar(nloop)
        if c.jump_at is not None:
            a("s_cmp_lg_u32 s%d, %d" % (S_CNT, c.jump_at - NS))
            a("s_cbranch_scc1 %s_nj" % n)
            c.jump(a, c)
            a.label(n + "_nj")
        if c.rot and c.peel_at >= first + NS:
            a("s_cmp_lg_u32 s%d, %d" % (S_CNT, c.peel_at - NS))
            a("s_cbranch_scc1 %s_nat" % n)
            IX(a, c, k=c.peel_at); IW(a, c, k=c.peel_at)
            a("s_branch %s_adv" % n)
            a.label(n + "_nat")
            IX(a, c); IW(a, c)
            a.label(n + "_adv")
            adv_buf(a, c)
        else:
            IX(a, c); IW(a, c); adv_buf(a, c)
        trickle(a, c)
        a("s_add_u32 s%d, s%d, 1" % (S_CNT, S_CNT))
        a("s_cmp_lt_u32 s%d, %d" % (S_CNT, NST - NS))
        a("s_cbranch_scc1 %s_loop" % n)
        for k in range(first, NST - NS): order.append((k + NS, nn))
    if getattr(c, "tail_touch", None):
        nt = c.tail_touch(a, c)
        order.append((99, nt))
    for i in range(NST - NS, NST):
        if i + 1 < NST: a("s_waitcnt vmcnt(%d)" % allowed(i + 1))
        R.bar()

def reads(c, p, s):
    xs = []
    for t in range(4):
        if c.xmode == "row":
            xs.append("ds_read_b128 %s, v%d offset:%d" % (vr(c.XF[p][t], 4), c.VXA + s, t * 2048))
        else:
            xs.append("ds_read_b128 %s, v%d offset:%d" % (vr(c.XF[p][t], 4), c.VXA, (t >> 1) * 4096 + (t & 1) * 256 + s * 2048))
    ws = []
    for b in range(c.TNI):
        nb, g, areg = c.wtile(b)
        for e in range(2):
            if c.wmode == "pair":
                NP = c.NB // 2
                off = s * 4 * NP * 1024 + (nb >> 1) * 1024 + e * 512 + (nb & 1) * 256
            else:
                off = ((8 * s + e) * 7 + nb) * 256
            ws.append("ds_read_b64_tr_b16 %s, v%d offset:%d" % (vr(c.WF[p][b] + 2 * e, 2), areg, 16384 + off))
    return ws[:2] + xs + ws[2:]

def compute_addr(a, c):
    a("v_and_b32 v10, 15, v1")
    a("v_lshrrev_b32 v11, 4, v1")
    a("s_lshl_b32 s%d, s6, 13" % S_TMP)
    if c.LB: a("s_add_u32 s%d, s%d, %d" % (S_TMP, S_TMP, c.LB))
    if c.xmode == "row":
        a("v_bfe_u32 v12, v10, 1, 3")
        a("v_xor_b32 v12, v12, v11")
        a("v_lshlrev_b32 v13, 7, v10")
        a("v_add_u32 v13, s%d, v13" % S_TMP)
        for s in range(2):
            a("v_xor_b32 v14, %d, v12" % (4 * s))
            a("v_lshl_add_u32 v%d, v14, 4, v13" % (c.VXA + s))
    else:
        a("v_lshlrev_b32 v13, 9, v11")
        a("v_lshl_add_u32 v13, v10, 4, v13")
        a("v_add_u32 v%d, s%d, v13" % (c.VXA, S_TMP))
    a("v_bfe_u32 v12, v1, 2, 2")
    a("v_lshlrev_b32 v12, 6, v12")
    a("v_and_b32 v13, 3, v1")
    a("v_lshl_add_u32 v12, v13, 3, v12")
    qstride = (c.NB // 2) * 1024 if c.wmode == "pair" else 2 * 7 * 256
    a("v_mul_u32_u24 v13, %d, v11" % qstride)
    a("v_add_u32 v12, v12, v13")
    a("v_and_b32 v13, 1, v11")
    a("v_lshl_add_u32 v12, v13, 5, v12")
    if c.LB: a("v_add_u32 v12, %d, v12" % c.LB)
    if c.wmode == "pair":
        a("s_mul_i32 s%d, s7, %d" % (S_TMP, c.wwave_off))
        a("v_add_u32 v%d, s%d, v12" % (c.VWA, S_TMP))
        a("v_xor_b32 v%d, 32, v%d" % (c.VWA + 1, c.VWA))
    else:
        a("s_lshl_b32 s%d, s7, 5" % S_TMP)
        a("v_xor_b32 v12, s%d, v12" % S_TMP)
        a("v_xor_b32 v13, 32, v12")
        a("s_mul_i32 s%d, s7, 768" % S_TMP)
        a("v_add_u32 v%d, s%d, v12" % (c.VWA, S_TMP))
        a("s_lshl_b32 s%d, s7, 10" % S_TMP)
        a("v_add_u32 v%d, s%d, v13" % (c.VWA + 1, S_TMP))
    a("s_mov_b32 s%d, %d" % (S_SS, c.SS))
    a("s_mov_b32 s%d, 0x%x" % (S_NEG, (-(c.NS - 1) * c.SS) & 0xffffffff))

def zero_acc(a, c):
    for t in range(4):
        for b in range(c.TNI):
            for r in range(4): a("v_mov_b32 v%d, 0" % (c.ACC[t][b] + r))

def stage_body(R, c, extra=None, count_bar=1, drain=None):
    a = R.a
    nx = 2 if c.xmode == "row" else 1
    for s in range(2):
        p = s
        a("s_waitcnt lgkmcnt(0)")
        if s == 1:
            a("s_add_u32 s%d, s%d, 1" % (S_BUF, S_BUF))
            a("s_cmp_eq_u32 s%d, %d" % (S_BUF, c.NS))
            a("s_cselect_b32 s%d, s%d, s%d" % (S_DELTA, S_NEG, S_SS))
            a("s_cselect_b32 s%d, 0, s%d" % (S_BUF, S_BUF))
            for q in range(nx):
                a("v_add_u32 v%d, s%d, v%d" % (c.VXA + q, S_DELTA, c.VXA + q))
            a("v_add_u32 v%d, s%d, v%d" % (c.VWA, S_DELTA, c.VWA))
            a("v_add_u32 v%d, s%d, v%d" % (c.VWA + 1, S_DELTA, c.VWA + 1))
            if drain:
                a("s_cmp_lg_u32 s%d, %d" % (S_CNT, drain))
                a("s_cbranch_scc1 %s_nodrain" % c.name)
                a("s_waitcnt vmcnt(0)")
                a.label(c.name + "_nodrain")
            R.bar(count_bar)
        rd = reads(c, 1 - p, 1 - s)
        mf = []
        for b in range(c.TNI):
            for t in range(4):
                acc = c.ACC[t][b]
                if c.orient[b] == "T":
                    mf.append("%s %s, %s, %s, %s" % (MF16, vr(acc, 4), vr(c.WF[p][b], 4), vr(c.XF[p][t], 4), vr(acc, 4)))
                else:
                    mf.append("%s %s, %s, %s, %s" % (MF16, vr(acc, 4), vr(c.XF[p][t], 4), vr(c.WF[p][b], 4), vr(acc, 4)))
        if extra: mf += extra(c, p, s)
        ri = 0
        for m in mf:
            a(m)
            for _ in range(c.reads_per_gap):
                if ri < len(rd): a(rd[ri]); ri += 1
        while ri < len(rd): a(rd[ri]); ri += 1

def mainloop(R, c, niter_sgpr=None, nbar=None, tail=True):
    a = R.a; n = c.name
    for r in reads(c, 0, 0): a(r)
    a("s_mov_b32 s%d, 0" % S_CNT)
    a("s_mov_b32 s%d, 0" % S_BUF)
    total = nbar if nbar is not None else c.NST
    peel = getattr(c, "extra0", None)
    if peel:
        if c.peel_at > 0:
            a.label(n + "_pre")
            stage_body(R, c, count_bar=c.peel_at); total -= c.peel_at
            a("s_add_u32 s%d, s%d, 1" % (S_CNT, S_CNT))
            a("s_cmp_lt_u32 s%d, %d" % (S_CNT, c.peel_at))
            a("s_cbranch_scc1 %s_pre" % n)
        stage_body(R, c, extra=peel, count_bar=1)
        c.after0(a, c)
        a("s_mov_b32 s%d, %d" % (S_CNT, c.peel_at + 1))
        total -= 1
    a.label(n + "_loop")
    stage_body(R, c, count_bar=total)
    a("s_add_u32 s%d, s%d, 1" % (S_CNT, S_CNT))
    if niter_sgpr is None: a("s_cmp_lt_u32 s%d, %d" % (S_CNT, c.NST))
    else: a("s_cmp_lt_u32 s%d, s%d" % (S_CNT, niter_sgpr))
    a("s_cbranch_scc1 %s_loop" % n)
    if tail: a("s_waitcnt lgkmcnt(0)")

def pack_pair(a, accA, accB, P):
    a("v_cvt_pk_bf16_f32 v%d, v%d, v%d" % (P, accA, accA + 1))
    a("v_cvt_pk_bf16_f32 v%d, v%d, v%d" % (P + 1, accA + 2, accA + 3))
    a("v_cvt_pk_bf16_f32 v%d, v%d, v%d" % (P + 2, accB, accB + 1))
    a("v_cvt_pk_bf16_f32 v%d, v%d, v%d" % (P + 3, accB + 2, accB + 3))
    a("v_permlane16_swap_b32 v%d, v%d" % (P, P + 2))
    a("v_permlane16_swap_b32 v%d, v%d" % (P + 1, P + 3))

def pack4(a, P, A, B):
    a("v_cvt_pk_bf16_f32 v%d, v%d, v%d" % (P, A, A + 1))
    a("v_cvt_pk_bf16_f32 v%d, v%d, v%d" % (P + 1, A + 2, A + 3))
    a("v_cvt_pk_bf16_f32 v%d, v%d, v%d" % (P + 2, B, B + 1))
    a("v_cvt_pk_bf16_f32 v%d, v%d, v%d" % (P + 3, B + 2, B + 3))

def xq(a, op, v, t):
    a("v_mov_b32 v%d, v%d" % (t, v))
    a("v_permlane16_swap_b32 v%d, v%d" % (v, t))
    a("%s v%d, v%d, v%d" % (op, v, v, t))
    a("v_mov_b32 v%d, v%d" % (t, v))
    a("v_permlane32_swap_b32 v%d, v%d" % (v, t))
    a("%s v%d, v%d, v%d" % (op, v, v, t))

def flag_write(a, off_sgpr_or_imm, grp, vtmp=20):
    a("v_mov_b32 v%d, s%d" % (vtmp, S_NONCE))
    a("v_mov_b32 v%d, s%d" % (vtmp + 1, S_NONCE + 1))
    a("v_mov_b32 v%d, %d" % (vtmp + 2, grp))
    a("s_mov_b64 exec, 1")
    a("buffer_store_dwordx2 %s, v%d, %s, s%d offen sc1" % (vr(vtmp, 2), vtmp + 2, S(SF), off_sgpr_or_imm))
    a("s_mov_b64 exec, -1")

_pollcnt = [0]
def flag_poll(a, off_sgpr, grp, nflags, vtmp=20):
    _pollcnt[0] += 1
    L = "poll%d" % _pollcnt[0]
    a("v_lshlrev_b32 v%d, 3, v1" % (vtmp + 2))
    a("v_add_u32 v%d, %d, v%d" % (vtmp + 2, grp, vtmp + 2))
    a("s_mov_b64 exec, 0x%x" % ((1 << nflags) - 1))
    a("s_mov_b32 s80, 0")
    a.label(L)
    a("buffer_load_dwordx2 %s, v%d, %s, s%d offen sc1" % (vr(vtmp, 2), vtmp + 2, S(SF), off_sgpr))
    a("s_waitcnt vmcnt(0)")
    a("v_cmp_ne_u32 vcc, s%d, v%d" % (S_NONCE, vtmp))
    a("v_cmp_ne_u32 s[78:79], s%d, v%d" % (S_NONCE + 1, vtmp + 1))
    a("s_or_b64 s[78:79], vcc, s[78:79]")
    a("s_cmp_eq_u64 s[78:79], 0")
    a("s_cbranch_scc1 %s_ok" % L)
    a("s_sleep 2")
    a("s_add_u32 s80, s80, 1")
    a("s_cmp_lt_u32 s80, 0x40000")
    a("s_cbranch_scc1 %s" % L)
    a.label(L + "_ok")
    a("s_mov_b64 exec, -1")


def flag_poll_v(a, voff, nflags, vtmp=20, split=None):
    _pollcnt[0] += 1
    L = "poll%d" % _pollcnt[0]
    a("s_mov_b64 exec, 0x%x" % ((1 << nflags) - 1))
    a("buffer_load_dwordx2 %s, v%d, %s, 0 offen sc1" % (vr(vtmp, 2), voff, S(SF)))
    if split: split()
    a("s_mov_b32 s80, 0")
    a.label(L)
    a("s_waitcnt vmcnt(0)")
    a("v_cmp_ne_u32 vcc, s%d, v%d" % (S_NONCE, vtmp))
    a("v_cmp_ne_u32 s[78:79], s%d, v%d" % (S_NONCE + 1, vtmp + 1))
    a("s_or_b64 s[78:79], vcc, s[78:79]")
    a("s_cmp_eq_u64 s[78:79], 0")
    a("s_cbranch_scc1 %s_ok" % L)
    a("buffer_load_dwordx2 %s, v%d, %s, 0 offen sc1" % (vr(vtmp, 2), voff, S(SF)))
    a("s_add_u32 s80, s80, 1")
    a("s_cmp_lt_u32 s80, 0x40000")
    a("s_cbranch_scc1 %s" % L)
    a.label(L + "_ok")
    a("s_mov_b64 exec, -1")


L_TOP = 163840 - 64
def publish_flag(a, k, off_code, grp):
    _pollcnt[0] += 1
    L = "pub%d" % _pollcnt[0]
    a("v_mov_b32 v8, %d" % (L_TOP + 16 + 4 * k))
    a("v_mov_b32 v9, 1")
    a("s_mov_b64 exec, 1")
    a("ds_add_rtn_u32 v9, v8, v9")
    a("s_waitcnt lgkmcnt(0)")
    a("v_readfirstlane_b32 s72, v9")
    a("s_mov_b64 exec, -1")
    a("s_cmp_lg_u32 s72, 3")
    a("s_cbranch_scc1 %s" % L)
    srd(a, SF, P_WS, WS_FLAG, FLAG_SZ)
    off_code(a)
    flag_write(a, 71, grp, vtmp=8)
    a.label(L)


def tag_check(a, regs, acc, name, reload_code):
    a("s_mov_b32 s80, 0")
    a.label(name + "_retry")
    a("s_waitcnt vmcnt(0)")
    a("v_min3_u32 v%d, v%d, v%d, v%d" % (acc, regs[0], regs[1], regs[2]))
    a("v_max3_u32 v%d, v%d, v%d, v%d" % (acc + 1, regs[0], regs[1], regs[2]))
    k = 3
    while k < len(regs):
        r2 = regs[k + 1] if k + 1 < len(regs) else regs[k]
        a("v_min3_u32 v%d, v%d, v%d, v%d" % (acc, acc, regs[k], r2))
        a("v_max3_u32 v%d, v%d, v%d, v%d" % (acc + 1, acc + 1, regs[k], r2))
        k += 2
    a("v_cmp_ne_u32 vcc, s%d, v%d" % (S_NONCE, acc))
    a("v_cmp_ne_u32 s[78:79], s%d, v%d" % (S_NONCE, acc + 1))
    a("s_or_b64 s[78:79], vcc, s[78:79]")
    a("s_cmp_eq_u64 s[78:79], 0")
    a("s_cbranch_scc1 %s_ok" % name)
    reload_code()
    a("s_add_u32 s80, s80, 1")
    a("s_cmp_lt_u32 s80, 0x20000")
    a("s_cbranch_scc1 %s_retry" % name)
    a.label(name + "_ok")


S_RDY = 81
def poll_mask(a, off_sgpr, grp, need_code, vtmp=20):
    _pollcnt[0] += 1
    L = "pm%d" % _pollcnt[0]
    need_code(a)
    a("s_mov_b32 s80, 0")
    a("v_lshlrev_b32 v%d, 3, v1" % (vtmp + 2))
    a("v_add_u32 v%d, %d, v%d" % (vtmp + 2, grp, vtmp + 2))
    a.label(L)
    a("s_and_b32 s77, s%d, s76" % S_RDY)
    a("s_cmp_eq_u32 s77, s76")
    a("s_cbranch_scc1 %s_ok" % L)
    a("s_mov_b64 exec, 0xffff")
    a("buffer_load_dwordx2 %s, v%d, %s, s%d offen sc1" % (vr(vtmp, 2), vtmp + 2, S(SF), off_sgpr))
    a("s_waitcnt vmcnt(0)")
    a("v_cmp_eq_u32 vcc, s%d, v%d" % (S_NONCE, vtmp))
    a("v_cmp_eq_u32 s[78:79], s%d, v%d" % (S_NONCE + 1, vtmp + 1))
    a("s_mov_b64 exec, -1")
    a("s_and_b64 s[78:79], vcc, s[78:79]")
    a("s_mov_b32 s%d, s78" % S_RDY)
    a("s_add_u32 s80, s80, 1")
    a("s_cmp_lt_u32 s80, 0x40000")
    a("s_cbranch_scc1 %s" % L)
    a.label(L + "_ok")
```

```python
from gen3 import *

def MF(a, d, x, y, c):
    a("%s %s, %s, %s, %s" % (MF16, vr(d, 4), vr(x, 4), vr(y, 4), vr(c, 4) if c is not None else "0"))

S_L2P = 94
def softmax16_list(P, E, T, outP, outN):
    L = []; a = L.append
    mx, mn, t0, t1, sp, sn = T, T+2, T+4, T+5, T+6, T+7
    a("v_max3_f32 v%d, v%d, v%d, v%d" % (mx, P, P+1, P+2))
    a("v_min3_f32 v%d, v%d, v%d, v%d" % (mn, P, P+1, P+2))
    for r in (3, 5):
        a("v_max3_f32 v%d, v%d, v%d, v%d" % (mx, mx, P+r, P+r+1))
        a("v_min3_f32 v%d, v%d, v%d, v%d" % (mn, mn, P+r, P+r+1))
    a("v_max_f32 v%d, v%d, v%d" % (mx, mx, P+7))
    a("v_min_f32 v%d, v%d, v%d" % (mn, mn, P+7))
    for sw in ("v_permlane16_swap_b32", "v_permlane32_swap_b32"):
        a("v_mov_b32 v%d, v%d" % (t0, mx))
        a("v_mov_b32 v%d, v%d" % (t1, mn))
        a("%s v%d, v%d" % (sw, mx, t0))
        a("%s v%d, v%d" % (sw, mn, t1))
        a("v_max_f32 v%d, v%d, v%d" % (mx, mx, t0))
        a("v_min_f32 v%d, v%d, v%d" % (mn, mn, t1))
    a("v_mul_f32 v%d, s%d, v%d" % (mx, S_L2P, mx))
    a("v_mul_f32 v%d, s%d, v%d" % (mn, S_L2P, mn))
    for r in range(0, 8, 2):
        a("v_pk_fma_f32 %s, %s, s[%d:%d], %s op_sel_hi:[1,1,0] neg_lo:[0,0,1] neg_hi:[0,0,1]" % (vr(E+r, 2), vr(P+r, 2), S_L2P, S_L2P+1, vr(mx, 2)))
        a("v_pk_fma_f32 %s, %s, s[%d:%d], %s op_sel_hi:[1,1,0] neg_lo:[1,0,0] neg_hi:[1,0,0]" % (vr(P+r, 2), vr(P+r, 2), S_L2P, S_L2P+1, vr(mn, 2)))
    for r in range(8):
        a("v_exp_f32 v%d, v%d" % (E+r, E+r))
        a("v_exp_f32 v%d, v%d" % (P+r, P+r))
    a("v_pk_add_f32 %s, %s, %s" % (vr(mx, 2), vr(E, 2), vr(E+2, 2)))
    a("v_pk_add_f32 %s, %s, %s" % (vr(mn, 2), vr(P, 2), vr(P+2, 2)))
    for r in (4, 6):
        a("v_pk_add_f32 %s, %s, %s" % (vr(mx, 2), vr(mx, 2), vr(E+r, 2)))
        a("v_pk_add_f32 %s, %s, %s" % (vr(mn, 2), vr(mn, 2), vr(P+r, 2)))
    a("v_add_f32 v%d, v%d, v%d" % (sp, mx, mx+1))
    a("v_add_f32 v%d, v%d, v%d" % (sn, mn, mn+1))
    for sw in ("v_permlane16_swap_b32", "v_permlane32_swap_b32"):
        a("v_mov_b32 v%d, v%d" % (t0, sp))
        a("v_mov_b32 v%d, v%d" % (t1, sn))
        a("%s v%d, v%d" % (sw, sp, t0))
        a("%s v%d, v%d" % (sw, sn, t1))
        a("v_add_f32 v%d, v%d, v%d" % (sp, sp, t0))
        a("v_add_f32 v%d, v%d, v%d" % (sn, sn, t1))
    a("v_rcp_f32 v%d, v%d" % (mx, sp))
    a("v_rcp_f32 v%d, v%d" % (mn, sn))
    for r in range(0, 8, 2):
        a("v_pk_mul_f32 %s, %s, %s op_sel_hi:[1,0]" % (vr(E+r, 2), vr(E+r, 2), vr(mx, 2)))
        a("v_pk_mul_f32 %s, %s, %s op_sel_hi:[1,0]" % (vr(P+r, 2), vr(P+r, 2), vr(mn, 2)))
    for (o, X) in ((outP, E), (outN, P)):
        for d in range(4): a("v_cvt_pk_bf16_f32 v%d, v%d, v%d" % (o + d, X + 2*d, X + 2*d + 1))
    return L

def interleave(a, *lists):
    n = max(len(l) for l in lists)
    for k in range(n):
        for l in lists:
            if k < len(l): a(l[k])

def feature_map(a, WP, XFr, outs):
    for t0 in (0, 2):
        sets = []
        for k in range(2):
            PK = 16 + 32*k
            MF(a, PK, WP, XFr + 4*(t0 + k), None)
            MF(a, PK + 4, WP + 4, XFr + 4*(t0 + k), None)
        for k in range(2):
            PK = 16 + 32*k
            sets.append(softmax16_list(PK, PK + 8, PK + 16, outs[t0 + k][0], outs[t0 + k][1]))
        interleave(a, *sets)

def wphi_frags(a, WP, sj):
    a("v_lshrrev_b32 v11, 4, v1")
    a("v_bfe_u32 v12, v1, 2, 2")
    a("v_and_b32 v13, 3, v1")
    a("v_lshlrev_b32 v14, 8, v11")
    a("v_lshl_add_u32 v14, v12, 6, v14")
    a("v_lshl_add_u32 v14, v13, 3, v14")
    a("s_lshl_b32 s70, s%d, 11" % sj)
    a("s_add_u32 s70, s70, %d" % L1_WPHI)
    a("v_add_u32 v14, s70, v14")
    for b in range(2):
        for e in range(2):
            a("ds_read_b64_tr_b16 %s, v14 offset:%d" % (vr(WP + 4*b + 2*e, 2), e * 1024 + b * 32))

def base_cfg(name):
    c = Cfg(); c.name = name
    c.koff = None; c.loader_pre = None; c.jump_at = None; c.jump = None; c.LB = 0; c.rot = None; c.peel_at = 0; c.helper_stage = None
    c.VXA = 2; c.VWA = 6; c.reads_per_gap = 1
    return c

L1_WPHI = 122880; L1_KVF = 126976; L1_ZF = 135168
L1_ST = 135424; L1_CS = 136448; L1_CSA = 137216; L_NONCE = L_TOP
def p1_cfg():
    c = base_cfg("p1"); c.NB = 6; c.TNI = 6
    c.xmode = "row"; c.wmode = "pair"; c.NST = 16; c.NS = 3; c.flag = False
    c.ldx = 2048; c.ldw = 6144; c.strip = [0, 2048, 4096]; c.ntile_bytes = 128
    c.SS = 16384 + 6 * 4096
    c.orient = ["T", "T", "T", "T", "N", "N"]
    c.tmap = lambda a, c: tile_map(a, 8, 4)
    c.wwave_off = 256
    c.wtile = lambda b: (2 * (b >> 1), b & 1, c.VWA + (b & 1))
    c.ACC = [[16 + (t * 6 + b) * 4 for b in range(6)] for t in range(4)]
    c.XF = [[112 + p * 16 + t * 4 for t in range(4)] for p in range(2)]
    c.WF = [[144 + p * 24 + b * 4 for b in range(6)] for p in range(2)]
    def srds_loader(a, c):
        srd(a, SX, P_X, 0, SZ_ACT)
        srd(a, SW, P_WQKV, 0, 1024*3072*2)
        srd(a, SA, P_WPHI, 0, 32*2048)
    c.srds_loader = srds_loader
    def loader_pre(a, c):
        a("v_lshlrev_b32 v20, 4, v1")
        a("s_lshl_b32 s70, s5, 12")
        a("s_lshl_b32 s71, s7, 11")
        a("s_add_u32 s70, s70, s71")
        a("s_add_u32 m0, s71, %d" % L1_WPHI)
        a("s_nop 0")
        a("buffer_load_dwordx4 v20, %s, s70 offen lds" % S(SA))
        a("buffer_load_dwordx4 v20, %s, s70 offen offset:1024 lds" % S(SA))
        return 2
    c.loader_pre = loader_pre
    def rot(a, c):
        a("s_add_u32 s86, s4, s5")
        a("s_and_b32 s86, s86, 15")
    c.rot = rot; c.peel_at = G.p1peel; c.helper_stage = None
    if G.touch_mode == 1:
        c.tail_touch = lambda a, c: ((code_prefetch(a, 30) if G.jit_cpf else 0) + touches(a, [(P_WO, 1024*1024*2), (P_W1, 1024*3584*2)], 200, SR=SB))
    if G.touch_mode == 4:
        c.tail_touch = lambda a, c: touches(a, [(P_WO, 1024*1024*2)], 200, SR=SB)
    if G.touch_mode == 5:
        c.tail_touch = lambda a, c: touches(a, [(P_WO, 1024*1024*2), (P_W1, 512*3584*2)], 200, SR=SB)
    if G.touch_mode == 3:
        c.trickle = [(P_WO, 1024*1024*2, 3, 0), (P_W1, 1024*3584*2, 6, 0)]
        if G.jit_cpf: c.tail_touch = lambda a, c: code_prefetch(a, 30)
    if G.touch_mode == 2:
        c.tail_touch = lambda a, c: touches(a, [(P_WO, 1024*1024*2), (P_W1, 1024*3584*2), (P_W2, 3584*1024*2)], 200, SR=SB)
    ONES, CS, RS, RQ = 192, 196, 220, 236
    def extra0(c, p, s):
        out = []
        for b in range(6):
            d = CS + 4*b
            out.append("%s %s, %s, %s, %s" % (MF16, vr(d, 4), vr(c.WF[p][b], 4), vr(ONES, 4), vr(d, 4) if s else "0"))
        for t in range(4):
            d = RS + 4*t
            out.append("%s %s, %s, %s, %s" % (MF16, vr(d, 4), vr(ONES, 4), vr(c.XF[p][t], 4), vr(d, 4) if s else "0"))
            d = RQ + 4*t
            out.append("%s %s, %s, %s, %s" % (MF16, vr(d, 4), vr(c.XF[p][t], 4), vr(c.XF[p][t], 4), vr(d, 4) if s else "0"))
        return out
    c.extra0 = extra0
    def pre_loop(a, c):
        for r in range(4): a("v_mov_b32 v%d, 0x3f803f80" % (ONES + r))
    c.pre_loop = pre_loop
    def after0(a, c):
        a("v_lshrrev_b32 v11, 4, v1")
        a("v_and_b32 v10, 15, v1")
        a("s_cmp_lg_u32 s6, 0")
        a("s_cbranch_scc1 p1a0_nocs")
        a("s_lshl_b32 s70, s7, 7")
        a("s_add_u32 s70, s70, %d" % L1_CSA)
        a("v_lshlrev_b32 v8, 4, v11")
        a("v_add_u32 v8, s70, v8")
        a("s_mov_b32 exec_lo, 0x00010001")
        a("s_mov_b32 exec_hi, 0x00010001")
        for b in range(6):
            a("ds_write_b128 v8, %s offset:%d" % (vr(CS + 4*b, 4), (b >> 1) * 256 + (b & 1) * 64))
        a("s_mov_b64 exec, -1")
        a.label("p1a0_nocs")
        a("s_cmp_lg_u32 s7, 0")
        a("s_cbranch_scc1 p1a0_nors")
        a("v_and_b32 v8, 3, v10")
        a("v_cmp_eq_u32 s[72:73], 1, v8")
        a("v_cmp_eq_u32 s[74:75], 2, v8")
        a("v_cmp_eq_u32 s[76:77], 3, v8")
        a("s_lshl_b32 s70, s6, 9")
        a("s_add_u32 s70, s70, %d" % L1_ST)
        a("v_lshlrev_b32 v9, 3, v10")
        a("v_add_u32 v9, s70, v9")
        for t in range(4):
            d = RQ + 4*t
            a("v_cndmask_b32 v%d, v%d, v%d, s[72:73]" % (RS + 4*t + 1, d, d + 1))
            a("v_cndmask_b32 v%d, v%d, v%d, s[74:75]" % (RS + 4*t + 1, RS + 4*t + 1, d + 2))
            a("v_cndmask_b32 v%d, v%d, v%d, s[76:77]" % (RS + 4*t + 1, RS + 4*t + 1, d + 3))
        a("s_mov_b32 exec_lo, 0x00f0000f")
        a("s_mov_b32 exec_hi, 0xf0000f00")
        for t in range(4):
            a("ds_write_b64 v9, %s offset:%d" % (vr(RS + 4*t, 2), t * 128))
        a("s_mov_b64 exec, -1")
        a.label("p1a0_nors")
    c.after0 = after0
    return c

L3_XT = 139264
def p3_cfg():
    c = base_cfg("p3"); c.NB = 2; c.TNI = 2
    c.xmode = "blk"; c.wmode = "pair"; c.KX = 1024; c.NST = 16; c.NS = 5; c.flag = True
    c.ldw = 2048; c.strip = [0]; c.ntile_bytes = 128
    c.SS = 16384 + 2 * 4096
    c.orient = ["T"] * 2
    c.tmap = lambda a, c: tile_map(a, 4, 8)
    c.wwave_off = 256
    c.wtile = lambda b: (0, b & 1, c.VWA + (b & 1))
    c.ACC = [[16 + (t * 2 + b) * 4 for b in range(2)] for t in range(4)]
    c.XF = [[48 + p * 16 + t * 4 for t in range(4)] for p in range(2)]
    c.WF = [[80 + p * 8 + b * 4 for b in range(2)] for p in range(2)]
    c.reads_per_gap = 2
    def srds_loader(a, c):
        srd(a, SX, P_WS, WS_O, SZ_ACT)
        srd(a, SW, P_WO, 0, 1024*1024*2)
        srd(a, SA, P_X, 0, SZ_ACT)
    c.srds_loader = srds_loader
    def loader_pre(a, c):
        a("v_lshrrev_b32 v10, 3, v1")
        a("v_lshlrev_b32 v10, 11, v10")
        a("v_and_b32 v11, 7, v1")
        a("v_lshrrev_b32 v12, 4, v1")
        a("v_xor_b32 v13, v11, v12")
        a("v_lshl_add_u32 v20, v13, 4, v10")
        a("v_xor_b32 v13, 4, v13")
        a("v_lshl_add_u32 v21, v13, 4, v10")
        a("s_lshl_b32 s70, s4, 7")
        a("s_lshl_b32 s71, s7, 6")
        a("s_add_u32 s70, s70, s71")
        a("s_lshl_b32 s70, s70, 11")
        a("s_lshl_b32 s71, s5, 7")
        a("s_add_u32 s70, s70, s71")
        a("s_lshl_b32 s71, s7, 13")
        a("s_add_u32 s71, s71, %d" % L3_XT)
        for j in range(8):
            a("s_add_u32 m0, s71, %d" % (j * 1024))
            a("s_add_u32 s%d, s70, %d" % (S_TMP, j * 8 * 2048))
            a("buffer_load_dwordx4 v%d, %s, s%d offen lds" % (20 + (j & 1), S(SA), S_TMP))
        return 8
    c.loader_pre = loader_pre
    if G.touch_mode == 1:
        c.tail_touch = lambda a, c: ((code_prefetch(a, 30) if G.jit_cpf else 0) + touches(a, [(P_W2, 3584*1024*2)], 200, SR=SB))
    if G.touch_mode == 4:
        c.tail_touch = lambda a, c: touches(a, [(P_W1, 1024*3584*2)], 200, SR=SB)
    if G.touch_mode == 5:
        def tt(a, c):
            a("s_add_u32 s76, s%d, %d" % (P_W1, 512*3584*2)); a("s_addc_u32 s77, s%d, 0" % (P_W1 + 1))
            return touches(a, [(76, 512*3584*2), (P_W2, 1792*1024*2)], 200, SR=SB)
        c.tail_touch = tt
    if G.touch_mode == 3:
        c.trickle = [(P_W1, 1024*3584*2, 4, 78)]
        if G.jit_cpf: c.tail_touch = lambda a, c: code_prefetch(a, 30)
    return c

L4_TAB = 135168
def p4_cfg():
    c = base_cfg("p4"); c.NB = 7; c.TNI = 7
    c.xmode = "blk"; c.wmode = "lin7"; c.KX = 1024; c.NST = 16; c.NS = 3; c.flag = True
    c.ldw = 7168; c.ntile_bytes = 448
    c.SS = 16384 + 7 * 4096
    c.orient = ["T"] * 7
    c.tmap = lambda a, c: tile_map(a, 8, 4)
    c.wtile = lambda b: (b >> 1, b & 1, c.VWA + (b & 1))
    c.ACC = [[16 + (t * 7 + b) * 4 for b in range(7)] for t in range(4)]
    c.XF = [[128 + p * 16 + t * 4 for t in range(4)] for p in range(2)]
    c.WF = [[160 + p * 28 + b * 4 for b in range(7)] for p in range(2)]
    def srds_loader(a, c):
        srd(a, SX, P_WS, WS_H, SZ_ACT)
        srd(a, SW, P_W1, 0, 1024*3584*2)
    c.srds_loader = srds_loader
    if G.jit_cpf: c.tail_touch = lambda a, c: code_prefetch(a, 30)
    if G.touch_mode == 3: c.trickle = [(P_W2, 3584*1024*2, 9, 0)]
    if G.touch_mode == 4: c.tail_touch = lambda a, c: touches(a, [(P_W2, 3584*1024*2)], 200, SR=SB)
    if G.touch_mode == 5:
        def tt4(a, c):
            a("s_add_u32 s76, s%d, %d" % (P_W2, 1792*1024*2)); a("s_addc_u32 s77, s%d, 0" % (P_W2 + 1))
            return touches(a, [(76, 1792*1024*2)], 200, SR=SB)
        c.tail_touch = tt4
    def rot(a, c): a("s_mov_b32 s86, s4")
    c.rot = None if G.x_norot4 else rot
    ONES, CS = 244, 216
    def extra0(c, p, s):
        return ["%s %s, %s, %s, %s" % (MF16, vr(CS + 4*b, 4), vr(c.WF[p][b], 4), vr(ONES, 4), vr(CS + 4*b, 4) if s else "0") for b in range(7)]
    c.extra0 = extra0
    def pre_loop(a, c):
        for r in range(4): a("v_mov_b32 v%d, 0x3f803f80" % (ONES + r))
    c.pre_loop = pre_loop
    def after0(a, c):
        a("s_cmp_lg_u32 s6, 0")
        a("s_cbranch_scc1 p4a0_nocs")
        a("s_mul_i32 s70, s7, 448")
        a("s_add_u32 s70, s70, %d" % (L4_TAB + 3072))
        a("v_lshrrev_b32 v8, 4, v1")
        a("v_lshlrev_b32 v8, 4, v8")
        a("v_add_u32 v8, s70, v8")
        a("s_mov_b32 exec_lo, 0x00010001")
        a("s_mov_b32 exec_hi, 0x00010001")
        for b in range(7):
            a("ds_write_b128 v8, %s offset:%d" % (vr(CS + 4*b, 4), b * 64))
        a("s_mov_b64 exec, -1")
        a.label("p4a0_nocs")
    c.after0 = after0
    return c

KSEND, KKEEP = 24, 32
def p5_tmap(a, c):
    a("s_and_b32 s82, s30, 1")
    a("s_lshr_b32 s4, s30, 1")
    a("s_lshl_b32 s4, s4, 2")
    a("s_and_b32 s%d, s31, 3" % S_TMP)
    a("s_add_u32 s4, s4, s%d" % S_TMP)
    a("s_lshr_b32 s5, s31, 2")
def p5_cfg():
    c = base_cfg("p5"); c.NB = 4; c.TNI = 4
    c.xmode = "blk"; c.wmode = "pair"; c.KX = 3584; c.NST = KKEEP; c.NS = 4; c.flag = True
    c.ldw = 2048; c.strip = [0, 128]; c.ntile_bytes = 256
    c.SS = 16384 + 4 * 4096
    c.orient = ["T"] * 4
    c.tmap = p5_tmap
    c.wwave_off = 1024
    c.wtile = lambda b: (b >> 1, b & 1, c.VWA + (b & 1))
    c.ACC = [[16 + (t * 4 + b) * 4 for b in range(4)] for t in range(4)]
    c.XF = [[80 + p * 16 + t * 4 for t in range(4)] for p in range(2)]
    c.WF = [[112 + p * 16 + b * 4 for b in range(4)] for p in range(2)]
    def srds_loader(a, c):
        srd(a, SX, P_WS, WS_F, SZ_F)
        srd(a, SW, P_W2, 0, 3584*1024*2)
    c.srds_loader = srds_loader
    def koff(a, c):
        a("s_mul_i32 s%d, s82, %d" % (S_TMP, KKEEP * 4096))
        a("s_add_u32 s%d, s%d, s%d" % (S_XOFF, S_XOFF, S_TMP))
        a("s_mul_i32 s%d, s82, %d" % (S_TMP, KKEEP * 64 * 2048))
        a("s_add_u32 s%d, s%d, s%d" % (S_WOFF, S_WOFF, S_TMP))
    c.koff = koff
    c.jump_at = KSEND
    def jump(a, c):
        a("s_mul_i32 s%d, s82, %d" % (S_TMP, KKEEP * 4096))
        a("s_sub_u32 s%d, s%d, s%d" % (S_XOFF, S_XOFF, S_TMP))
        a("s_mul_i32 s%d, s82, %d" % (S_TMP, KKEEP * 64 * 2048))
        a("s_sub_u32 s%d, s%d, s%d" % (S_WOFF, S_WOFF, S_TMP))
        if G.p5skip:
            a("s_cmp_lg_u32 s7, s82")
            a("s_cselect_b32 s%d, 0x70000000, s%d" % (S_XOFF, S_XOFF))
    c.jump = jump
    return c

def kv_gather(a, do_z):
    srd(a, SA, P_WS, WS_KVP, 16*16*8192)
    a("v_lshlrev_b32 v8, 4, v1")
    a("s_lshl_b32 s70, s5, 17")
    a("s_lshl_b32 s71, s3, 10")
    a("s_add_u32 s70, s70, s71")
    L = 32
    for m in range(16):
        a("buffer_load_dwordx4 %s, v8, %s, s70 offen sc1" % (vr(L + 4*m, 4), S(SA)))
        if m < 15: a("s_add_u32 s70, s70, 8192")
    if do_z:
        srd(a, SB, P_WS, WS_ZP, 16*16*512)
        a("v_lshlrev_b32 v9, 2, v1")
        a("s_lshl_b32 s72, s5, 13")
        a("s_sub_u32 s73, s3, 6")
        a("s_lshl_b32 s73, s73, 8")
        a("s_add_u32 s72, s72, s73")
        for m in range(16):
            a("buffer_load_dword v%d, v9, %s, s72 offen sc1" % (96 + m, S(SB)))
            if m < 15: a("s_add_u32 s72, s72, 512")
    a("s_mov_b32 s74, 0x00003f80")
    a("s_mov_b32 s75, 0x3f800000")
    A = 16
    for r in range(8): a("v_mov_b32 v%d, 0" % (A + r))
    a("v_mov_b32 v24, s74")
    a("v_mov_b32 v25, s75")
    a("s_waitcnt vmcnt(%d)" % (16 if do_z else 0))
    for m in range(16):
        for d in range(4):
            a("v_dot2c_f32_bf16 v%d, v%d, v24" % (A + 2*d, L + 4*m + d))
            a("v_dot2c_f32_bf16 v%d, v%d, v25" % (A + 2*d + 1, L + 4*m + d))
    for d in range(4): a("v_cvt_pk_bf16_f32 v%d, v%d, v%d" % (28 + d, A + 2*d, A + 2*d + 1))
    a("s_lshl_b32 s71, s3, 10")
    a("s_add_u32 s71, s71, %d" % L1_KVF)
    a("v_add_u32 v8, s71, v8")
    a("ds_write_b128 v8, v[28:31]")
    if do_z:
        a("s_waitcnt vmcnt(0)")
        for m in range(1, 16): a("v_add_f32 v96, v96, v%d" % (96 + m))
        a("v_cvt_pk_bf16_f32 v96, v96, v96")
        a("v_lshlrev_b32 v9, 1, v1")
        a("s_sub_u32 s73, s3, 6")
        a("s_lshl_b32 s73, s73, 7")
        a("s_add_u32 s73, s73, %d" % L1_ZF)
        a("v_add_u32 v9, s73, v9")
        a("ds_write_b16 v9, v96")
    a("s_waitcnt lgkmcnt(0)")

def off_mn(a):
    a("s_lshl_b32 s70, s4, 7")
    a("s_lshl_b32 s71, s5, 3")
    a("s_add_u32 s71, s71, s70")
def off_nm(a):
    a("s_lshl_b32 s70, s5, 7")
    a("s_lshl_b32 s71, s4, 3")
    a("s_add_u32 s71, s71, s70")

def compute_role(a):
    R = Role(a)
    a("s_lshr_b32 s6, s3, 1")
    a("s_and_b32 s7, s3, 1")
    if G.st_touch:
        a("s_lshl_b32 s76, s2, 2")
        a("s_add_u32 s76, s76, s3")
        start_touch(a, 76, 1)
    c = p1_cfg()
    c.tmap(a, c)
    compute_addr(a, c)
    zero_acc(a, c)
    c.pre_loop(a, c)
    R.bar()
    stamp(a, 1); cstamp(a, 32)
    mainloop(R, c)
    stamp(a, 2); cstamp(a, 33)
    p1_epilogue(R, c)
    if G.stop_after <= 1: return R
    c = p3_cfg()
    c.tmap(a, c)
    compute_addr(a, c)
    zero_acc(a, c)
    R.bar()
    R.bar()
    R.bar()
    stamp(a, 6); cstamp(a, 34)
    mainloop(R, c)
    stamp(a, 7); cstamp(a, 35)
    p3_epilogue(a, c)
    if G.stop_after > 3: R.bar()
    a("s_waitcnt vmcnt(0)")
    publish_flag(a, 2, off_mn, FL_C)
    stamp(a, 8)
    if G.stop_after <= 3: return R
    c = p4_cfg()
    c.tmap(a, c)
    compute_addr(a, c)
    zero_acc(a, c)
    c.pre_loop(a, c)
    R.bar(); R.bar()
    stamp(a, 9); cstamp(a, 36)
    mainloop(R, c)
    stamp(a, 10); cstamp(a, 37)
    p4_epilogue(a, c)
    if G.stop_after > 4: R.bar()
    a("s_waitcnt vmcnt(0)")
    publish_flag(a, 3, off_mn, FL_D)
    stamp(a, 11)
    if G.stop_after <= 4: return R
    c = p5_cfg()
    c.tmap(a, c)
    compute_addr(a, c)
    zero_acc(a, c)
    R.bar()
    p5_pre(a, c)
    R.bar()
    stamp(a, 12); cstamp(a, 38)
    a("s_cmp_eq_u32 s6, s82")
    if G.p5pre:
        a("s_cselect_b32 s81, %d, %d" % (KKEEP - 2, KSEND))
        mainloop(R, c, niter_sgpr=81, nbar=KKEEP - 2, tail=False)
        a("s_cmp_eq_u32 s6, s82")
        a("s_cbranch_scc0 p5_loopdone")
        p5_fetch_partial(a, c)
        c.name = "p5b"
        a("s_mov_b32 s%d, 0" % S_CNT)
        a.label("p5b_loop")
        stage_body(R, c, count_bar=2)
        a("s_add_u32 s%d, s%d, 1" % (S_CNT, S_CNT))
        a("s_cmp_lt_u32 s%d, 2" % S_CNT)
        a("s_cbranch_scc1 p5b_loop")
        a.label("p5_loopdone")
        a("s_waitcnt lgkmcnt(0)")
    else:
        a("s_cselect_b32 s81, %d, %d" % (KKEEP, KSEND))
        mainloop(R, c, niter_sgpr=81, nbar=KKEEP)
    stamp(a, 13); cstamp(a, 39)
    p5_epilogue(a, c)
    return R

L1_QL = 65536
def p1_epilogue(R, c):
    a = R.a
    a("v_mov_b32 v14, %d" % L_NONCE)
    a("ds_read_b64 v[8:9], v14")
    a("s_mov_b32 s%d, 0x%x" % (S_L2P, LOG2E))
    a("s_mov_b32 s%d, 0x%x" % (S_L2P + 1, LOG2E))
    srd(a, SA, P_WS, WS_KVP, 16*16*8192)
    srd(a, SB, P_WS, WS_ZP, 16*16*512)
    WP = 112
    wphi_frags(a, WP, 7)
    a("v_and_b32 v10, 15, v1")
    a("v_bfe_u32 v12, v1, 2, 2")
    a("v_and_b32 v13, 3, v1")
    LS = 192
    a("s_lshl_b32 s70, s6, 9")
    a("s_add_u32 s70, s70, %d" % L1_ST)
    a("v_lshlrev_b32 v14, 3, v10")
    a("v_add_u32 v14, s70, v14")
    for t in range(4): a("ds_read_b64 %s, v14 offset:%d" % (vr(LS + 2*t, 2), t * 128))
    a("s_lshl_b32 s71, s7, 7")
    a("s_add_u32 s71, s71, %d" % L1_CS)
    a("v_lshlrev_b32 v15, 4, v11")
    a("v_add_u32 v15, s71, v15")
    for b in range(4): a("ds_read_b128 %s, v15 offset:%d" % (vr(232 + 4*b, 4), (b >> 1) * 256 + (b & 1) * 64))
    a("v_lshlrev_b32 v14, 5, v11")
    a("v_add_u32 v14, s70, v14")
    for t in range(4):
        for hh in range(2): a("ds_read_b128 %s, v14 offset:%d" % (vr(200 + 8*t + 4*hh, 4), t * 128 + hh * 16))
    a("v_lshlrev_b32 v14, 2, v10")
    a("v_add_u32 v14, s71, v14")
    for nt in range(2): a("ds_read_b32 v%d, v14 offset:%d" % (248 + nt, 512 + nt * 64))
    a("s_waitcnt lgkmcnt(0)")
    a("v_readfirstlane_b32 s%d, v8" % S_NONCE)
    a("v_readfirstlane_b32 s%d, v9" % (S_NONCE + 1))
    def ln_T(t, b):
        acc = c.ACC[t][b]
        for r in (0, 2):
            a("v_pk_mul_f32 %s, %s, %s op_sel:[0,1] op_sel_hi:[1,1]" % (vr(250 + r, 2), vr(232 + 4*b + r, 2), vr(LS + 2*t, 2)))
        for r in (0, 2):
            a("v_pk_fma_f32 %s, %s, %s, %s op_sel:[0,0,0] op_sel_hi:[1,0,1]" % (vr(acc + r, 2), vr(acc + r, 2), vr(LS + 2*t, 2), vr(250 + r, 2)))
    QF = 120; KF = 136; VF = 152
    a("v_lshlrev_b32 v15, 4, v1")
    a("s_lshl_b32 s70, s3, 12")
    a("s_add_u32 s70, s70, %d" % L1_QL)
    a("v_add_u32 v15, s70, v15")
    for t in range(4):
        ln_T(t, 0); ln_T(t, 1)
        pack4(a, QF + 4*t, c.ACC[t][0], c.ACC[t][1])
        a("ds_write_b128 v15, %s offset:%d" % (vr(QF + 4*t, 4), t * 1024))
    a("s_waitcnt lgkmcnt(0)")
    stamp(a, 40)
    R.bar()
    stamp(a, 41)
    for t in range(4):
        ln_T(t, 2); ln_T(t, 3)
        pack4(a, KF + 4*t, c.ACC[t][2], c.ACC[t][3])
    for t in range(4):
        for nt in range(2):
            acc = c.ACC[t][4 + nt]
            for r in range(4): a("v_mul_f32 v%d, v%d, v%d" % (250 + r, 200 + 8*t + 2*r + 1, 248 + nt))
            for r in range(4): a("v_fma_f32 v%d, v%d, v%d, v%d" % (acc + r, acc + r, 200 + 8*t + 2*r, 250 + r))
    for u in range(2):
        for nt in range(2):
            pack4(a, VF + (u*2 + nt)*4, c.ACC[2*u][4 + nt], c.ACC[2*u + 1][4 + nt])
    WA = 8; RA = 4
    a("s_lshl_b32 s70, s3, 13")
    a("v_bfe_u32 v14, v10, 1, 2")
    a("v_bfe_u32 v15, v10, 2, 1")
    a("v_lshl_or_b32 v14, v15, 2, v14")
    a("v_xor_b32 v14, v14, v11")
    a("v_lshlrev_b32 v15, 6, v10")
    a("v_lshl_add_u32 v15, v14, 3, v15")
    a("v_add_u32 v%d, s70, v15" % WA)
    a("v_xor_b32 v%d, 32, v%d" % (WA + 1, WA))
    a("v_lshl_add_u32 v14, v11, 2, v12")
    a("v_bfe_u32 v15, v14, 1, 2")
    a("v_bfe_u32 v2, v14, 2, 1")
    a("v_lshl_or_b32 v15, v2, 2, v15")
    a("v_xor_b32 v15, v15, v13")
    a("v_lshlrev_b32 v14, 6, v14")
    a("v_lshl_add_u32 v14, v15, 3, v14")
    a("v_add_u32 v%d, s70, v14" % RA)
    a("v_xor_b32 v%d, 32, v%d" % (RA + 1, RA))
    ONES = 168
    for r in range(4): a("v_mov_b32 v%d, 0x3f803f80" % (ONES + r))
    PHK = 220
    stamp(a, 42)
    feature_map(a, WP, KF, [(PHK + 8*t, PHK + 8*t + 4) for t in range(4)])
    for t in range(4):
        for sg in range(2):
            for b in range(2):
                a("ds_write_b64 v%d, %s offset:%d" % (WA + b, vr(PHK + 8*t + 4*sg + 2*b, 2), sg * 4096 + t * 1024))
    stamp(a, 43)
    KV = 172; Z = 204; PH = 80
    k = 0; frs = []
    for u in range(2):
        for sg in range(2):
            for b in range(2):
                ph = PH + 4*k if k < 8 else None; k += 1
                for e in range(2):
                    a("ds_read_b64_tr_b16 %s, v%d offset:%d" % (vr(ph + 2*e, 2), RA + b, sg * 4096 + u * 2048 + e * 1024))
                frs.append((u, sg, b, ph))
    for n_, (u, sg, b, ph) in enumerate(frs):
        if n_ in (0, 4): a("s_waitcnt lgkmcnt(%d)" % (8 if n_ == 0 else 0))
        for nt in range(2):
            d = KV + ((sg*2 + b)*2 + nt)*4
            MF(a, d, ph, VF + (u*2 + nt)*4, None if u == 0 else d)
        d = Z + (sg*2 + b)*4
        MF(a, d, ph, ONES, None if u == 0 else d)
    stamp(a, 44)
    a("v_lshlrev_b32 v12, 4, v1")
    a("s_lshl_b32 s70, s3, 13")
    a("s_add_u32 s70, s70, 32768")
    a("v_add_u32 v13, s70, v12")
    a("s_xor_b32 s71, s3, 2")
    a("s_lshl_b32 s71, s71, 13")
    a("s_add_u32 s71, s71, 32768")
    a("v_add_u32 v14, s71, v12")
    a("s_cmp_eq_u32 s6, 0")
    a("s_cbranch_scc1 p1e_i0")
    nb0 = R.nb
    for keep, lab in ((1, None), (0, "p1e_i0")):
        if lab: a.label(lab)
        send = 1 - keep
        for q in range(4):
            a("ds_write_b128 v13, %s offset:%d" % (vr(KV + send*16 + 4*q, 4), q * 1024))
        for q in range(2):
            a("ds_write_b128 v13, %s offset:%d" % (vr(Z + send*8 + 4*q, 4), 4096 + q * 1024))
        a("s_waitcnt lgkmcnt(0)")
        R.nb = nb0
        R.bar()
        X = 48
        for q in range(4):
            a("ds_read_b128 %s, v14 offset:%d" % (vr(X + 4*q, 4), q * 1024))
        for q in range(2):
            a("ds_read_b128 %s, v14 offset:%d" % (vr(X + 16 + 4*q, 4), 4096 + q * 1024))
        a("s_lshl_b32 s70, s5, 4")
        a("s_add_u32 s70, s70, s4")
        a("s_lshl_b32 s72, s70, 9")
        a("s_lshl_b32 s70, s70, 3")
        a("s_lshl_b32 s71, s7, 2")
        a("s_add_u32 s70, s70, s71")
        a("s_add_u32 s70, s70, %d" % (keep * 2))
        a("s_lshl_b32 s70, s70, 10")
        a("s_lshl_b32 s71, s7, 8")
        a("s_add_u32 s72, s72, s71")
        a("s_add_u32 s72, s72, %d" % (keep * 128))
        a("v_lshlrev_b32 v15, 5, v11")
        a("s_waitcnt lgkmcnt(0)")
        for r in range(0, 16, 2): a("v_pk_add_f32 %s, %s, %s" % (vr(KV + keep*16 + r, 2), vr(KV + keep*16 + r, 2), vr(X + r, 2)))
        for r in range(0, 8, 2): a("v_pk_add_f32 %s, %s, %s" % (vr(Z + keep*8 + r, 2), vr(Z + keep*8 + r, 2), vr(X + 16 + r, 2)))
        for nt in range(2):
            pack4(a, X + 4*nt, KV + (keep*4 + 0 + nt)*4, KV + (keep*4 + 2 + nt)*4)
            a("buffer_store_dwordx4 %s, v12, %s, s70 offen offset:%d sc1" % (vr(X + 4*nt, 4), S(SA), nt * 1024))
        a("s_mov_b32 exec_lo, 0x00010001")
        a("s_mov_b32 exec_hi, 0x00010001")
        for b in range(2):
            a("buffer_store_dwordx4 %s, v15, %s, s72 offen offset:%d sc1" % (vr(Z + keep*8 + 4*b, 4), S(SB), b * 16))
        a("s_mov_b64 exec, -1")
        if keep == 1: a("s_branch p1e_done")
    a.label("p1e_done")
    stamp(a, 45)
    a("s_waitcnt vmcnt(0)")
    stamp(a, 46)
    publish_flag(a, 0, off_nm, FL_A)
    stamp(a, 3)
    R.bar()
    stamp(a, 4)
    kv_gather(a, False)
    R.bar()
    stamp(a, 5)

def aux_q_part1(a):
    a("s_sub_u32 s92, s3, 4")
    a("s_and_b32 s93, s92, 1")
    a("s_mov_b32 s%d, 0x%x" % (S_L2P, LOG2E))
    a("s_mov_b32 s%d, 0x%x" % (S_L2P + 1, LOG2E))
    WP = 112; QF = 160
    a("v_lshlrev_b32 v15, 4, v1")
    a("s_lshl_b32 s70, s92, 12")
    a("s_add_u32 s70, s70, %d" % L1_QL)
    a("v_add_u32 v15, s70, v15")
    for t in range(4): a("ds_read_b128 %s, v15 offset:%d" % (vr(QF + 4*t, 4), t * 1024))
    a("v_mov_b32 v14, %d" % L_NONCE)
    a("ds_read_b64 v[8:9], v14")
    wphi_frags(a, WP, 93)
    a("s_lshr_b32 s92, s92, 1")
    a("s_waitcnt lgkmcnt(0)")
    a("v_readfirstlane_b32 s%d, v8" % S_NONCE)
    a("v_readfirstlane_b32 s%d, v9" % (S_NONCE + 1))
    feature_map(a, WP, QF, [(128 + 8*t, 128 + 8*t + 4) for t in range(4)])

def aux_q_part2(a):
    PHQ = 128
    srd(a, SC, P_WS, WS_O, SZ_ACT)
    a("v_lshrrev_b32 v11, 4, v1")
    a("v_lshlrev_b32 v12, 4, v1")
    a("s_lshl_b32 s70, s93, 12")
    a("s_add_u32 s70, s70, %d" % L1_KVF)
    a("v_add_u32 v13, s70, v12")
    KF2 = 112; ZF2 = 160
    for k in range(4): a("ds_read_b128 %s, v13 offset:%d" % (vr(KF2 + 4*k, 4), k * 1024))
    a("s_lshl_b32 s70, s93, 7")
    a("s_add_u32 s70, s70, %d" % L1_ZF)
    a("v_lshlrev_b32 v14, 4, v11")
    a("v_add_u32 v14, s70, v14")
    for sg in range(2): a("ds_read_b128 %s, v14 offset:%d" % (vr(ZF2 + 4*sg, 4), sg * 64))
    a("s_lshl_b32 s70, s4, 2")
    a("s_lshl_b32 s71, s92, 1")
    a("s_add_u32 s70, s70, s71")
    a("s_lshl_b32 s70, s70, 7")
    a("s_lshl_b32 s71, s5, 3")
    a("s_add_u32 s70, s70, s71")
    a("s_lshl_b32 s71, s93, 2")
    a("s_add_u32 s70, s70, s71")
    a("s_lshl_b32 s70, s70, 9")
    a("s_lshl_b32 s88, s4, 7")
    a("s_lshl_b32 s71, s5, 3")
    a("s_add_u32 s88, s88, s71")
    a("s_waitcnt lgkmcnt(0)")
    O = 16
    for t in range(4):
        d = 48 + 4*t
        MF(a, d, ZF2, PHQ + t*8, None)
        MF(a, d, ZF2 + 4, PHQ + t*8 + 4, d)
    for t in range(4):
        for nt in range(2):
            d = O + (t*2 + nt)*4
            MF(a, d, KF2 + (0*2 + nt)*4, PHQ + t*8, None)
            MF(a, d, KF2 + (1*2 + nt)*4, PHQ + t*8 + 4, d)
    for t in range(4): a("v_add_f32 v%d, 0x358637bd, v%d" % (64 + 2*t, 48 + 4*t))
    for t in range(4): a("v_rcp_f32 v%d, v%d" % (64 + 2*t, 64 + 2*t))
    for t in range(4):
        for r in range(0, 8, 2): a("v_pk_mul_f32 %s, %s, %s op_sel_hi:[1,0]" % (vr(O + t*8 + r, 2), vr(O + t*8 + r, 2), vr(64 + 2*t, 2)))
    for u in range(2):
        for nt in range(2):
            P = 72 + (u*2 + nt)*4
            pack_pair(a, O + (2*u*2 + nt)*4, O + ((2*u + 1)*2 + nt)*4, P)
            a("buffer_store_dwordx4 %s, v12, %s, s70 offen offset:%d sc1" % (vr(P, 4), S(SC), nt * 1024))
        if u == 0: a("s_add_u32 s70, s70, %d" % (128 * 512))

def p3_epilogue(a, c):
    srd(a, SA, P_WS, WS_H, SZ_ACT)
    srd(a, SB, P_WS, WS_HSTP, 32*2048*8)
    a("v_and_b32 v10, 15, v1")
    a("v_lshrrev_b32 v11, 4, v1")
    a("v_bfe_u32 v12, v10, 1, 3")
    a("v_lshrrev_b32 v13, 1, v11")
    a("s_lshl_b32 s70, s7, 2")
    a("v_add_u32 v13, s70, v13")
    a("v_xor_b32 v12, v12, v13")
    a("s_lshl_b32 s70, s6, 13")
    a("s_add_u32 s70, s70, %d" % L3_XT)
    a("v_lshlrev_b32 v13, 7, v10")
    a("v_and_b32 v14, 1, v11")
    a("v_lshl_add_u32 v13, v14, 3, v13")
    a("v_add_u32 v13, s70, v13")
    a("v_lshl_add_u32 v96, v12, 4, v13")
    a("v_xor_b32 v12, 2, v12")
    a("v_lshl_add_u32 v97, v12, 4, v13")
    XR = 100
    for t in range(4):
        for b in range(2):
            a("ds_read_b64 %s, v%d offset:%d" % (vr(XR + (t*2 + b)*2, 2), 96 + b, t * 2048))
    a("v_lshlrev_b32 v15, 4, v1")
    a("s_lshl_b32 s70, s4, 2")
    a("s_lshl_b32 s71, s6, 1")
    a("s_add_u32 s70, s70, s71")
    a("s_mov_b32 s72, s70")
    a("s_lshl_b32 s70, s70, 7")
    a("s_lshl_b32 s71, s5, 3")
    a("s_add_u32 s70, s70, s71")
    a("s_lshl_b32 s71, s7, 2")
    a("s_add_u32 s70, s70, s71")
    a("s_lshl_b32 s70, s70, 9")
    a("s_lshl_b32 s71, s5, 1")
    a("s_add_u32 s71, s71, s7")
    a("s_lshl_b32 s71, s71, 11")
    a("s_lshl_b32 s73, s72, 5")
    a("s_add_u32 s71, s71, s73")
    a("s_lshl_b32 s71, s71, 3")
    a("v_lshlrev_b32 v9, 3, v10")
    a("v_and_b32 v14, 1, v11")
    a("v_lshl_add_u32 v9, v14, 2, v9")
    a("v_lshrrev_b32 v14, 1, v11")
    a("v_lshl_add_u32 v9, v14, 7, v9")
    a("v_and_b32 v14, 1, v11")
    a("v_cmp_eq_u32 s[74:75], 0, v14")
    a("v_cmp_gt_u32 s[76:77], 2, v11")
    a("s_waitcnt lgkmcnt(0)")
    St = 120; P = 128
    for u in range(2):
        for tt in range(2):
            t = 2*u + tt
            for b in range(2):
                acc = c.ACC[t][b]
                for d in range(2):
                    x = XR + (t*2 + b)*2 + d
                    tp = 136 + 2 * (b * 2 + d)
                    a("v_lshlrev_b32 v%d, 16, v%d" % (tp, x))
                    a("v_and_b32 v%d, 0xffff0000, v%d" % (tp + 1, x))
                    a("v_pk_add_f32 %s, %s, %s" % (vr(acc + 2*d, 2), vr(acc + 2*d, 2), vr(tp, 2)))
            s1 = St + 2*tt; s2 = s1 + 1
            A0 = c.ACC[t][0]
            a("v_pk_add_f32 v[144:145], %s, %s" % (vr(A0, 2), vr(A0 + 2, 2)))
            a("v_pk_mul_f32 v[146:147], %s, %s" % (vr(A0, 2), vr(A0, 2)))
            a("v_pk_fma_f32 v[146:147], %s, %s, v[146:147]" % (vr(A0 + 2, 2), vr(A0 + 2, 2)))
            for r in (4, 6):
                a("v_pk_add_f32 v[144:145], v[144:145], %s" % vr(A0 + r, 2))
                a("v_pk_fma_f32 v[146:147], %s, %s, v[146:147]" % (vr(A0 + r, 2), vr(A0 + r, 2)))
            a("v_add_f32 v%d, v144, v145" % s1)
            a("v_add_f32 v%d, v146, v147" % s2)
            xq(a, "v_add_f32", s1, 124)
            xq(a, "v_add_f32", s2, 125)
        a("v_cndmask_b32 v124, v%d, v%d, s[74:75]" % (St + 1, St))
        a("v_cndmask_b32 v125, v%d, v%d, s[74:75]" % (St + 3, St + 2))
        a("v_cndmask_b32 v124, v125, v124, s[76:77]")
        a("buffer_store_dword v124, v9, %s, s71 offen sc1" % S(SB))
        for b in range(2):
            pack_pair(a, c.ACC[2*u][b], c.ACC[2*u + 1][b], P + 4*b)
            a("buffer_store_dwordx4 %s, v15, %s, s70 offen offset:%d sc1" % (vr(P + 4*b, 4), S(SA), b * 1024))
        if u == 0:
            a("s_add_u32 s70, s70, %d" % (128 * 512))
            a("s_add_u32 s71, s71, %d" % (32 * 8))

def p4_epilogue(a, c):
    srd(a, SA, P_WS, WS_F, SZ_F)
    a("v_and_b32 v10, 15, v1")
    a("v_lshrrev_b32 v11, 4, v1")
    a("s_mul_i32 s70, s7, 448")
    a("s_add_u32 s70, s70, %d" % L4_TAB)
    a("v_lshlrev_b32 v12, 4, v11")
    a("v_add_u32 v12, s70, v12")
    a("s_lshl_b32 s70, s6, 9")
    a("s_add_u32 s70, s70, %d" % (L4_TAB + 2048))
    a("v_lshlrev_b32 v13, 3, v10")
    a("v_add_u32 v13, s70, v13")
    ST = 128
    for t in range(4):
        a("ds_read_b64 %s, v13 offset:%d" % (vr(ST + 2*t, 2), t * 128))
    a("v_lshlrev_b32 v15, 4, v1")
    a("s_lshl_b32 s70, s4, 2")
    a("s_lshl_b32 s71, s6, 1")
    a("s_add_u32 s70, s70, s71")
    a("s_mul_i32 s70, s70, 448")
    a("s_mul_i32 s71, s5, 28")
    a("s_add_u32 s70, s70, s71")
    a("s_mul_i32 s71, s7, 14")
    a("s_add_u32 s70, s70, s71")
    a("s_lshl_b32 s70, s70, 9")
    a("s_add_u32 s71, s70, %d" % (448 * 512))
    TB = 136
    for b in range(7):
        a("ds_read_b128 %s, v12 offset:%d" % (vr(TB + 8*b, 4), 64 * b))
        a("ds_read_b128 %s, v12 offset:%d" % (vr(TB + 8*b + 4, 4), 1024 + 64 * b))
    a("v_add_u32 v14, 4096, v15")
    a("s_waitcnt lgkmcnt(0)")
    T = 192; P = 208
    for b in range(7):
        cs = TB + 8*b; b1 = cs + 4
        for t in range(4):
            tmp = T + 4*t
            for r in (0, 2):
                a("v_pk_fma_f32 %s, %s, %s, %s op_sel:[0,1,0] op_sel_hi:[1,1,1]" % (vr(tmp + r, 2), vr(cs + r, 2), vr(ST + 2*t, 2), vr(b1 + r, 2)))
        for t in range(4):
            acc = c.ACC[t][b]; tmp = T + 4*t
            for r in (0, 2):
                a("v_pk_fma_f32 %s, %s, %s, %s op_sel:[0,0,0] op_sel_hi:[1,0,1]" % (vr(acc + r, 2), vr(acc + r, 2), vr(ST + 2*t, 2), vr(tmp + r, 2)))
        for t in range(4):
            acc = c.ACC[t][b]
            for r in range(4): a("v_max_f32 v%d, 0, v%d" % (acc + r, acc + r))
        for t in range(4):
            acc = c.ACC[t][b]
            for r in (0, 2): a("v_pk_mul_f32 %s, %s, %s" % (vr(acc + r, 2), vr(acc + r, 2), vr(acc + r, 2)))
        for u in range(2):
            pk = P + 4*u + 8*(b & 1)
            pack_pair(a, c.ACC[2*u][b], c.ACC[2*u + 1][b], pk)
            off = b * 1024
            so = "s70" if u == 0 else "s71"
            if off < 4096:
                a("buffer_store_dwordx4 %s, v15, %s, %s offen offset:%d sc1" % (vr(pk, 4), S(SA), so, off))
            else:
                a("buffer_store_dwordx4 %s, v14, %s, %s offen offset:%d sc1" % (vr(pk, 4), S(SA), so, off - 4096))

HR5 = 144; BR5 = 176
def p5_pre(a, c):
    srd(a, SA, P_WS, WS_H, SZ_ACT)
    srd(a, SB, P_B2, 0, 2048)
    a("v_and_b32 v10, 15, v1")
    a("v_lshrrev_b32 v11, 4, v1")
    a("v_lshlrev_b32 v12, 4, v10")
    a("v_lshrrev_b32 v13, 1, v11")
    a("v_lshl_add_u32 v12, v13, 9, v12")
    a("v_and_b32 v13, 1, v11")
    a("v_lshl_add_u32 v12, v13, 3, v12")
    a("s_lshl_b32 s70, s4, 2")
    a("s_lshl_b32 s71, s6, 1")
    a("s_add_u32 s70, s70, s71")
    a("s_lshl_b32 s70, s70, 7")
    a("s_lshl_b32 s71, s5, 4")
    a("s_add_u32 s70, s70, s71")
    a("s_lshl_b32 s71, s7, 3")
    a("s_add_u32 s70, s70, s71")
    a("s_lshl_b32 s70, s70, 9")
    a("s_cmp_eq_u32 s6, s82")
    a("s_cbranch_scc0 p5pre_skip")
    for t in range(4):
        for b in range(4):
            a("buffer_load_dwordx2 %s, v12, %s, s70 offen offset:%d sc1" % (vr(HR5 + (t*4 + b)*2, 2), S(SA), b * 1024 + (t & 1) * 256))
        if t == 1: a("s_add_u32 s70, s70, %d" % (128 * 512))
    a("v_lshlrev_b32 v13, 3, v11")
    a("s_lshl_b32 s70, s5, 8")
    a("s_lshl_b32 s71, s7, 7")
    a("s_add_u32 s70, s70, s71")
    for b in range(4):
        a("buffer_load_dwordx2 %s, v13, %s, s70 offen offset:%d" % (vr(BR5 + 2*b, 2), S(SB), b * 32))
    a.label("p5pre_skip")

def p5_fetch_partial(a, c):
    srd(a, SC, P_WS, WS_PX, 128*2*2*16384)
    srd(a, SF, P_WS, WS_FLAG, FLAG_SZ)
    a("s_lshl_b32 s72, s4, 3")
    a("s_add_u32 s72, s72, s5")
    a("s_lshl_b32 s73, s72, 2")
    a("s_xor_b32 s74, s82, 1")
    a("s_lshl_b32 s74, s74, 1")
    a("s_add_u32 s73, s73, s74")
    a("s_add_u32 s73, s73, s7")
    a("s_lshl_b32 s74, s73, 3")
    flag_poll(a, 74, FL_X, 1, vtmp=8)
    a("v_lshlrev_b32 v15, 4, v1")
    a("s_lshl_b32 s74, s73, 14")
    for q in range(16):
        if q and q % 4 == 0: a("s_add_u32 s74, s74, 4096")
        a("buffer_load_dwordx4 %s, v15, %s, s74 offen offset:%d sc1" % (vr(184 + 4*q, 4), S(SC), (q % 4) * 1024))

def p5_epilogue(a, c):
    srd(a, SC, P_WS, WS_PX, 128*2*2*16384)
    srd(a, SD, P_OUT, 0, SZ_ACT)
    srd(a, SF, P_WS, WS_FLAG, FLAG_SZ)
    a("s_lshl_b32 s72, s4, 3")
    a("s_add_u32 s72, s72, s5")
    a("v_lshlrev_b32 v15, 4, v1")
    a("s_cmp_eq_u32 s6, s82")
    a("s_cbranch_scc1 p5_keep")
    a("s_lshl_b32 s73, s72, 2")
    a("s_lshl_b32 s74, s82, 1")
    a("s_add_u32 s73, s73, s74")
    a("s_add_u32 s73, s73, s7")
    a("s_lshl_b32 s74, s73, 14")
    for q in range(16):
        if q and q % 4 == 0: a("s_add_u32 s74, s74, 4096")
        a("buffer_store_dwordx4 %s, v15, %s, s74 offen offset:%d sc1" % (vr(16 + 4*q, 4), S(SC), (q % 4) * 1024))
    for k in range(KSEND, KKEEP):
        a("s_barrier")
        if k == KSEND + 3:
            a("s_waitcnt vmcnt(0)")
            a("s_lshl_b32 s74, s73, 3")
            flag_write(a, 74, FL_X)
    a("s_endpgm")
    a.label("p5_keep")
    PR = 184
    if not G.p5pre: p5_fetch_partial(a, c)
    a("v_and_b32 v10, 15, v1")
    a("v_lshrrev_b32 v11, 4, v1")
    a("v_and_b32 v13, 1, v11")
    a("v_lshl_add_u32 v12, v13, 4, v10")
    a("v_lshlrev_b32 v12, 11, v12")
    a("v_lshrrev_b32 v13, 1, v11")
    a("v_lshl_add_u32 v12, v13, 4, v12")
    a("s_lshl_b32 s70, s4, 7")
    a("s_lshl_b32 s71, s6, 6")
    a("s_add_u32 s70, s70, s71")
    a("s_lshl_b32 s70, s70, 11")
    a("s_lshl_b32 s71, s5, 8")
    a("s_add_u32 s70, s70, s71")
    a("s_lshl_b32 s71, s7, 7")
    a("s_add_u32 s70, s70, s71")
    BF = 80
    a("s_waitcnt vmcnt(16)")
    for b in range(4):
        for d in range(2):
            a("v_lshlrev_b32 v%d, 16, v%d" % (BF + 4*b + 2*d, BR5 + 2*b + d))
            a("v_and_b32 v%d, 0xffff0000, v%d" % (BF + 4*b + 2*d + 1, BR5 + 2*b + d))
    for t in range(4):
        for b in range(4):
            acc = c.ACC[t][b]
            for d in range(2):
                x = HR5 + (t*4 + b)*2 + d
                tp = 112 + 2 * ((b * 2 + d) & 7)
                a("v_lshlrev_b32 v%d, 16, v%d" % (tp, x))
                a("v_and_b32 v%d, 0xffff0000, v%d" % (tp + 1, x))
                a("v_pk_add_f32 %s, %s, %s" % (vr(acc + 2*d, 2), vr(acc + 2*d, 2), vr(BF + 4*b + 2*d, 2)))
                a("v_pk_add_f32 %s, %s, %s" % (vr(acc + 2*d, 2), vr(acc + 2*d, 2), vr(tp, 2)))
    a("s_waitcnt vmcnt(0)")
    for r in range(0, 64, 2): a("v_pk_add_f32 %s, %s, %s" % (vr(16 + r, 2), vr(16 + r, 2), vr(PR + r, 2)))
    P = 96
    for u in range(2):
        for b in range(4):
            pk = P + 4 * (b & 1) + 8 * u
            pack_pair(a, c.ACC[2*u][b], c.ACC[2*u + 1][b], pk)
            a("buffer_store_dwordx4 %s, v12, %s, s70 offen offset:%d" % (vr(pk, 4), S(SD), b * 32))
        if u == 0: a("s_add_u32 s70, s70, %d" % (32 * 2048))
    stamp(a, 14)

def loader_role(a):
    R = Role(a)
    a("s_sub_u32 s7, s3, 4")
    c = p1_cfg()
    loader_phase(R, c)
    R.bar()
    aux_q_part1(a)
    R.bar()
    R.bar()
    kv_gather(a, False)
    R.bar()
    aux_q_part2(a)
    def pubB(a, nyounger):
        a("s_waitcnt vmcnt(%d)" % nyounger)
        publish_flag(a, 1, lambda a: a("s_mov_b32 s71, s88"), FL_B)
    if G.stop_after <= 1:
        pubB(a, 0); return R
    a("s_sub_u32 s7, s3, 4")
    c3 = p3_cfg(); c3.pre_t_hook = pubB
    loader_phase(R, c3)
    if G.stop_after <= 3: return R
    loader_phase(R, p4_cfg())
    if G.stop_after <= 4: return R
    loader_phase(R, p5_cfg())
    return R

def bar_loop(R, n, name):
    a = R.a
    a("s_mov_b32 s%d, 0" % S_CNT)
    a.label(name)
    R.bar(n)
    a("s_add_u32 s%d, s%d, 1" % (S_CNT, S_CNT))
    a("s_cmp_lt_u32 s%d, %d" % (S_CNT, n))
    a("s_cbranch_scc1 %s" % name)


def touches(a, items, vbase, SR=SX):
    a("s_lshl_b32 s70, s2, 1")
    a("s_add_u32 s70, s70, s7")
    a("s_lshl_b32 s70, s70, 13")
    a("v_lshlrev_b32 v16, 7, v1")
    k = 0
    for (p, nbytes) in items:
        srd(a, SR, p, 0, nbytes)
        n = (nbytes // 8192 + 511) // 512
        a("s_mov_b32 s71, s70")
        for i in range(n):
            a("buffer_load_dword v%d, v16, %s, s71 offen" % (vbase + k, S(SR))); k += 1
            if i < n - 1: a("s_add_u32 s71, s71, %d" % (512 * 8192))
    return k

_cpf = [0]
def code_prefetch(a, vtmp):
    _cpf[0] += 1; k = _cpf[0]
    a("s_getpc_b64 s[72:73]")
    a.label("kp_pc%d" % k)
    a("s_sub_u32 s72, s72, kp_pc%d-kp_kernel" % k)
    a("s_subb_u32 s73, s73, 0")
    a("v_lshlrev_b32 v%d, 7, v1" % vtmp)
    a("s_mov_b32 s75, kp_codeend-kp_kernel")
    NL = 8
    for i in range(NL):
        a("v_cmp_gt_u32 vcc, s75, v%d" % vtmp)
        a("v_cndmask_b32 v%d, 0, v%d, vcc" % (vtmp + 1, vtmp))
        a("global_load_dword v%d, v%d, s[72:73]" % (vtmp + 2, vtmp + 1))
        if i < NL - 1: a("v_add_u32 v%d, 8192, v%d" % (vtmp, vtmp))
    return NL

def start_touch(a, wid_sgpr, batch):
    a("v_lshlrev_b32 v16, 7, v1")
    if batch == 1:
        a("s_cmp_lt_u32 s%d, 512" % wid_sgpr)
        a("s_cbranch_scc0 st_w_%d" % wid_sgpr)
        srd(a, SX, P_X, 0, SZ_ACT)
        a("s_lshl_b32 s71, s%d, 13" % wid_sgpr)
        a("s_branch st_d_%d" % wid_sgpr)
        a.label("st_w_%d" % wid_sgpr)
        srd(a, SX, P_WQKV, 0, 288 * 8192)
        a("s_sub_u32 s71, s%d, 512" % wid_sgpr)
        a("s_lshl_b32 s71, s71, 13")
        a.label("st_d_%d" % wid_sgpr)
    else:
        srd(a, SX, P_WQKV, 0, 1024*3072*2)
        a("s_add_u32 s71, s%d, 288" % wid_sgpr)
        a("s_lshl_b32 s71, s71, 13")
    a("buffer_load_dword v254, v16, %s, s71 offen" % S(SX))

def helper_p1(R):
    a = R.a
    if G.hstage:
        c = p1_cfg()
        c.srds_loader(a, c)
        loader_setup(a, c)
        rot_begin(a, c)
        IX(a, c, 2 * c.SS, k=2); IW(a, c, 2 * c.SS, k=2)
    if G.st_touch:
        a("s_lshl_b32 s75, s2, 1")
        a("s_add_u32 s75, s75, s7")
        a("s_sleep %d" % G.t2sleep)
        start_touch(a, 75, 2)
    if G.tlb_warm:
        srd(a, SX, P_WS, 0, 0x3000000)
        a("v_lshlrev_b32 v16, 21, v1")
        a("v_add_u32 v16, 0x1fff80, v16")
        a("buffer_load_dword v253, v16, %s, 0 offen" % S(SX))
        srd(a, SX, P_OUT, 0, SZ_ACT)
        a("v_lshlrev_b32 v16, 20, v1")
        a("buffer_load_dword v252, v16, %s, 0 offen" % S(SX))
    if G.code_pf:
        a("s_cmp_lg_u32 s7, 1")
        a("s_cbranch_scc1 h_nocpf")
        code_prefetch(a, 30)
        a.label("h_nocpf")
    srd(a, SX, P_DBG, 0, 256)
    a("s_or_b32 s70, s2, s7")
    a("s_cmp_lg_u32 s70, 0")
    a("s_cbranch_scc1 h_nononce")
    a("s_memrealtime s[70:71]")
    a("s_waitcnt lgkmcnt(0)")
    a("s_or_b32 s70, s70, 1")
    a("s_xor_b32 s71, s71, 0x5bd1e995")
    a("v_mov_b32 v20, s70")
    a("v_mov_b32 v21, s71")
    a("v_mov_b32 v22, 0")
    a("s_mov_b64 exec, 1")
    a("buffer_store_dwordx2 v[20:21], v22, %s, 0 offen sc1" % S(SX))
    a("s_mov_b64 exec, -1")
    a.label("h_nononce")
    a("v_mov_b32 v22, 0")
    R.bar()
    a("buffer_load_dwordx2 v[20:21], v22, %s, 0 offen sc1" % S(SX))
    R.bar(); R.bar()
    a("s_mov_b32 s80, 0")
    a.label("h_npoll")
    a("s_waitcnt vmcnt(0)")
    a("v_readfirstlane_b32 s%d, v20" % S_NONCE)
    a("v_readfirstlane_b32 s%d, v21" % (S_NONCE + 1))
    a("s_cmp_lg_u32 s%d, 0" % S_NONCE)
    a("s_cbranch_scc1 h_nok")
    a("buffer_load_dwordx2 v[20:21], v22, %s, 0 offen sc1" % S(SX))
    a("s_add_u32 s80, s80, 1")
    a("s_cmp_lt_u32 s80, 0x40000")
    a("s_cbranch_scc1 h_npoll")
    a.label("h_nok")
    a("v_mov_b32 v22, %d" % L_NONCE)
    a("ds_write_b64 v22, v[20:21]")
    a("s_waitcnt lgkmcnt(0)")
    P = G.p1peel
    for _ in range(P): R.bar()
    a("s_cmp_lg_u32 s7, 0")
    a("s_cbranch_scc1 h1_path")
    nb0 = R.nb; tk0 = R.tk
    srd(a, SC, P_WS, WS_RSP, 16*2048*16)
    a("v_lshlrev_b32 v18, 4, v1")
    a("v_add_u32 v19, %d, v18" % L1_ST)
    a("ds_read_b128 v[24:27], v19")
    a("v_lshlrev_b32 v17, 5, v1")
    a("s_lshl_b32 s70, s5, 11")
    a("s_lshl_b32 s71, s4, 7")
    a("s_add_u32 s70, s70, s71")
    a("s_lshl_b32 s70, s70, 4")
    a("s_waitcnt lgkmcnt(0)")
    a("v_mov_b32 v28, v24\nv_mov_b32 v29, v25\nv_mov_b32 v30, s%d\nv_mov_b32 v31, s%d" % (S_NONCE, S_NONCE))
    a("v_mov_b32 v24, v26\nv_mov_b32 v25, v27\nv_mov_b32 v26, s%d\nv_mov_b32 v27, s%d" % (S_NONCE, S_NONCE))
    a("buffer_store_dwordx4 v[28:31], v17, %s, s70 offen sc1" % S(SC))
    a("buffer_store_dwordx4 v[24:27], v17, %s, s70 offen offset:16 sc1" % S(SC))
    LD = min(P + 5, 11)
    for _ in range(LD - 1 - (P + 1)): R.bar()
    def rs_loads(first=0, last=16):
        for k in range(first, last):
            a("s_lshl_b32 s70, s4, 11")
            a("s_add_u32 s70, s70, %d" % (k * 2048 * 16))
            a("buffer_load_dwordx4 %s, v17, %s, s70 offen sc1" % (vr(32 + 8*k, 4), S(SC)))
            a("buffer_load_dwordx4 %s, v17, %s, s70 offen offset:16 sc1" % (vr(36 + 8*k, 4), S(SC)))
    rs_loads(0, 16)
    for _ in range(13 - (LD - 1)): R.bar()
    tag_check(a, [32 + 4*k + 2 for k in range(32)], 160, "rs", rs_loads)
    for k in range(1, 16):
        a("v_pk_add_f32 v[32:33], v[32:33], %s" % vr(32 + 8*k, 2))
        a("v_pk_add_f32 v[36:37], v[36:37], %s" % vr(36 + 8*k, 2))
    R.bar()
    for e in (32, 36):
        a("v_mul_f32 v%d, 0x3a800000, v%d" % (e, e))
        a("v_mul_f32 v%d, 0x3a800000, v%d" % (e + 1, e + 1))
        a("v_fma_f32 v%d, -v%d, v%d, v%d" % (e + 1, e, e, e + 1))
        a("v_max_f32 v%d, 0, v%d" % (e + 1, e + 1))
        a("v_add_f32 v%d, 0x3727c5ac, v%d" % (e + 1, e + 1))
    a("v_rsq_f32 v40, v33")
    a("v_rsq_f32 v42, v37")
    a("v_mul_f32 v41, v32, v40")
    a("v_mul_f32 v43, v36, v42")
    a("v_sub_f32 v41, 0, v41")
    a("v_sub_f32 v43, 0, v43")
    a("ds_write_b128 v19, v[40:43]")
    a("s_waitcnt lgkmcnt(0)")
    R.bar()
    a("s_branch h_p1done")
    a.label("h1_path")
    R.nb = nb0; R.tk = tk0
    srd(a, SD, P_WS, WS_CSQ, 16*16*1024)
    a("v_mul_u32_u24 v19, 12, v1")
    a("v_add_u32 v19, %d, v19" % L1_CSA)
    for e in range(3): a("ds_read_b32 v%d, v19 offset:%d" % (24 + e, 4 * e))
    a("v_mov_b32 v27, s%d" % S_NONCE)
    a("v_lshlrev_b32 v18, 4, v1")
    a("s_lshl_b32 s70, s4, 4")
    a("s_add_u32 s70, s70, s5")
    a("s_lshl_b32 s70, s70, 10")
    a("s_waitcnt lgkmcnt(0)")
    a("buffer_store_dwordx4 v[24:27], v18, %s, s70 offen sc1" % S(SD))
    for _ in range(LD - 1 - (P + 1)): R.bar()
    def cs_loads():
        for mm in range(16):
            a("s_lshl_b32 s70, s5, 10")
            a("s_add_u32 s70, s70, %d" % (mm * 16 * 1024))
            a("buffer_load_dwordx4 %s, v18, %s, s70 offen sc1" % (vr(32 + 4*mm, 4), S(SD)))
    cs_loads()
    for _ in range(13 - (LD - 1)): R.bar()
    tag_check(a, [32 + 4*k + 3 for k in range(16)], 160, "cs", cs_loads)
    for k in range(1, 16):
        a("v_pk_add_f32 v[32:33], v[32:33], %s" % vr(32 + 4*k, 2))
        a("v_add_f32 v34, v34, v%d" % (32 + 4*k + 2))
    a("v_mul_u32_u24 v19, 12, v1")
    a("v_add_u32 v19, %d, v19" % L1_CS)
    for e in range(3): a("ds_write_b32 v19, v%d offset:%d" % (32 + e, 4 * e))
    a("s_waitcnt lgkmcnt(0)")
    R.bar(); R.bar()
    a.label("h_p1done")
    if G.touch_mode == 0:
        touches(a, [(P_WO, 1024*1024*2), (P_W1, 1024*3584*2), (P_W2, 3584*1024*2)], 200)

def helper_role(a):
    R = Role(a)
    a("s_sub_u32 s7, s3, 6")
    if G.hprio: a("s_setprio 3")
    srd(a, SF, P_WS, WS_FLAG, FLAG_SZ)
    a("v_mov_b32 v20, 0")
    a("v_lshlrev_b32 v21, 2, v1")
    a("v_add_u32 v21, %d, v21" % (L_TOP + 16))
    a("s_mov_b64 exec, 0xff")
    a("ds_write_b32 v21, v20")
    a("s_mov_b64 exec, -1")
    a("s_waitcnt lgkmcnt(0)")
    c = p1_cfg(); c.tmap(a, c)
    R.trace = True
    helper_p1(R)
    R.trace = False
    if G.prof:
        srd(a, SX, P_WS, WS_PROF + 0x10000, 0x40000)
        a("s_lshl_b32 s70, s2, 1")
        a("s_add_u32 s70, s70, s7")
        a("s_lshl_b32 s70, s70, 8")
        a("v_lshlrev_b32 v2, 2, v1")
        a("buffer_store_dword v255, v2, %s, s70 offen" % S(SX))
    R.bar()
    aux_q_part1(a)
    R.bar()
    def poll_if_h0(name, pre, grp):
        a("s_cmp_lg_u32 s7, 0")
        a("s_cbranch_scc1 %s" % name)
        pre(a)
        flag_poll(a, 70, grp, 16)
        a.label(name)
    poll_if_h0("h_a_skip", lambda a: a("s_lshl_b32 s70, s5, 7"), FL_A)
    R.bar()
    kv_gather(a, True)
    R.bar()
    aux_q_part2(a)
    if G.stop_after <= 1:
        a("s_waitcnt vmcnt(0)")
        publish_flag(a, 1, lambda a: a("s_mov_b32 s71, s88"), FL_B)
        return R
    R.bar()
    a("s_waitcnt vmcnt(0)")
    publish_flag(a, 1, lambda a: a("s_mov_b32 s71, s88"), FL_B)
    def staged(name, cfg, grp, masks, nbar_after):
        cfg.tmap(a, cfg)
        if not G.staged:
            poll_if_h0(name, lambda a: a("s_lshl_b32 s70, s4, 7"), grp)
            for _ in masks: R.bar()
            return
        a("s_mov_b32 s%d, 0" % S_RDY)
        for k, mk in enumerate(masks):
            a("s_cmp_lg_u32 s7, 0")
            a("s_cbranch_scc1 %s_%d" % (name, k))
            a("s_lshl_b32 s70, s4, 7")
            poll_mask(a, 70, grp, mk)
            a.label("%s_%d" % (name, k))
            R.bar()
    imm = lambda v: (lambda a: a("s_mov_b32 s76, 0x%x" % v))
    c3 = p3_cfg()
    staged("h_b", c3, FL_B, [imm(0x3), imm(0x1f), imm(0xffff)], 0)
    bar_loop(R, 15, "h3_loop")
    if G.stop_after <= 3: return R
    c4 = p4_cfg()
    R.bar()
    def m4(extra):
        def f(a):
            a("s_lshl_b32 s76, 1, s4")
            a("s_or_b32 s76, s76, 0x%x" % extra)
        return f
    staged("h_c", c4, FL_C, [m4(0x3), m4(0x7), imm(0xffff)], 0)
    p4_tables(R)
    if G.stop_after <= 4: return R
    c5 = p5_cfg()
    R.bar()
    def m5(v0, v1):
        def f(a):
            a("s_cmp_eq_u32 s82, 0")
            a("s_cselect_b32 s76, 0x%x, s77" % v0) if False else None
            a("s_mov_b32 s76, 0x%x" % v0)
            a("s_cmp_eq_u32 s82, 0")
            a("s_cbranch_scc1 m5_%x" % v0)
            a("s_mov_b32 s76, 0x%x" % v1)
            a.label("m5_%x" % v0)
        return f
    staged("h_d", c5, FL_D, [m5(0x1, 0x200), m5(0x3, 0x600), imm(0xffff)], 0)
    R.nb += KKEEP - 1
    return R

def p4_tables(R):
    a = R.a
    srd(a, SA, P_WS, WS_HSTP, 32*2048*8)
    srd(a, SB, P_WS, WS_CS2, 16*16*2*1024)
    srd(a, SC, P_B1, 0, 3584*2)
    a("v_lshlrev_b32 v16, 3, v1")
    a("s_lshl_b32 s70, s4, 7")
    a("s_lshl_b32 s71, s7, 6")
    a("s_add_u32 s70, s70, s71")
    a("s_lshl_b32 s70, s70, 3")
    L = 32
    for p in range(32):
        a("buffer_load_dwordx2 %s, v16, %s, s70 offen sc1" % (vr(L + 2*p, 2), S(SA)))
        if p < 31: a("s_add_u32 s70, s70, %d" % (2048 * 8))
    a("v_lshlrev_b32 v17, 2, v1")
    a("s_mul_i32 s72, s5, 448")
    a("s_mul_i32 s73, s7, 224")
    a("s_add_u32 s72, s72, s73")
    a("buffer_load_dword v100, v17, %s, s72 offen" % S(SC))
    R.bar()
    a("v_mul_u32_u24 v19, 12, v1")
    a("s_mul_i32 s70, s7, 448")
    a("s_add_u32 s70, s70, %d" % (L4_TAB + 3072))
    a("v_add_u32 v19, s70, v19")
    for e in range(3): a("ds_read_b32 v%d, v19 offset:%d" % (24 + e, 4 * e))
    a("v_mov_b32 v27, s%d" % S_NONCE)
    a("v_lshlrev_b32 v18, 4, v1")
    a("s_lshl_b32 s70, s4, 4")
    a("s_add_u32 s70, s70, s5")
    a("s_lshl_b32 s70, s70, 1")
    a("s_add_u32 s70, s70, s7")
    a("s_lshl_b32 s70, s70, 10")
    a("s_waitcnt lgkmcnt(0)")
    a("buffer_store_dwordx4 v[24:27], v18, %s, s70 offen sc1" % S(SB))
    R.bar(); R.bar(); R.bar(); R.bar()
    a("s_waitcnt vmcnt(1)")
    for p in range(1, 32): a("v_pk_add_f32 v[32:33], v[32:33], %s" % vr(L + 2*p, 2))
    R.bar()
    a("v_mul_f32 v%d, 0x3a800000, v%d" % (L, L))
    a("v_mul_f32 v%d, 0x3a800000, v%d" % (L + 1, L + 1))
    a("v_fma_f32 v%d, -v%d, v%d, v%d" % (L + 1, L, L, L + 1))
    a("v_max_f32 v%d, 0, v%d" % (L + 1, L + 1))
    a("v_add_f32 v%d, 0x3727c5ac, v%d" % (L + 1, L + 1))
    a("v_rsq_f32 v%d, v%d" % (L + 2, L + 1))
    a("v_mul_f32 v%d, v%d, v%d" % (L + 3, L, L + 2))
    a("v_sub_f32 v%d, 0, v%d" % (L + 3, L + 3))
    a("s_lshl_b32 s70, s7, 9")
    a("s_add_u32 s70, s70, %d" % (L4_TAB + 2048))
    a("v_add_u32 v20, s70, v16")
    a("ds_write_b64 v20, %s" % vr(L + 2, 2))
    a("v_lshlrev_b32 v102, 16, v100")
    a("v_and_b32 v103, 0xffff0000, v100")
    a("s_mul_i32 s70, s7, 448")
    a("s_add_u32 s70, s70, %d" % (L4_TAB + 1024))
    a("v_add_u32 v20, s70, v16")
    a("s_mov_b32 exec_lo, -1")
    a("s_mov_b32 exec_hi, 0x00ffffff")
    a("ds_write_b64 v20, v[102:103]")
    a("s_mov_b64 exec, -1")
    R.bar()
    def cs_loads():
        for mm in range(16):
            a("s_lshl_b32 s70, s5, 1")
            a("s_add_u32 s70, s70, s7")
            a("s_lshl_b32 s70, s70, 10")
            a("s_add_u32 s70, s70, %d" % (mm * 16 * 2 * 1024))
            a("buffer_load_dwordx4 %s, v18, %s, s70 offen sc1" % (vr(32 + 4*mm, 4), S(SB)))
    cs_loads()
    for _ in range(4): R.bar()
    tag_check(a, [32 + 4*k + 3 for k in range(16)], 160, "cs4", cs_loads)
    for k in range(1, 16):
        a("v_pk_add_f32 v[32:33], v[32:33], %s" % vr(32 + 4*k, 2))
        a("v_add_f32 v34, v34, v%d" % (32 + 4*k + 2))
    a("v_mul_u32_u24 v19, 12, v1")
    a("s_mul_i32 s70, s7, 448")
    a("s_add_u32 s70, s70, %d" % L4_TAB)
    a("v_add_u32 v19, s70, v19")
    a("s_mov_b32 exec_lo, -1")
    a("s_mov_b32 exec_hi, 0x1f")
    for e in range(3): a("ds_write_b32 v19, v%d offset:%d" % (32 + e, 4 * e))
    a("s_mov_b32 exec_lo, 0")
    a("s_mov_b32 exec_hi, 0x20")
    a("ds_write_b32 v19, v32")
    a("s_mov_b64 exec, -1")
    a("s_waitcnt lgkmcnt(0)")
    for _ in range(4): R.bar()

def wave_sum(a, v, t):
    for r in (8, 4, 2, 1):
        a("v_add_f32_dpp v%d, v%d, v%d row_ror:%d row_mask:0xf bank_mask:0xf" % (v, v, v, r))
    xq(a, "v_add_f32", v, t)

def k1(a):
    n = "k1_kernel"
    kernel_begin(a, n)
    a("s_cmp_ge_u32 s2, 480")
    a("s_cbranch_scc1 k1_end")
    for sdst, nm in ((32, "x"), (34, "ws"), (36, "w1"), (38, "wqkv")):
        a("s_load_dwordx2 %s, s[0:1], %d" % (sr(sdst, 2), KA[nm]))
    a("v_lshrrev_b32 v2, 6, v0")
    a("v_and_b32 v1, 63, v0")
    a("v_readfirstlane_b32 s3, v2")
    a("s_waitcnt lgkmcnt(0)")
    a("s_cmp_ge_u32 s2, 256")
    a("s_cbranch_scc1 k1_cs")
    srd(a, 8, 32, 0, SZ_ACT)
    srd(a, 12, 34, WS_XN, SZ_ACT)
    a("s_lshl_b32 s4, s2, 3")
    a("s_add_u32 s4, s4, s3")
    a("s_lshl_b32 s20, s4, 13")
    a("s_lshl_b32 s4, s4, 11")
    a("v_lshlrev_b32 v2, 4, v1")
    a("buffer_load_dwordx4 v[4:7], v2, s[8:11], s4 offen")
    a("buffer_load_dwordx4 v[8:11], v2, s[8:11], s4 offen offset:1024")
    srd(a, 16, 38, 0, 1024*3072*2)
    a("v_lshlrev_b32 v3, 7, v1")
    a("buffer_load_dword v40, v3, s[16:19], s20 offen")
    a("s_or_b32 s21, s2, s3")
    a("s_cmp_lg_u32 s21, 0")
    a("s_cbranch_scc1 k1_nononce")
    a("s_memrealtime s[22:23]")
    srd(a, 24, 34, WS_NONCE, 64)
    a("s_waitcnt lgkmcnt(0)")
    a("s_or_b32 s22, s22, 1")
    a("s_xor_b32 s23, s23, 0x5bd1e995")
    a("v_mov_b32 v42, s22")
    a("v_mov_b32 v43, s23")
    a("v_mov_b32 v44, 0")
    a("s_mov_b64 exec, 1")
    a("buffer_store_dwordx2 v[42:43], v44, s[24:27], 0 offen")
    a("s_mov_b64 exec, -1")
    a.label("k1_nononce")
    a("s_waitcnt vmcnt(1)")
    X = 16
    for i in range(8):
        a("v_lshlrev_b32 v%d, 16, v%d" % (X + 2*i, 4 + i))
        a("v_and_b32 v%d, 0xffff0000, v%d" % (X + 2*i + 1, 4 + i))
    a("v_add_f32 v12, v%d, v%d" % (X, X+1))
    for i in range(2, 16): a("v_add_f32 v12, v12, v%d" % (X + i))
    wave_sum(a, 12, 13)
    a("v_mul_f32 v12, 0x3a800000, v12")
    for i in range(16): a("v_sub_f32 v%d, v%d, v12" % (X + i, X + i))
    a("v_mul_f32 v14, v%d, v%d" % (X, X))
    for i in range(1, 16): a("v_fmac_f32 v14, v%d, v%d" % (X + i, X + i))
    wave_sum(a, 14, 13)
    a("v_mov_b32 v15, 0x3727c5ac")
    a("v_fmac_f32 v15, 0x3a800000, v14")
    a("v_rsq_f32 v15, v15")
    for i in range(16): a("v_mul_f32 v%d, v%d, v15" % (X + i, X + i))
    for i in range(8): a("v_cvt_pk_bf16_f32 v%d, v%d, v%d" % (4 + i, X + 2*i, X + 2*i + 1))
    a("buffer_store_dwordx4 v[4:7], v2, s[12:15], s4 offen sc1")
    a("buffer_store_dwordx4 v[8:11], v2, s[12:15], s4 offen offset:1024 sc1")
    a("s_endpgm")
    a.label("k1_cs")
    srd(a, 8, 36, 0, 1024*3584*2)
    srd(a, 12, 34, WS_CS1P, 8*3584*4)
    a("s_sub_u32 s4, s2, 256")
    a("s_mul_hi_u32 s5, s4, 0x%x" % ((2**32 + 27)//28))
    a("s_mul_i32 s6, s5, 28")
    a("s_sub_u32 s6, s4, s6")
    a("v_lshrrev_b32 v2, 4, v0")
    a("v_mul_u32_u24 v2, 7168, v2")
    a("v_and_b32 v3, 15, v0")
    a("v_lshl_add_u32 v2, v3, 4, v2")
    a("s_mul_i32 s7, s5, %d" % (128*7168))
    a("s_lshl_b32 s16, s6, 8")
    a("s_add_u32 s7, s7, s16")
    for i in range(4):
        a("buffer_load_dwordx4 %s, v2, s[8:11], s7 offen" % vr(4 + 4*i, 4))
        if i < 3: a("s_add_u32 s7, s7, %d" % (32*7168))
    A = 24
    a("s_waitcnt vmcnt(0)")
    for d in range(4):
        a("v_lshlrev_b32 v%d, 16, v%d" % (A + 2*d, 4 + d))
        a("v_and_b32 v%d, 0xffff0000, v%d" % (A + 2*d + 1, 4 + d))
    for i in range(1, 4):
        for d in range(4):
            a("v_lshlrev_b32 v20, 16, v%d" % (4 + 4*i + d))
            a("v_and_b32 v21, 0xffff0000, v%d" % (4 + 4*i + d))
            a("v_add_f32 v%d, v%d, v20" % (A + 2*d, A + 2*d))
            a("v_add_f32 v%d, v%d, v21" % (A + 2*d + 1, A + 2*d + 1))
    for e in range(8): xq(a, "v_add_f32", A + e, 20)
    a("v_and_b32 v3, 15, v1")
    a("v_lshlrev_b32 v3, 5, v3")
    a("s_lshl_b32 s16, s3, 9")
    a("v_add_u32 v3, s16, v3")
    a("ds_write_b128 v3, %s" % vr(A, 4))
    a("ds_write_b128 v3, %s offset:16" % vr(A + 4, 4))
    a("s_waitcnt lgkmcnt(0)")
    a("s_barrier")
    a("s_cmp_ge_u32 s3, 2")
    a("s_cbranch_scc1 k1_end")
    a("v_lshlrev_b32 v3, 2, v0")
    for w in range(8): a("ds_read_b32 v%d, v3 offset:%d" % (4 + w, w * 512))
    a("s_waitcnt lgkmcnt(0)")
    for w in range(1, 8): a("v_add_f32 v4, v4, v%d" % (4 + w))
    a("s_mul_i32 s7, s5, %d" % (3584*4))
    a("s_lshl_b32 s16, s6, 9")
    a("s_add_u32 s7, s7, s16")
    a("buffer_store_dword v4, v3, s[12:15], s7 offen sc1")
    a.label("k1_end")
    a("s_endpgm")
    return dict(name=n, grid=480, block=512, lds=4096, vgpr=48)

def kp(a):
    n = "kp_kernel"
    kernel_begin(a, n)
    a("s_cmp_ge_u32 s2, 256")
    a("s_cbranch_scc1 kp_end")
    if G.prof:
        a("s_memrealtime s[96:97]")
    for sdst, nm in ((P_WS, "ws"), (P_X, "x"), (P_WQKV, "wqkv"), (P_WPHI, "wphi"), (P_WO, "wo"), (P_W1, "w1"),
                     (P_B1, "b1"), (P_W2, "w2"), (P_B2, "b2"), (P_OUT, "out"), (P_DBG, "dbg")):
        a("s_load_dwordx2 %s, s[0:1], %d" % (sr(sdst, 2), KA[nm]))
    a("s_and_b32 s30, s2, 7")
    a("s_lshr_b32 s31, s2, 3")
    a("v_lshrrev_b32 v2, 6, v0")
    a("v_and_b32 v1, 63, v0")
    a("v_readfirstlane_b32 s3, v2")
    a("s_waitcnt lgkmcnt(0)")
    a("s_cmp_ge_u32 s3, 6")
    a("s_cbranch_scc1 kp_helper")
    a("s_cmp_ge_u32 s3, 4")
    a("s_cbranch_scc1 kp_loader")
    if G.prof: a("v_writelane_b32 v255, s96, 0")
    a("s_waitcnt lgkmcnt(0)")
    Rc = compute_role(a)
    if G.prof:
        a("s_waitcnt vmcnt(0)")
        stamp(a, 15)
        a("s_cmp_lg_u32 s7, 0")
        a("s_cbranch_scc1 kp_end")
        srd(a, SA, P_WS, WS_PROF, 256*256)
        a("s_lshl_b32 s70, s2, 8")
        a("v_lshlrev_b32 v2, 2, v1")
        a("buffer_store_dword v255, v2, %s, s70 offen" % S(SA))
    a("s_endpgm")
    a.label("kp_loader")
    a("s_waitcnt lgkmcnt(0)")
    Rl = loader_role(a)
    a("s_endpgm")
    a.label("kp_helper")
    a("s_waitcnt lgkmcnt(0)")
    Rh = helper_role(a)
    a("s_endpgm")
    a.label("kp_end")
    a("s_endpgm")
    a.label("kp_codeend")
    print("barriers: compute %d loader %d helper %d" % (Rc.nb, Rl.nb, Rh.nb))
    assert Rc.nb == Rl.nb == Rh.nb
    return dict(name=n, grid=256, block=512, lds=163840, vgpr=256)

def build(prof=False, stop_after=5):
    G.prof = prof; G.stop_after = stop_after
    body = Asm()
    descs = [kp(body)]
    head = HEADER
    for d in descs:
        head += "; @launch kernel=%s grid=(%d,1,1) block=(%d,1,1) lds=%d\n" % (d["name"], d["grid"], d["block"], d["lds"])
    txt = head + '.amdgcn_target "amdgcn-amd-amdhsa--gfx950"\n' + body.text()
    txt += '.section .rodata,"a"\n'
    for d in descs:
        txt += ".p2align 6\n" + kernel_desc(d["name"], d["vgpr"], 102)
    return txt

if __name__ == "__main__":
    import sys
    stop = 5
    G.st_touch = "nost" not in sys.argv
    G.code_pf = "nocpf" not in sys.argv
    G.tlb_warm = "tlb" in sys.argv
    G.hprio = "nohprio" not in sys.argv
    G.hstage = False
    G.t2sleep = 16
    G.staged = "nostaged" not in sys.argv
    G.jit_cpf = "nojit" not in sys.argv
    G.p5skip = "nop5skip" not in sys.argv
    G.p5pre = "nop5pre" not in sys.argv
    G.x_noh4 = "noh4" in sys.argv
    G.x_norot4 = "norot4" in sys.argv
    G.touch_mode = 1
    for x in sys.argv:
        if x.startswith("tm"): G.touch_mode = int(x[2:])
    for x in sys.argv:
        if x.startswith("peel"): G.p1peel = int(x[4:])
        if x.startswith("sleep"): G.t2sleep = int(x[5:])
    for x in sys.argv:
        if x.startswith("stop"): stop = int(x[4:])
    open(sys.argv[1], "w").write(build(prof="prof" in sys.argv, stop_after=stop))
```

```python
from asmgen import *

WS_XN   = 0x0000000
WS_ST1  = 0x0000000
WS_CSQ  = 0x0010000
WS_RSP  = 0x0080000
WS_CS2  = 0x0100000
WS_KVP  = 0x0400000
WS_ZP   = 0x0700000
WS_O    = 0x0800000
WS_H    = 0x0C00000
WS_HSTP = 0x1000000
WS_CS1P = 0x1100000
WS_FLAG = 0x1200000
WS_NONCE= 0x1280000
WS_F    = 0x1400000
WS_PX   = 0x2400000
WS_PROF = 0x4000000
SZ_ACT  = 2048*1024*2
SZ_F    = 2048*3584*2
FL_A, FL_B, FL_C, FL_D, FL_X, FL_E, FL_G = 0x0000, 0x1000, 0x2000, 0x3000, 0x4000, 0x6000, 0x7000
FLAG_SZ = 0x8000

KA = dict(x=0, wqkv=8, wphi=16, wo=24, w1=40, b1=48, w2=56, b2=64, out=72, dbg=80, ws=88)
P_WS, P_X, P_WQKV, P_WPHI, P_WO, P_W1, P_B1, P_W2, P_B2, P_OUT = 8, 10, 12, 14, 16, 18, 20, 22, 24, 26
P_DBG = 84
S_NONCE = 28
SX, SW, SA, SB, SC, SD, SF = 32, 36, 40, 44, 48, 52, 56
S_XOFF, S_WOFF, S_LDSX, S_LDSW, S_TMP, S_CNT, S_DELTA, S_BUF, S_SS, S_NEG = 60, 61, 62, 63, 64, 65, 66, 67, 68, 69
S_L2E = 83
LOG2E = 0x3fb8aa3b
MF16 = "v_mfma_f32_16x16x32_bf16"

class G:
    prof = False
    stop_after = 5
    nstamp = 0
    st_touch = True
    code_pf = True
    tlb_warm = False
    hprio = True
    hstage = False
    p1peel = 2
    touch2 = False
    loader_first = True
    t1sleep = 0
    xsc1 = True
    staged = True
    jit_cpf = True
    p5skip = True
    p5pre = True
    x_noh4 = False
    x_norot4 = False
    touch_mode = 1

def srd(a, d, p, off, size):
    if off:
        a("s_add_u32 s%d, s%d, 0x%x" % (d, p, off))
        a("s_addc_u32 s%d, s%d, 0" % (d + 1, p + 1))
    else:
        a("s_mov_b32 s%d, s%d" % (d, p))
        a("s_mov_b32 s%d, s%d" % (d + 1, p + 1))
    a("s_mov_b32 s%d, 0x%x" % (d + 2, size))
    a("s_mov_b32 s%d, 0x20000" % (d + 3))

def S(b): return sr(b, 4)

def stamp(a, k):
    if G.prof:
        a("s_memrealtime s[98:99]")
        a("s_waitcnt lgkmcnt(0)")
        a("v_writelane_b32 v255, s98, %d" % k)

def cstamp(a, k):
    if G.prof:
        a("s_memtime s[98:99]")
        a("s_waitcnt lgkmcnt(0)")
        a("v_writelane_b32 v255, s98, %d" % k)

class Role:
    def __init__(self, a): self.a = a; self.nb = 0; self.trace = False; self.tk = 0
    def bar(self, n=1):
        if self.trace and G.prof and n == 1 and self.tk < 62:
            stamp(self.a, self.tk); self.tk += 1
        self.a("s_barrier"); self.nb += n

def tile_map(a, mx, nx):
    import math
    mgroups = 16 // mx
    lm = int(math.log2(mgroups)); lmx = int(math.log2(mx))
    a("s_and_b32 s4, s30, %d" % (mgroups - 1))
    a("s_lshr_b32 s5, s30, %d" % lm)
    a("s_mul_i32 s4, s4, %d" % mx)
    a("s_mul_i32 s5, s5, %d" % nx)
    a("s_and_b32 s%d, s31, %d" % (S_TMP, mx - 1))
    a("s_add_u32 s4, s4, s%d" % S_TMP)
    a("s_lshr_b32 s%d, s31, %d" % (S_TMP, lmx))
    a("s_add_u32 s5, s5, s%d" % S_TMP)

class Cfg: pass

def loader_setup(a, c):
    if c.xmode == "row":
        a("v_lshrrev_b32 v10, 3, v1")
        a("v_mul_u32_u24 v10, %d, v10" % c.ldx)
        a("v_and_b32 v11, 7, v1")
        a("v_lshrrev_b32 v12, 4, v1")
        a("v_xor_b32 v13, v11, v12")
        a("v_lshl_add_u32 v2, v13, 4, v10")
        a("v_xor_b32 v13, 4, v13")
        a("v_lshl_add_u32 v3, v13, 4, v10")
        a("s_lshl_b32 s%d, s4, 7" % S_XOFF)
        a("s_lshl_b32 s%d, s7, 6" % S_TMP)
        a("s_add_u32 s%d, s%d, s%d" % (S_XOFF, S_XOFF, S_TMP))
        a("s_mul_i32 s%d, s%d, %d" % (S_XOFF, S_XOFF, c.ldx))
    else:
        a("v_lshlrev_b32 v2, 4, v1")
        a("s_lshl_b32 s%d, s4, 2" % S_XOFF)
        a("s_lshl_b32 s%d, s7, 1" % S_TMP)
        a("s_add_u32 s%d, s%d, s%d" % (S_XOFF, S_XOFF, S_TMP))
        a("s_mul_i32 s%d, s%d, %d" % (S_XOFF, S_XOFF, c.KX // 8 * 512))
    if c.wmode == "pair":
        a("v_lshrrev_b32 v10, 5, v1")
        a("v_lshlrev_b32 v10, 2, v10")
        a("v_bfe_u32 v11, v1, 2, 2")
        a("v_add_u32 v10, v10, v11")
        a("v_mul_u32_u24 v10, %d, v10" % c.ldw)
        a("v_bfe_u32 v11, v1, 4, 1")
        a("v_lshl_add_u32 v10, v11, 6, v10")
        a("v_and_b32 v11, 3, v1")
        a("v_lshl_add_u32 v4, v11, 4, v10")
        a("v_xor_b32 v11, 2, v11")
        a("v_lshl_add_u32 v5, v11, 4, v10")
        a("s_mul_i32 s%d, s7, %d" % (S_WOFF, 32 * c.ldw))
        a("s_mul_i32 s%d, s5, %d" % (S_TMP, c.ntile_bytes))
        a("s_add_u32 s%d, s%d, s%d" % (S_WOFF, S_WOFF, S_TMP))
        a("s_mul_i32 s%d, s7, %d" % (S_LDSW, 4 * (c.NB // 2) * 1024))
    else:
        a("v_lshrrev_b32 v12, 4, v1")
        a("v_bfe_u32 v13, v1, 2, 2")
        a("v_and_b32 v14, 3, v1")
        for t in range(7):
            a("v_add_u32 v15, %d, v12" % (4 * t))
            a("v_mul_u32_u24 v16, 37, v15")
            a("v_lshrrev_b32 v16, 8, v16")
            a("v_mul_u32_u24 v17, 7, v16")
            a("v_sub_u32 v17, v15, v17")
            a("v_and_b32 v18, 2, v16")
            a("v_xor_b32 v18, v18, v14")
            a("v_lshl_add_u32 v16, v16, 2, v13")
            a("v_mul_u32_u24 v16, %d, v16" % c.ldw)
            a("v_lshl_add_u32 v16, v17, 6, v16")
            a("v_lshl_add_u32 v%d, v18, 4, v16" % (4 + t))
        a("s_mul_i32 s%d, s7, %d" % (S_WOFF, 32 * c.ldw))
        a("s_mul_i32 s%d, s5, %d" % (S_TMP, c.ntile_bytes))
        a("s_add_u32 s%d, s%d, s%d" % (S_WOFF, S_WOFF, S_TMP))
        a("s_mul_i32 s%d, s7, 14336" % S_LDSW)
    if c.koff: c.koff(a, c)
    a("s_add_u32 s%d, s%d, %d" % (S_LDSW, S_LDSW, c.LB + 16384))
    a("s_lshl_b32 s%d, s7, 13" % S_LDSX)
    if c.LB: a("s_add_u32 s%d, s%d, %d" % (S_LDSX, S_LDSX, c.LB))
    a("s_mov_b32 s%d, %d" % (S_SS, c.SS))
    a("s_mov_b32 s%d, 0x%x" % (S_NEG, (-(c.NS - 1) * c.SS) & 0xffffffff))

def nX(c): return 8
def nW(c): return c.NB * 2

def issue_x(a, c, ldsoff=0):
    if c.xmode == "row":
        for j in range(8):
            a("s_add_u32 m0, s%d, %d" % (S_LDSX, ldsoff + j * 1024))
            a("s_add_u32 s%d, s%d, %d" % (S_TMP, S_XOFF, j * 8 * c.ldx))
            a("buffer_load_dwordx4 v%d, %s, s%d offen lds" % (2 + (j & 1), S(SX), S_TMP))
        a("s_add_u32 s%d, s%d, 128" % (S_XOFF, S_XOFF))
    else:
        a("s_add_u32 m0, s%d, %d" % (S_LDSX, ldsoff))
        a("s_add_u32 s%d, s%d, %d" % (S_TMP, S_XOFF, c.KX // 8 * 512))
        for j in range(4):
            a("buffer_load_dwordx4 v2, %s, s%d offen offset:%d lds" % (S(SX), S_XOFF, j * 1024))
        a("s_add_u32 m0, s%d, %d" % (S_LDSX, ldsoff + 4096))
        a("s_add_u32 s%d, s%d, 4096" % (S_XOFF, S_XOFF))
        for j in range(4):
            a("buffer_load_dwordx4 v2, %s, s%d offen offset:%d lds" % (S(SX), S_TMP, j * 1024))

def issue_w(a, c, ldsoff=0):
    if c.wmode == "pair":
        NP = c.NB // 2
        for kpl in range(4):
            for np_ in range(NP):
                a("s_add_u32 m0, s%d, %d" % (S_LDSW, ldsoff + (kpl * NP + np_) * 1024))
                a("s_add_u32 s%d, s%d, %d" % (S_TMP, S_WOFF, kpl * 8 * c.ldw + c.strip[np_]))
                a("buffer_load_dwordx4 v%d, %s, s%d offen lds" % (4 + (kpl & 1), S(SW), S_TMP))
    else:
        for g in range(2):
            if g == 1: a("s_add_u32 s%d, s%d, %d" % (S_TMP, S_WOFF, 16 * c.ldw))
            for t in range(7):
                a("s_add_u32 m0, s%d, %d" % (S_LDSW, ldsoff + g * 7168 + t * 1024))
                a("s_nop 0")
                a("buffer_load_dwordx4 v%d, %s, s%d offen lds" % (4 + t, S(SW), S_WOFF if g == 0 else S_TMP))
    a("s_add_u32 s%d, s%d, %d" % (S_WOFF, S_WOFF, 64 * c.ldw))

S_S0 = 86
def xstride(c): return 128 if c.xmode == "row" else 4096
def rot_begin(a, c):
    if not c.rot: return
    c.rot(a, c)
    a("s_mul_i32 s%d, s%d, %d" % (S_TMP, S_S0, xstride(c)))
    a("s_add_u32 s92, s%d, s%d" % (S_XOFF, S_TMP))
    a("s_mul_i32 s%d, s%d, %d" % (S_TMP, S_S0, 64 * c.ldw))
    a("s_add_u32 s93, s%d, s%d" % (S_WOFF, S_TMP))
    a("s_mov_b32 s90, 0")
    a("s_mov_b32 s91, 0")
def IX(a, c, off=0, k=None):
    if c.rot and k == c.peel_at:
        a("s_mov_b32 s89, s%d" % S_XOFF)
        a("s_mov_b32 s%d, s92" % S_XOFF)
        issue_x(a, c, off)
        a("s_mov_b32 s%d, s89" % S_XOFF)
        return
    if c.rot:
        a("s_cmp_eq_u32 s90, s%d" % S_S0)
        a("s_cselect_b32 s%d, %d, 0" % (S_TMP, xstride(c)))
        a("s_add_u32 s%d, s%d, s%d" % (S_XOFF, S_XOFF, S_TMP))
        a("s_add_u32 s90, s90, 1")
    issue_x(a, c, off)
def IW(a, c, off=0, k=None):
    if c.rot and k == c.peel_at:
        a("s_mov_b32 s89, s%d" % S_WOFF)
        a("s_mov_b32 s%d, s93" % S_WOFF)
        issue_w(a, c, off)
        a("s_mov_b32 s%d, s89" % S_WOFF)
        return
    if c.rot:
        a("s_cmp_eq_u32 s91, s%d" % S_S0)
        a("s_cselect_b32 s%d, %d, 0" % (S_TMP, 64 * c.ldw))
        a("s_add_u32 s%d, s%d, s%d" % (S_WOFF, S_WOFF, S_TMP))
        a("s_add_u32 s91, s91, 1")
    issue_w(a, c, off)

def trickle_setup(a, c):
    tr = getattr(c, "trickle", None)
    if not tr: return
    for k, (p, nbytes, K, start) in enumerate(tr):
        srd(a, (SC, SD)[k], p, 0, nbytes)
        a("s_lshl_b32 s%d, s2, 1" % (78 + k))
        a("s_add_u32 s%d, s%d, s7" % (78 + k, 78 + k))
        a("s_lshl_b32 s%d, s%d, 7" % (78 + k, 78 + k))
        if start: a("s_add_u32 s%d, s%d, %d" % (78 + k, 78 + k, start * 65536))
def trickle(a, c):
    tr = getattr(c, "trickle", None)
    if not tr: return
    for k, (p, nbytes, K, start) in enumerate(tr):
        for _ in range(K):
            a("s_buffer_load_dword s87, %s, s%d" % (S((SC, SD)[k]), 78 + k))
            a("s_add_u32 s%d, s%d, 65536" % (78 + k, 78 + k))

def adv_buf(a, c):
    a("s_add_u32 s%d, s%d, 1" % (S_BUF, S_BUF))
    a("s_cmp_eq_u32 s%d, %d" % (S_BUF, c.NS))
    a("s_cselect_b32 s%d, s%d, s%d" % (S_DELTA, S_NEG, S_SS))
    a("s_cselect_b32 s%d, 0, s%d" % (S_BUF, S_BUF))
    a("s_add_u32 s%d, s%d, s%d" % (S_LDSX, S_LDSX, S_DELTA))
    a("s_add_u32 s%d, s%d, s%d" % (S_LDSW, S_LDSW, S_DELTA))

def loader_phase(R, c):
    a = R.a; n = c.name + "_ld"
    c.tmap(a, c)
    c.srds_loader(a, c)
    loader_setup(a, c)
    NS, NST = c.NS, c.NST
    x, w = nX(c), nW(c); nn = x + w
    order = []
    pre = 0
    if c.loader_pre: pre = c.loader_pre(a, c) or 0
    rot_begin(a, c)
    trickle_setup(a, c)
    if c.flag:
        R.bar()
        if getattr(c, "pre_t_hook", None): c.pre_t_hook(a, pre)
        for s in range(NS):
            IW(a, c, s * c.SS, k=s); order.append((s, w))
        R.bar()
        IX(a, c, 0, k=0); IX(a, c, c.SS, k=1); order += [(0, x), (1, x)]
        a("s_waitcnt vmcnt(%d)" % x)
        R.bar()
        for s in range(2, NS):
            IX(a, c, s * c.SS, k=s); order.append((s, x))
    else:
        IX(a, c, 0, k=0); IW(a, c, 0, k=0); IX(a, c, c.SS, k=1); IW(a, c, c.SS, k=1)
        order += [(0, nn), (1, nn)]
        a("s_waitcnt vmcnt(%d)" % nn)
        R.bar()
        for s in range(2, NS):
            if c.helper_stage == s:
                order.append((s, 0))
            else:
                IX(a, c, s * c.SS, k=s); IW(a, c, s * c.SS, k=s); order.append((s, nn))
    a("s_mov_b32 s%d, 0" % S_BUF)
    def allowed(need_stage):
        last = max(k for k, (s, _) in enumerate(order) if s == need_stage)
        return min(63, sum(cnt for (s, cnt) in order[last + 1:]))
    i = 0
    steady = (NS - 2) * nn
    while i < NST - NS and allowed(i + 1) != steady:
        a("s_waitcnt vmcnt(%d)" % allowed(i + 1)); R.bar()
        if c.jump_at is not None and i + NS == c.jump_at: c.jump(a, c)
        IX(a, c, k=i + NS); IW(a, c, k=i + NS); adv_buf(a, c); trickle(a, c); order.append((i + NS, nn))
        i += 1
    first = i
    nloop = NST - NS - first
    if nloop > 0:
        a("s_mov_b32 s%d, %d" % (S_CNT, first))
        a.label(n + "_loop")
        a("s_waitcnt vmcnt(%d)" % steady); R.bar(nloop)
        if c.jump_at is not None:
            a("s_cmp_lg_u32 s%d, %d" % (S_CNT, c.jump_at - NS))
            a("s_cbranch_scc1 %s_nj" % n)
            c.jump(a, c)
            a.label(n + "_nj")
        if c.rot and c.peel_at >= first + NS:
            a("s_cmp_lg_u32 s%d, %d" % (S_CNT, c.peel_at - NS))
            a("s_cbranch_scc1 %s_nat" % n)
            IX(a, c, k=c.peel_at); IW(a, c, k=c.peel_at)
            a("s_branch %s_adv" % n)
            a.label(n + "_nat")
            IX(a, c); IW(a, c)
            a.label(n + "_adv")
            adv_buf(a, c)
        else:
            IX(a, c); IW(a, c); adv_buf(a, c)
        trickle(a, c)
        a("s_add_u32 s%d, s%d, 1" % (S_CNT, S_CNT))
        a("s_cmp_lt_u32 s%d, %d" % (S_CNT, NST - NS))
        a("s_cbranch_scc1 %s_loop" % n)
        for k in range(first, NST - NS): order.append((k + NS, nn))
    if getattr(c, "tail_touch", None):
        nt = c.tail_touch(a, c)
        order.append((99, nt))
    for i in range(NST - NS, NST):
        if i + 1 < NST: a("s_waitcnt vmcnt(%d)" % allowed(i + 1))
        R.bar()

def reads(c, p, s):
    xs = []
    for t in range(4):
        if c.xmode == "row":
            xs.append("ds_read_b128 %s, v%d offset:%d" % (vr(c.XF[p][t], 4), c.VXA + s, t * 2048))
        else:
            xs.append("ds_read_b128 %s, v%d offset:%d" % (vr(c.XF[p][t], 4), c.VXA, (t >> 1) * 4096 + (t & 1) * 256 + s * 2048))
    ws = []
    for b in range(c.TNI):
        nb, g, areg = c.wtile(b)
        for e in range(2):
            if c.wmode == "pair":
                NP = c.NB // 2
                off = s * 4 * NP * 1024 + (nb >> 1) * 1024 + e * 512 + (nb & 1) * 256
            else:
                off = ((8 * s + e) * 7 + nb) * 256
            ws.append("ds_read_b64_tr_b16 %s, v%d offset:%d" % (vr(c.WF[p][b] + 2 * e, 2), areg, 16384 + off))
    return ws[:2] + xs + ws[2:]

def compute_addr(a, c):
    a("v_and_b32 v10, 15, v1")
    a("v_lshrrev_b32 v11, 4, v1")
    a("s_lshl_b32 s%d, s6, 13" % S_TMP)
    if c.LB: a("s_add_u32 s%d, s%d, %d" % (S_TMP, S_TMP, c.LB))
    if c.xmode == "row":
        a("v_bfe_u32 v12, v10, 1, 3")
        a("v_xor_b32 v12, v12, v11")
        a("v_lshlrev_b32 v13, 7, v10")
        a("v_add_u32 v13, s%d, v13" % S_TMP)
        for s in range(2):
            a("v_xor_b32 v14, %d, v12" % (4 * s))
            a("v_lshl_add_u32 v%d, v14, 4, v13" % (c.VXA + s))
    else:
        a("v_lshlrev_b32 v13, 9, v11")
        a("v_lshl_add_u32 v13, v10, 4, v13")
        a("v_add_u32 v%d, s%d, v13" % (c.VXA, S_TMP))
    a("v_bfe_u32 v12, v1, 2, 2")
    a("v_lshlrev_b32 v12, 6, v12")
    a("v_and_b32 v13, 3, v1")
    a("v_lshl_add_u32 v12, v13, 3, v12")
    qstride = (c.NB // 2) * 1024 if c.wmode == "pair" else 2 * 7 * 256
    a("v_mul_u32_u24 v13, %d, v11" % qstride)
    a("v_add_u32 v12, v12, v13")
    a("v_and_b32 v13, 1, v11")
    a("v_lshl_add_u32 v12, v13, 5, v12")
    if c.LB: a("v_add_u32 v12, %d, v12" % c.LB)
    if c.wmode == "pair":
        a("s_mul_i32 s%d, s7, %d" % (S_TMP, c.wwave_off))
        a("v_add_u32 v%d, s%d, v12" % (c.VWA, S_TMP))
        a("v_xor_b32 v%d, 32, v%d" % (c.VWA + 1, c.VWA))
    else:
        a("s_lshl_b32 s%d, s7, 5" % S_TMP)
        a("v_xor_b32 v12, s%d, v12" % S_TMP)
        a("v_xor_b32 v13, 32, v12")
        a("s_mul_i32 s%d, s7, 768" % S_TMP)
        a("v_add_u32 v%d, s%d, v12" % (c.VWA, S_TMP))
        a("s_lshl_b32 s%d, s7, 10" % S_TMP)
        a("v_add_u32 v%d, s%d, v13" % (c.VWA + 1, S_TMP))
    a("s_mov_b32 s%d, %d" % (S_SS, c.SS))
    a("s_mov_b32 s%d, 0x%x" % (S_NEG, (-(c.NS - 1) * c.SS) & 0xffffffff))

def zero_acc(a, c):
    for t in range(4):
        for b in range(c.TNI):
            for r in range(4): a("v_mov_b32 v%d, 0" % (c.ACC[t][b] + r))

def stage_body(R, c, extra=None, count_bar=1, drain=None):
    a = R.a
    nx = 2 if c.xmode == "row" else 1
    for s in range(2):
        p = s
        a("s_waitcnt lgkmcnt(0)")
        if s == 1:
            a("s_add_u32 s%d, s%d, 1" % (S_BUF, S_BUF))
            a("s_cmp_eq_u32 s%d, %d" % (S_BUF, c.NS))
            a("s_cselect_b32 s%d, s%d, s%d" % (S_DELTA, S_NEG, S_SS))
            a("s_cselect_b32 s%d, 0, s%d" % (S_BUF, S_BUF))
            for q in range(nx):
                a("v_add_u32 v%d, s%d, v%d" % (c.VXA + q, S_DELTA, c.VXA + q))
            a("v_add_u32 v%d, s%d, v%d" % (c.VWA, S_DELTA, c.VWA))
            a("v_add_u32 v%d, s%d, v%d" % (c.VWA + 1, S_DELTA, c.VWA + 1))
            if drain:
                a("s_cmp_lg_u32 s%d, %d" % (S_CNT, drain))
                a("s_cbranch_scc1 %s_nodrain" % c.name)
                a("s_waitcnt vmcnt(0)")
                a.label(c.name + "_nodrain")
            R.bar(count_bar)
        rd = reads(c, 1 - p, 1 - s)
        mf = []
        for b in range(c.TNI):
            for t in range(4):
                acc = c.ACC[t][b]
                if c.orient[b] == "T":
                    mf.append("%s %s, %s, %s, %s" % (MF16, vr(acc, 4), vr(c.WF[p][b], 4), vr(c.XF[p][t], 4), vr(acc, 4)))
                else:
                    mf.append("%s %s, %s, %s, %s" % (MF16, vr(acc, 4), vr(c.XF[p][t], 4), vr(c.WF[p][b], 4), vr(acc, 4)))
        if extra: mf += extra(c, p, s)
        ri = 0
        for m in mf:
            a(m)
            for _ in range(c.reads_per_gap):
                if ri < len(rd): a(rd[ri]); ri += 1
        while ri < len(rd): a(rd[ri]); ri += 1

def mainloop(R, c, niter_sgpr=None, nbar=None, tail=True):
    a = R.a; n = c.name
    for r in reads(c, 0, 0): a(r)
    a("s_mov_b32 s%d, 0" % S_CNT)
    a("s_mov_b32 s%d, 0" % S_BUF)
    total = nbar if nbar is not None else c.NST
    peel = getattr(c, "extra0", None)
    if peel:
        if c.peel_at > 0:
            a.label(n + "_pre")
            stage_body(R, c, count_bar=c.peel_at); total -= c.peel_at
            a("s_add_u32 s%d, s%d, 1" % (S_CNT, S_CNT))
            a("s_cmp_lt_u32 s%d, %d" % (S_CNT, c.peel_at))
            a("s_cbranch_scc1 %s_pre" % n)
        stage_body(R, c, extra=peel, count_bar=1)
        c.after0(a, c)
        a("s_mov_b32 s%d, %d" % (S_CNT, c.peel_at + 1))
        total -= 1
    a.label(n + "_loop")
    stage_body(R, c, count_bar=total)
    a("s_add_u32 s%d, s%d, 1" % (S_CNT, S_CNT))
    if niter_sgpr is None: a("s_cmp_lt_u32 s%d, %d" % (S_CNT, c.NST))
    else: a("s_cmp_lt_u32 s%d, s%d" % (S_CNT, niter_sgpr))
    a("s_cbranch_scc1 %s_loop" % n)
    if tail: a("s_waitcnt lgkmcnt(0)")

def pack_pair(a, accA, accB, P):
    a("v_cvt_pk_bf16_f32 v%d, v%d, v%d" % (P, accA, accA + 1))
    a("v_cvt_pk_bf16_f32 v%d, v%d, v%d" % (P + 1, accA + 2, accA + 3))
    a("v_cvt_pk_bf16_f32 v%d, v%d, v%d" % (P + 2, accB, accB + 1))
    a("v_cvt_pk_bf16_f32 v%d, v%d, v%d" % (P + 3, accB + 2, accB + 3))
    a("v_permlane16_swap_b32 v%d, v%d" % (P, P + 2))
    a("v_permlane16_swap_b32 v%d, v%d" % (P + 1, P + 3))

def pack4(a, P, A, B):
    a("v_cvt_pk_bf16_f32 v%d, v%d, v%d" % (P, A, A + 1))
    a("v_cvt_pk_bf16_f32 v%d, v%d, v%d" % (P + 1, A + 2, A + 3))
    a("v_cvt_pk_bf16_f32 v%d, v%d, v%d" % (P + 2, B, B + 1))
    a("v_cvt_pk_bf16_f32 v%d, v%d, v%d" % (P + 3, B + 2, B + 3))

def xq(a, op, v, t):
    a("v_mov_b32 v%d, v%d" % (t, v))
    a("v_permlane16_swap_b32 v%d, v%d" % (v, t))
    a("%s v%d, v%d, v%d" % (op, v, v, t))
    a("v_mov_b32 v%d, v%d" % (t, v))
    a("v_permlane32_swap_b32 v%d, v%d" % (v, t))
    a("%s v%d, v%d, v%d" % (op, v, v, t))

def flag_write(a, off_sgpr_or_imm, grp, vtmp=20):
    a("v_mov_b32 v%d, s%d" % (vtmp, S_NONCE))
    a("v_mov_b32 v%d, s%d" % (vtmp + 1, S_NONCE + 1))
    a("v_mov_b32 v%d, %d" % (vtmp + 2, grp))
    a("s_mov_b64 exec, 1")
    a("buffer_store_dwordx2 %s, v%d, %s, s%d offen sc1" % (vr(vtmp, 2), vtmp + 2, S(SF), off_sgpr_or_imm))
    a("s_mov_b64 exec, -1")

_pollcnt = [0]
def flag_poll(a, off_sgpr, grp, nflags, vtmp=20):
    _pollcnt[0] += 1
    L = "poll%d" % _pollcnt[0]
    a("v_lshlrev_b32 v%d, 3, v1" % (vtmp + 2))
    a("v_add_u32 v%d, %d, v%d" % (vtmp + 2, grp, vtmp + 2))
    a("s_mov_b64 exec, 0x%x" % ((1 << nflags) - 1))
    a("s_mov_b32 s80, 0")
    a.label(L)
    a("buffer_load_dwordx2 %s, v%d, %s, s%d offen sc1" % (vr(vtmp, 2), vtmp + 2, S(SF), off_sgpr))
    a("s_waitcnt vmcnt(0)")
    a("v_cmp_ne_u32 vcc, s%d, v%d" % (S_NONCE, vtmp))
    a("v_cmp_ne_u32 s[78:79], s%d, v%d" % (S_NONCE + 1, vtmp + 1))
    a("s_or_b64 s[78:79], vcc, s[78:79]")
    a("s_cmp_eq_u64 s[78:79], 0")
    a("s_cbranch_scc1 %s_ok" % L)
    a("s_sleep 2")
    a("s_add_u32 s80, s80, 1")
    a("s_cmp_lt_u32 s80, 0x40000")
    a("s_cbranch_scc1 %s" % L)
    a.label(L + "_ok")
    a("s_mov_b64 exec, -1")


def flag_poll_v(a, voff, nflags, vtmp=20, split=None):
    _pollcnt[0] += 1
    L = "poll%d" % _pollcnt[0]
    a("s_mov_b64 exec, 0x%x" % ((1 << nflags) - 1))
    a("buffer_load_dwordx2 %s, v%d, %s, 0 offen sc1" % (vr(vtmp, 2), voff, S(SF)))
    if split: split()
    a("s_mov_b32 s80, 0")
    a.label(L)
    a("s_waitcnt vmcnt(0)")
    a("v_cmp_ne_u32 vcc, s%d, v%d" % (S_NONCE, vtmp))
    a("v_cmp_ne_u32 s[78:79], s%d, v%d" % (S_NONCE + 1, vtmp + 1))
    a("s_or_b64 s[78:79], vcc, s[78:79]")
    a("s_cmp_eq_u64 s[78:79], 0")
    a("s_cbranch_scc1 %s_ok" % L)
    a("buffer_load_dwordx2 %s, v%d, %s, 0 offen sc1" % (vr(vtmp, 2), voff, S(SF)))
    a("s_add_u32 s80, s80, 1")
    a("s_cmp_lt_u32 s80, 0x40000")
    a("s_cbranch_scc1 %s" % L)
    a.label(L + "_ok")
    a("s_mov_b64 exec, -1")


L_TOP = 163840 - 64
def publish_flag(a, k, off_code, grp, n=4):
    _pollcnt[0] += 1
    L = "pub%d" % _pollcnt[0]
    a("v_mov_b32 v8, %d" % (L_TOP + 16 + 4 * k))
    a("v_mov_b32 v9, 1")
    a("s_mov_b64 exec, 1")
    a("ds_add_rtn_u32 v9, v8, v9")
    a("s_waitcnt lgkmcnt(0)")
    a("v_readfirstlane_b32 s72, v9")
    a("s_mov_b64 exec, -1")
    a("s_cmp_lg_u32 s72, %d" % (n - 1))
    a("s_cbranch_scc1 %s" % L)
    srd(a, SF, P_WS, WS_FLAG, FLAG_SZ)
    off_code(a)
    flag_write(a, 71, grp, vtmp=8)
    a.label(L)


def tag_check(a, regs, acc, name, reload_code):
    a("s_mov_b32 s80, 0")
    a.label(name + "_retry")
    a("s_waitcnt vmcnt(0)")
    a("v_min3_u32 v%d, v%d, v%d, v%d" % (acc, regs[0], regs[1], regs[2]))
    a("v_max3_u32 v%d, v%d, v%d, v%d" % (acc + 1, regs[0], regs[1], regs[2]))
    k = 3
    while k < len(regs):
        r2 = regs[k + 1] if k + 1 < len(regs) else regs[k]
        a("v_min3_u32 v%d, v%d, v%d, v%d" % (acc, acc, regs[k], r2))
        a("v_max3_u32 v%d, v%d, v%d, v%d" % (acc + 1, acc + 1, regs[k], r2))
        k += 2
    a("v_cmp_ne_u32 vcc, s%d, v%d" % (S_NONCE, acc))
    a("v_cmp_ne_u32 s[78:79], s%d, v%d" % (S_NONCE, acc + 1))
    a("s_or_b64 s[78:79], vcc, s[78:79]")
    a("s_cmp_eq_u64 s[78:79], 0")
    a("s_cbranch_scc1 %s_ok" % name)
    reload_code()
    a("s_add_u32 s80, s80, 1")
    a("s_cmp_lt_u32 s80, 0x20000")
    a("s_cbranch_scc1 %s_retry" % name)
    a.label(name + "_ok")


S_RDY = 81
def poll_mask(a, off_sgpr, grp, need_code, vtmp=20):
    _pollcnt[0] += 1
    L = "pm%d" % _pollcnt[0]
    need_code(a)
    a("s_mov_b32 s80, 0")
    a("v_lshlrev_b32 v%d, 3, v1" % (vtmp + 2))
    a("v_add_u32 v%d, %d, v%d" % (vtmp + 2, grp, vtmp + 2))
    a.label(L)
    a("s_and_b32 s77, s%d, s76" % S_RDY)
    a("s_cmp_eq_u32 s77, s76")
    a("s_cbranch_scc1 %s_ok" % L)
    a("s_mov_b64 exec, 0xffff")
    a("buffer_load_dwordx2 %s, v%d, %s, s%d offen sc1" % (vr(vtmp, 2), vtmp + 2, S(SF), off_sgpr))
    a("s_waitcnt vmcnt(0)")
    a("v_cmp_eq_u32 vcc, s%d, v%d" % (S_NONCE, vtmp))
    a("v_cmp_eq_u32 s[78:79], s%d, v%d" % (S_NONCE + 1, vtmp + 1))
    a("s_mov_b64 exec, -1")
    a("s_and_b64 s[78:79], vcc, s[78:79]")
    a("s_mov_b32 s%d, s78" % S_RDY)
    a("s_add_u32 s80, s80, 1")
    a("s_cmp_lt_u32 s80, 0x40000")
    a("s_cbranch_scc1 %s" % L)
    a.label(L + "_ok")
```

```python
from gen3 import *

def MF(a, d, x, y, c):
    a("%s %s, %s, %s, %s" % (MF16, vr(d, 4), vr(x, 4), vr(y, 4), vr(c, 4) if c is not None else "0"))

S_L2P = 94
def softmax16_list(P, E, T, outP, outN):
    L = []; a = L.append
    mx, mn, t0, t1, sp, sn = T, T+2, T+4, T+5, T+6, T+7
    a("v_max3_f32 v%d, v%d, v%d, v%d" % (mx, P, P+1, P+2))
    a("v_min3_f32 v%d, v%d, v%d, v%d" % (mn, P, P+1, P+2))
    for r in (3, 5):
        a("v_max3_f32 v%d, v%d, v%d, v%d" % (mx, mx, P+r, P+r+1))
        a("v_min3_f32 v%d, v%d, v%d, v%d" % (mn, mn, P+r, P+r+1))
    a("v_max_f32 v%d, v%d, v%d" % (mx, mx, P+7))
    a("v_min_f32 v%d, v%d, v%d" % (mn, mn, P+7))
    for sw in ("v_permlane16_swap_b32", "v_permlane32_swap_b32"):
        a("v_mov_b32 v%d, v%d" % (t0, mx))
        a("v_mov_b32 v%d, v%d" % (t1, mn))
        a("%s v%d, v%d" % (sw, mx, t0))
        a("%s v%d, v%d" % (sw, mn, t1))
        a("v_max_f32 v%d, v%d, v%d" % (mx, mx, t0))
        a("v_min_f32 v%d, v%d, v%d" % (mn, mn, t1))
    a("v_mul_f32 v%d, s%d, v%d" % (mx, S_L2P, mx))
    a("v_mul_f32 v%d, s%d, v%d" % (mn, S_L2P, mn))
    for r in range(0, 8, 2):
        a("v_pk_fma_f32 %s, %s, s[%d:%d], %s op_sel_hi:[1,1,0] neg_lo:[0,0,1] neg_hi:[0,0,1]" % (vr(E+r, 2), vr(P+r, 2), S_L2P, S_L2P+1, vr(mx, 2)))
        a("v_pk_fma_f32 %s, %s, s[%d:%d], %s op_sel_hi:[1,1,0] neg_lo:[1,0,0] neg_hi:[1,0,0]" % (vr(P+r, 2), vr(P+r, 2), S_L2P, S_L2P+1, vr(mn, 2)))
    for r in range(8):
        a("v_exp_f32 v%d, v%d" % (E+r, E+r))
        a("v_exp_f32 v%d, v%d" % (P+r, P+r))
    a("v_pk_add_f32 %s, %s, %s" % (vr(mx, 2), vr(E, 2), vr(E+2, 2)))
    a("v_pk_add_f32 %s, %s, %s" % (vr(mn, 2), vr(P, 2), vr(P+2, 2)))
    for r in (4, 6):
        a("v_pk_add_f32 %s, %s, %s" % (vr(mx, 2), vr(mx, 2), vr(E+r, 2)))
        a("v_pk_add_f32 %s, %s, %s" % (vr(mn, 2), vr(mn, 2), vr(P+r, 2)))
    a("v_add_f32 v%d, v%d, v%d" % (sp, mx, mx+1))
    a("v_add_f32 v%d, v%d, v%d" % (sn, mn, mn+1))
    for sw in ("v_permlane16_swap_b32", "v_permlane32_swap_b32"):
        a("v_mov_b32 v%d, v%d" % (t0, sp))
        a("v_mov_b32 v%d, v%d" % (t1, sn))
        a("%s v%d, v%d" % (sw, sp, t0))
        a("%s v%d, v%d" % (sw, sn, t1))
        a("v_add_f32 v%d, v%d, v%d" % (sp, sp, t0))
        a("v_add_f32 v%d, v%d, v%d" % (sn, sn, t1))
    a("v_rcp_f32 v%d, v%d" % (mx, sp))
    a("v_rcp_f32 v%d, v%d" % (mn, sn))
    for r in range(0, 8, 2):
        a("v_pk_mul_f32 %s, %s, %s op_sel_hi:[1,0]" % (vr(E+r, 2), vr(E+r, 2), vr(mx, 2)))
        a("v_pk_mul_f32 %s, %s, %s op_sel_hi:[1,0]" % (vr(P+r, 2), vr(P+r, 2), vr(mn, 2)))
    for (o, X) in ((outP, E), (outN, P)):
        for d in range(4): a("v_cvt_pk_bf16_f32 v%d, v%d, v%d" % (o + d, X + 2*d, X + 2*d + 1))
    return L

def interleave(a, *lists):
    n = max(len(l) for l in lists)
    for k in range(n):
        for l in lists:
            if k < len(l): a(l[k])

def feature_map(a, WP, XFr, outs):
    for t0 in (0, 2):
        sets = []
        for k in range(2):
            PK = 16 + 32*k
            MF(a, PK, WP, XFr + 4*(t0 + k), None)
            MF(a, PK + 4, WP + 4, XFr + 4*(t0 + k), None)
        for k in range(2):
            PK = 16 + 32*k
            sets.append(softmax16_list(PK, PK + 8, PK + 16, outs[t0 + k][0], outs[t0 + k][1]))
        interleave(a, *sets)

def feature_map2(a, WP, frags, outs, extra=None):
    sets = []
    for k in range(2):
        PK = 16 + 32*k
        MF(a, PK, WP, frags[k], None)
        MF(a, PK + 4, WP + 4, frags[k], None)
    for k in range(2):
        PK = 16 + 32*k
        sets.append(softmax16_list(PK, PK + 8, PK + 16, outs[k][0], outs[k][1]))
    if extra: sets.append(extra)
    interleave(a, *sets)

def ln_T_list(acc, cs, st, tmp):
    L = []
    for r in (0, 2):
        L.append("v_pk_mul_f32 %s, %s, %s op_sel:[0,1] op_sel_hi:[1,1]" % (vr(tmp + r, 2), vr(cs + r, 2), vr(st, 2)))
    for r in (0, 2):
        L.append("v_pk_fma_f32 %s, %s, %s, %s op_sel:[0,0,0] op_sel_hi:[1,0,1]" % (vr(acc + r, 2), vr(acc + r, 2), vr(st, 2), vr(tmp + r, 2)))
    return L

def pht_write_addr(a, sw, WA):
    a("s_lshl_b32 s70, s%d, 13" % sw)
    a("v_bfe_u32 v14, v10, 1, 2")
    a("v_bfe_u32 v15, v10, 2, 1")
    a("v_lshl_or_b32 v14, v15, 2, v14")
    a("v_xor_b32 v14, v14, v11")
    a("v_lshlrev_b32 v15, 6, v10")
    a("v_lshl_add_u32 v15, v14, 3, v15")
    a("v_add_u32 v%d, s70, v15" % WA)
    a("v_xor_b32 v%d, 32, v%d" % (WA + 1, WA))

def o_part(a, PHQ, ntile0, si, sj, Rr):
    srd(a, SC, P_WS, WS_O, SZ_ACT)
    a("v_lshrrev_b32 v11, 4, v1")
    a("v_lshlrev_b32 v12, 4, v1")
    a("s_lshl_b32 s70, s%d, 12" % sj)
    a("s_add_u32 s70, s70, %d" % L1_KVF)
    a("v_add_u32 v13, s70, v12")
    KF2 = 112; ZF2 = 160
    for k in range(4): a("ds_read_b128 %s, v13 offset:%d" % (vr(KF2 + 4*k, 4), k * 1024))
    a("s_lshl_b32 s70, s%d, 7" % sj)
    a("s_add_u32 s70, s70, %d" % L1_ZF)
    a("v_lshlrev_b32 v14, 4, v11")
    a("v_add_u32 v14, s70, v14")
    for sg in range(2): a("ds_read_b128 %s, v14 offset:%d" % (vr(ZF2 + 4*sg, 4), sg * 64))
    a("s_lshl_b32 s70, s4, 2")
    a("s_lshl_b32 s71, s%d, 1" % si)
    a("s_add_u32 s70, s70, s71")
    a("s_add_u32 s70, s70, %d" % (ntile0 // 2))
    a("s_lshl_b32 s70, s70, 7")
    a("s_lshl_b32 s71, s5, 3")
    a("s_add_u32 s70, s70, s71")
    a("s_lshl_b32 s71, s%d, 2" % sj)
    a("s_add_u32 s70, s70, s71")
    a("s_lshl_b32 s70, s70, 9")
    a("s_lshl_b32 s88, s4, 7")
    a("s_lshl_b32 s71, s5, 3")
    a("s_add_u32 s88, s88, s71")
    a("s_waitcnt lgkmcnt(0)")
    O = 16
    for t in range(2):
        d = 48 + 4*t
        MF(a, d, ZF2, PHQ + t*8, None)
        MF(a, d, ZF2 + 4, PHQ + t*8 + 4, d)
    for t in range(2):
        for nt in range(2):
            d = O + (t*2 + nt)*4
            MF(a, d, KF2 + nt*4, PHQ + t*8, None)
            MF(a, d, KF2 + (2 + nt)*4, PHQ + t*8 + 4, d)
    for t in range(2): a("v_add_f32 v%d, 0x358637bd, v%d" % (64 + 2*t, 48 + 4*t))
    for t in range(2): a("v_rcp_f32 v%d, v%d" % (64 + 2*t, 64 + 2*t))
    for t in range(2):
        for r in range(0, 8, 2): a("v_pk_mul_f32 %s, %s, %s op_sel_hi:[1,0]" % (vr(O + t*8 + r, 2), vr(O + t*8 + r, 2), vr(64 + 2*t, 2)))
    for nt in range(2):
        P = 72 + nt*4
        pack_pair(a, O + nt*4, O + (2 + nt)*4, P)
        a("buffer_store_dwordx4 %s, v12, %s, s70 offen offset:%d sc1" % (vr(P, 4), S(SC), nt * 1024))

def wphi_frags(a, WP, sj):
    a("v_lshrrev_b32 v11, 4, v1")
    a("v_bfe_u32 v12, v1, 2, 2")
    a("v_and_b32 v13, 3, v1")
    a("v_lshlrev_b32 v14, 8, v11")
    a("v_lshl_add_u32 v14, v12, 6, v14")
    a("v_lshl_add_u32 v14, v13, 3, v14")
    a("s_lshl_b32 s70, s%d, 11" % sj)
    a("s_add_u32 s70, s70, %d" % L1_WPHI)
    a("v_add_u32 v14, s70, v14")
    for b in range(2):
        for e in range(2):
            a("ds_read_b64_tr_b16 %s, v14 offset:%d" % (vr(WP + 4*b + 2*e, 2), e * 1024 + b * 32))

def base_cfg(name):
    c = Cfg(); c.name = name
    c.koff = None; c.loader_pre = None; c.jump_at = None; c.jump = None; c.LB = 0; c.rot = None; c.peel_at = 0; c.helper_stage = None
    c.VXA = 2; c.VWA = 6; c.reads_per_gap = 1
    return c

L1_WPHI = 122880; L1_KVF = 126976; L1_ZF = 135168
L1_ST = 135424; L1_CS = 136448; L1_CSA = 137216; L_NONCE = L_TOP
def p1_cfg():
    c = base_cfg("p1"); c.NB = 6; c.TNI = 6
    c.xmode = "row"; c.wmode = "pair"; c.NST = 16; c.NS = 3; c.flag = False
    c.ldx = 2048; c.ldw = 6144; c.strip = [0, 2048, 4096]; c.ntile_bytes = 128
    c.SS = 16384 + 6 * 4096
    c.orient = ["T", "T", "T", "T", "N", "N"]
    c.tmap = lambda a, c: tile_map(a, 8, 4)
    c.wwave_off = 256
    c.wtile = lambda b: (2 * (b >> 1), b & 1, c.VWA + (b & 1))
    c.ACC = [[16 + (t * 6 + b) * 4 for b in range(6)] for t in range(4)]
    c.XF = [[112 + p * 16 + t * 4 for t in range(4)] for p in range(2)]
    c.WF = [[144 + p * 24 + b * 4 for b in range(6)] for p in range(2)]
    def srds_loader(a, c):
        srd(a, SX, P_X, 0, SZ_ACT)
        srd(a, SW, P_WQKV, 0, 1024*3072*2)
        srd(a, SA, P_WPHI, 0, 32*2048)
    c.srds_loader = srds_loader
    def loader_pre(a, c):
        a("v_lshlrev_b32 v20, 4, v1")
        a("s_lshl_b32 s70, s5, 12")
        a("s_lshl_b32 s71, s7, 11")
        a("s_add_u32 s70, s70, s71")
        a("s_add_u32 m0, s71, %d" % L1_WPHI)
        a("s_nop 0")
        a("buffer_load_dwordx4 v20, %s, s70 offen lds" % S(SA))
        a("buffer_load_dwordx4 v20, %s, s70 offen offset:1024 lds" % S(SA))
        return 2
    c.loader_pre = loader_pre
    def rot(a, c):
        a("s_add_u32 s86, s4, s5")
        a("s_and_b32 s86, s86, 15")
    c.rot = rot; c.peel_at = G.p1peel; c.helper_stage = None
    if G.touch_mode == 1:
        c.tail_touch = lambda a, c: ((code_prefetch(a, 30) if G.jit_cpf else 0) + touches(a, [(P_WO, 1024*1024*2), (P_W1, 1024*3584*2)], 200, SR=SB))
    if G.touch_mode == 4:
        c.tail_touch = lambda a, c: touches(a, [(P_WO, 1024*1024*2)], 200, SR=SB)
    if G.touch_mode == 5:
        c.tail_touch = lambda a, c: touches(a, [(P_WO, 1024*1024*2), (P_W1, 512*3584*2)], 200, SR=SB)
    if G.touch_mode == 3:
        c.trickle = [(P_WO, 1024*1024*2, 3, 0), (P_W1, 1024*3584*2, 6, 0)]
        if G.jit_cpf: c.tail_touch = lambda a, c: code_prefetch(a, 30)
    if G.touch_mode == 2:
        c.tail_touch = lambda a, c: touches(a, [(P_WO, 1024*1024*2), (P_W1, 1024*3584*2), (P_W2, 3584*1024*2)], 200, SR=SB)
    ONES, CS, RS, RQ = 192, 196, 220, 236
    def extra0(c, p, s):
        out = []
        for b in range(6):
            d = CS + 4*b
            out.append("%s %s, %s, %s, %s" % (MF16, vr(d, 4), vr(c.WF[p][b], 4), vr(ONES, 4), vr(d, 4) if s else "0"))
        for t in range(4):
            d = RS + 4*t
            out.append("%s %s, %s, %s, %s" % (MF16, vr(d, 4), vr(ONES, 4), vr(c.XF[p][t], 4), vr(d, 4) if s else "0"))
            d = RQ + 4*t
            out.append("%s %s, %s, %s, %s" % (MF16, vr(d, 4), vr(c.XF[p][t], 4), vr(c.XF[p][t], 4), vr(d, 4) if s else "0"))
        return out
    c.extra0 = extra0
    def pre_loop(a, c):
        for r in range(4): a("v_mov_b32 v%d, 0x3f803f80" % (ONES + r))
    c.pre_loop = pre_loop
    def after0(a, c):
        a("v_lshrrev_b32 v11, 4, v1")
        a("v_and_b32 v10, 15, v1")
        a("s_cmp_lg_u32 s6, 0")
        a("s_cbranch_scc1 p1a0_nocs")
        a("s_lshl_b32 s70, s7, 7")
        a("s_add_u32 s70, s70, %d" % L1_CSA)
        a("v_lshlrev_b32 v8, 4, v11")
        a("v_add_u32 v8, s70, v8")
        a("s_mov_b32 exec_lo, 0x00010001")
        a("s_mov_b32 exec_hi, 0x00010001")
        for b in range(6):
            a("ds_write_b128 v8, %s offset:%d" % (vr(CS + 4*b, 4), (b >> 1) * 256 + (b & 1) * 64))
        a("s_mov_b64 exec, -1")
        a.label("p1a0_nocs")
        a("s_cmp_lg_u32 s7, 0")
        a("s_cbranch_scc1 p1a0_nors")
        a("v_and_b32 v8, 3, v10")
        a("v_cmp_eq_u32 s[72:73], 1, v8")
        a("v_cmp_eq_u32 s[74:75], 2, v8")
        a("v_cmp_eq_u32 s[76:77], 3, v8")
        a("s_lshl_b32 s70, s6, 9")
        a("s_add_u32 s70, s70, %d" % L1_ST)
        a("v_lshlrev_b32 v9, 3, v10")
        a("v_add_u32 v9, s70, v9")
        for t in range(4):
            d = RQ + 4*t
            a("v_cndmask_b32 v%d, v%d, v%d, s[72:73]" % (RS + 4*t + 1, d, d + 1))
            a("v_cndmask_b32 v%d, v%d, v%d, s[74:75]" % (RS + 4*t + 1, RS + 4*t + 1, d + 2))
            a("v_cndmask_b32 v%d, v%d, v%d, s[76:77]" % (RS + 4*t + 1, RS + 4*t + 1, d + 3))
        a("s_mov_b32 exec_lo, 0x00f0000f")
        a("s_mov_b32 exec_hi, 0xf0000f00")
        for t in range(4):
            a("ds_write_b64 v9, %s offset:%d" % (vr(RS + 4*t, 2), t * 128))
        a("s_mov_b64 exec, -1")
        a.label("p1a0_nors")
    c.after0 = after0
    return c

L3_XT = 139264
def p3_cfg():
    c = base_cfg("p3"); c.NB = 2; c.TNI = 2
    c.xmode = "blk"; c.wmode = "pair"; c.KX = 1024; c.NST = 16; c.NS = 5; c.flag = True
    c.ldw = 2048; c.strip = [0]; c.ntile_bytes = 128
    c.SS = 16384 + 2 * 4096
    c.orient = ["T"] * 2
    c.tmap = lambda a, c: tile_map(a, 4, 8)
    c.wwave_off = 256
    c.wtile = lambda b: (0, b & 1, c.VWA + (b & 1))
    c.ACC = [[16 + (t * 2 + b) * 4 for b in range(2)] for t in range(4)]
    c.XF = [[48 + p * 16 + t * 4 for t in range(4)] for p in range(2)]
    c.WF = [[80 + p * 8 + b * 4 for b in range(2)] for p in range(2)]
    c.reads_per_gap = 2
    def srds_loader(a, c):
        srd(a, SX, P_WS, WS_O, SZ_ACT)
        srd(a, SW, P_WO, 0, 1024*1024*2)
        srd(a, SA, P_X, 0, SZ_ACT)
    c.srds_loader = srds_loader
    def loader_pre(a, c):
        a("v_lshrrev_b32 v10, 3, v1")
        a("v_lshlrev_b32 v10, 11, v10")
        a("v_and_b32 v11, 7, v1")
        a("v_lshrrev_b32 v12, 4, v1")
        a("v_xor_b32 v13, v11, v12")
        a("v_lshl_add_u32 v20, v13, 4, v10")
        a("v_xor_b32 v13, 4, v13")
        a("v_lshl_add_u32 v21, v13, 4, v10")
        a("s_lshl_b32 s70, s4, 7")
        a("s_lshl_b32 s71, s7, 6")
        a("s_add_u32 s70, s70, s71")
        a("s_lshl_b32 s70, s70, 11")
        a("s_lshl_b32 s71, s5, 7")
        a("s_add_u32 s70, s70, s71")
        a("s_lshl_b32 s71, s7, 13")
        a("s_add_u32 s71, s71, %d" % L3_XT)
        for j in range(8):
            a("s_add_u32 m0, s71, %d" % (j * 1024))
            a("s_add_u32 s%d, s70, %d" % (S_TMP, j * 8 * 2048))
            a("buffer_load_dwordx4 v%d, %s, s%d offen lds" % (20 + (j & 1), S(SA), S_TMP))
        return 8
    c.loader_pre = loader_pre
    if G.touch_mode == 1:
        c.tail_touch = lambda a, c: ((code_prefetch(a, 30) if G.jit_cpf else 0) + touches(a, [(P_W2, 3584*1024*2)], 200, SR=SB))
    if G.touch_mode == 4:
        c.tail_touch = lambda a, c: touches(a, [(P_W1, 1024*3584*2)], 200, SR=SB)
    if G.touch_mode == 5:
        def tt(a, c):
            a("s_add_u32 s76, s%d, %d" % (P_W1, 512*3584*2)); a("s_addc_u32 s77, s%d, 0" % (P_W1 + 1))
            return touches(a, [(76, 512*3584*2), (P_W2, 1792*1024*2)], 200, SR=SB)
        c.tail_touch = tt
    if G.touch_mode == 3:
        c.trickle = [(P_W1, 1024*3584*2, 4, 78)]
        if G.jit_cpf: c.tail_touch = lambda a, c: code_prefetch(a, 30)
    return c

L4_TAB = 135168
def p4_cfg():
    c = base_cfg("p4"); c.NB = 7; c.TNI = 7
    c.xmode = "blk"; c.wmode = "lin7"; c.KX = 1024; c.NST = 16; c.NS = 3; c.flag = True
    c.ldw = 7168; c.ntile_bytes = 448
    c.SS = 16384 + 7 * 4096
    c.orient = ["T"] * 7
    c.tmap = lambda a, c: tile_map(a, 8, 4)
    c.wtile = lambda b: (b >> 1, b & 1, c.VWA + (b & 1))
    c.ACC = [[16 + (t * 7 + b) * 4 for b in range(7)] for t in range(4)]
    c.XF = [[128 + p * 16 + t * 4 for t in range(4)] for p in range(2)]
    c.WF = [[160 + p * 28 + b * 4 for b in range(7)] for p in range(2)]
    def srds_loader(a, c):
        srd(a, SX, P_WS, WS_H, SZ_ACT)
        srd(a, SW, P_W1, 0, 1024*3584*2)
    c.srds_loader = srds_loader
    if G.jit_cpf: c.tail_touch = lambda a, c: code_prefetch(a, 30)
    if G.touch_mode == 3: c.trickle = [(P_W2, 3584*1024*2, 9, 0)]
    if G.touch_mode == 4: c.tail_touch = lambda a, c: touches(a, [(P_W2, 3584*1024*2)], 200, SR=SB)
    if G.touch_mode == 5:
        def tt4(a, c):
            a("s_add_u32 s76, s%d, %d" % (P_W2, 1792*1024*2)); a("s_addc_u32 s77, s%d, 0" % (P_W2 + 1))
            return touches(a, [(76, 1792*1024*2)], 200, SR=SB)
        c.tail_touch = tt4
    def rot(a, c): a("s_mov_b32 s86, s4")
    c.rot = None if G.x_norot4 else rot
    ONES, CS = 244, 216
    def extra0(c, p, s):
        return ["%s %s, %s, %s, %s" % (MF16, vr(CS + 4*b, 4), vr(c.WF[p][b], 4), vr(ONES, 4), vr(CS + 4*b, 4) if s else "0") for b in range(7)]
    c.extra0 = extra0
    def pre_loop(a, c):
        for r in range(4): a("v_mov_b32 v%d, 0x3f803f80" % (ONES + r))
    c.pre_loop = pre_loop
    def after0(a, c):
        a("s_cmp_lg_u32 s6, 0")
        a("s_cbranch_scc1 p4a0_nocs")
        a("s_mul_i32 s70, s7, 448")
        a("s_add_u32 s70, s70, %d" % (L4_TAB + 3072))
        a("v_lshrrev_b32 v8, 4, v1")
        a("v_lshlrev_b32 v8, 4, v8")
        a("v_add_u32 v8, s70, v8")
        a("s_mov_b32 exec_lo, 0x00010001")
        a("s_mov_b32 exec_hi, 0x00010001")
        for b in range(7):
            a("ds_write_b128 v8, %s offset:%d" % (vr(CS + 4*b, 4), b * 64))
        a("s_mov_b64 exec, -1")
        a.label("p4a0_nocs")
    c.after0 = after0
    return c

KSEND, KKEEP = 24, 32
def p5_tmap(a, c):
    a("s_and_b32 s82, s30, 1")
    a("s_lshr_b32 s4, s30, 1")
    a("s_lshl_b32 s4, s4, 2")
    a("s_and_b32 s%d, s31, 3" % S_TMP)
    a("s_add_u32 s4, s4, s%d" % S_TMP)
    a("s_lshr_b32 s5, s31, 2")
def p5_cfg():
    c = base_cfg("p5"); c.NB = 4; c.TNI = 4
    c.xmode = "blk"; c.wmode = "pair"; c.KX = 3584; c.NST = KKEEP; c.NS = 4; c.flag = True
    c.ldw = 2048; c.strip = [0, 128]; c.ntile_bytes = 256
    c.SS = 16384 + 4 * 4096
    c.orient = ["T"] * 4
    c.tmap = p5_tmap
    c.wwave_off = 1024
    c.wtile = lambda b: (b >> 1, b & 1, c.VWA + (b & 1))
    c.ACC = [[16 + (t * 4 + b) * 4 for b in range(4)] for t in range(4)]
    c.XF = [[80 + p * 16 + t * 4 for t in range(4)] for p in range(2)]
    c.WF = [[112 + p * 16 + b * 4 for b in range(4)] for p in range(2)]
    def srds_loader(a, c):
        srd(a, SX, P_WS, WS_F, SZ_F)
        srd(a, SW, P_W2, 0, 3584*1024*2)
    c.srds_loader = srds_loader
    def koff(a, c):
        a("s_mul_i32 s%d, s82, %d" % (S_TMP, KKEEP * 4096))
        a("s_add_u32 s%d, s%d, s%d" % (S_XOFF, S_XOFF, S_TMP))
        a("s_mul_i32 s%d, s82, %d" % (S_TMP, KKEEP * 64 * 2048))
        a("s_add_u32 s%d, s%d, s%d" % (S_WOFF, S_WOFF, S_TMP))
    c.koff = koff
    c.jump_at = KSEND
    def jump(a, c):
        a("s_mul_i32 s%d, s82, %d" % (S_TMP, KKEEP * 4096))
        a("s_sub_u32 s%d, s%d, s%d" % (S_XOFF, S_XOFF, S_TMP))
        a("s_mul_i32 s%d, s82, %d" % (S_TMP, KKEEP * 64 * 2048))
        a("s_sub_u32 s%d, s%d, s%d" % (S_WOFF, S_WOFF, S_TMP))
        if G.p5skip:
            a("s_cmp_lg_u32 s7, s82")
            a("s_cselect_b32 s%d, 0x70000000, s%d" % (S_XOFF, S_XOFF))
    c.jump = jump
    return c

def kv_gather(a, do_z):
    srd(a, SA, P_WS, WS_KVP, 16*16*8192)
    a("v_lshlrev_b32 v8, 4, v1")
    a("s_lshl_b32 s70, s5, 17")
    a("s_lshl_b32 s71, s3, 10")
    a("s_add_u32 s70, s70, s71")
    L = 32
    for m in range(16):
        a("buffer_load_dwordx4 %s, v8, %s, s70 offen sc1" % (vr(L + 4*m, 4), S(SA)))
        if m < 15: a("s_add_u32 s70, s70, 8192")
    if do_z:
        srd(a, SB, P_WS, WS_ZP, 16*16*512)
        a("v_lshlrev_b32 v9, 2, v1")
        a("s_lshl_b32 s72, s5, 13")
        a("s_sub_u32 s73, s3, 6")
        a("s_lshl_b32 s73, s73, 8")
        a("s_add_u32 s72, s72, s73")
        for m in range(16):
            a("buffer_load_dword v%d, v9, %s, s72 offen sc1" % (96 + m, S(SB)))
            if m < 15: a("s_add_u32 s72, s72, 512")
    a("s_mov_b32 s74, 0x00003f80")
    a("s_mov_b32 s75, 0x3f800000")
    A = 16
    for r in range(8): a("v_mov_b32 v%d, 0" % (A + r))
    a("v_mov_b32 v24, s74")
    a("v_mov_b32 v25, s75")
    a("s_waitcnt vmcnt(%d)" % (16 if do_z else 0))
    for m in range(16):
        for d in range(4):
            a("v_dot2c_f32_bf16 v%d, v%d, v24" % (A + 2*d, L + 4*m + d))
            a("v_dot2c_f32_bf16 v%d, v%d, v25" % (A + 2*d + 1, L + 4*m + d))
    for d in range(4): a("v_cvt_pk_bf16_f32 v%d, v%d, v%d" % (28 + d, A + 2*d, A + 2*d + 1))
    a("s_lshl_b32 s71, s3, 10")
    a("s_add_u32 s71, s71, %d" % L1_KVF)
    a("v_add_u32 v8, s71, v8")
    a("ds_write_b128 v8, v[28:31]")
    if do_z:
        a("s_waitcnt vmcnt(0)")
        for m in range(1, 16): a("v_add_f32 v96, v96, v%d" % (96 + m))
        a("v_cvt_pk_bf16_f32 v96, v96, v96")
        a("v_lshlrev_b32 v9, 1, v1")
        a("s_sub_u32 s73, s3, 6")
        a("s_lshl_b32 s73, s73, 7")
        a("s_add_u32 s73, s73, %d" % L1_ZF)
        a("v_add_u32 v9, s73, v9")
        a("ds_write_b16 v9, v96")
    a("s_waitcnt lgkmcnt(0)")

def off_mn(a):
    a("s_lshl_b32 s70, s4, 7")
    a("s_lshl_b32 s71, s5, 3")
    a("s_add_u32 s71, s71, s70")
def off_nm(a):
    a("s_lshl_b32 s70, s5, 7")
    a("s_lshl_b32 s71, s4, 3")
    a("s_add_u32 s71, s71, s70")

def compute_role(a):
    R = Role(a)
    a("s_lshr_b32 s6, s3, 1")
    a("s_and_b32 s7, s3, 1")
    if G.st_touch:
        a("s_lshl_b32 s76, s2, 2")
        a("s_add_u32 s76, s76, s3")
        if G.t1sleep: a("s_sleep %d" % G.t1sleep)
        start_touch(a, 76, 1)
    c = p1_cfg()
    c.tmap(a, c)
    compute_addr(a, c)
    zero_acc(a, c)
    c.pre_loop(a, c)
    R.bar()
    stamp(a, 1); cstamp(a, 32)
    mainloop(R, c)
    stamp(a, 2); cstamp(a, 33)
    p1_epilogue(R, c)
    if G.stop_after <= 1: return R
    c = p3_cfg()
    c.tmap(a, c)
    compute_addr(a, c)
    zero_acc(a, c)
    R.bar()
    R.bar()
    stamp(a, 6); cstamp(a, 34)
    mainloop(R, c)
    stamp(a, 7); cstamp(a, 35)
    p3_epilogue(a, c)
    if G.stop_after > 3: R.bar()
    a("s_waitcnt vmcnt(0)")
    publish_flag(a, 2, off_mn, FL_C)
    stamp(a, 8)
    if G.stop_after <= 3: return R
    c = p4_cfg()
    c.tmap(a, c)
    compute_addr(a, c)
    zero_acc(a, c)
    c.pre_loop(a, c)
    R.bar(); R.bar()
    stamp(a, 9); cstamp(a, 36)
    mainloop(R, c)
    stamp(a, 10); cstamp(a, 37)
    p4_epilogue(a, c)
    if G.stop_after > 4: R.bar()
    a("s_waitcnt vmcnt(0)")
    publish_flag(a, 3, off_mn, FL_D)
    stamp(a, 11)
    if G.stop_after <= 4: return R
    c = p5_cfg()
    c.tmap(a, c)
    compute_addr(a, c)
    zero_acc(a, c)
    R.bar()
    p5_pre(a, c)
    R.bar()
    stamp(a, 12); cstamp(a, 38)
    a("s_cmp_eq_u32 s6, s82")
    if G.p5pre:
        a("s_cselect_b32 s81, %d, %d" % (KKEEP - 2, KSEND))
        mainloop(R, c, niter_sgpr=81, nbar=KKEEP - 2, tail=False)
        a("s_cmp_eq_u32 s6, s82")
        a("s_cbranch_scc0 p5_loopdone")
        p5_fetch_partial(a, c)
        c.name = "p5b"
        a("s_mov_b32 s%d, 0" % S_CNT)
        a.label("p5b_loop")
        stage_body(R, c, count_bar=2)
        a("s_add_u32 s%d, s%d, 1" % (S_CNT, S_CNT))
        a("s_cmp_lt_u32 s%d, 2" % S_CNT)
        a("s_cbranch_scc1 p5b_loop")
        a.label("p5_loopdone")
        a("s_waitcnt lgkmcnt(0)")
    else:
        a("s_cselect_b32 s81, %d, %d" % (KKEEP, KSEND))
        mainloop(R, c, niter_sgpr=81, nbar=KKEEP)
    stamp(a, 13); cstamp(a, 39)
    p5_epilogue(a, c)
    return R

L1_QL = 65536
def p1_epilogue(R, c):
    a = R.a
    a("v_mov_b32 v14, %d" % L_NONCE)
    a("ds_read_b64 v[8:9], v14")
    a("s_mov_b32 s%d, 0x%x" % (S_L2P, LOG2E))
    a("s_mov_b32 s%d, 0x%x" % (S_L2P + 1, LOG2E))
    srd(a, SA, P_WS, WS_KVP, 16*16*8192)
    srd(a, SB, P_WS, WS_ZP, 16*16*512)
    WP = 112
    wphi_frags(a, WP, 7)
    a("v_and_b32 v10, 15, v1")
    a("v_bfe_u32 v12, v1, 2, 2")
    a("v_and_b32 v13, 3, v1")
    LS = 192
    a("s_lshl_b32 s70, s6, 9")
    a("s_add_u32 s70, s70, %d" % L1_ST)
    a("v_lshlrev_b32 v14, 3, v10")
    a("v_add_u32 v14, s70, v14")
    for t in range(4): a("ds_read_b64 %s, v14 offset:%d" % (vr(LS + 2*t, 2), t * 128))
    a("s_lshl_b32 s71, s7, 7")
    a("s_add_u32 s71, s71, %d" % L1_CS)
    a("v_lshlrev_b32 v15, 4, v11")
    a("v_add_u32 v15, s71, v15")
    for b in range(4): a("ds_read_b128 %s, v15 offset:%d" % (vr(232 + 4*b, 4), (b >> 1) * 256 + (b & 1) * 64))
    a("v_lshlrev_b32 v14, 5, v11")
    a("v_add_u32 v14, s70, v14")
    for t in range(4):
        for hh in range(2): a("ds_read_b128 %s, v14 offset:%d" % (vr(200 + 8*t + 4*hh, 4), t * 128 + hh * 16))
    a("v_lshlrev_b32 v14, 2, v10")
    a("v_add_u32 v14, s71, v14")
    for nt in range(2): a("ds_read_b32 v%d, v14 offset:%d" % (248 + nt, 512 + nt * 64))
    a("v_lshlrev_b32 v15, 4, v1")
    a("s_lshl_b32 s70, s3, 13")
    a("s_add_u32 s70, s70, %d" % L1_QL)
    a("v_add_u32 v15, s70, v15")
    for k, (t, b) in enumerate(((2, 0), (2, 1), (3, 0), (3, 1))):
        a("ds_write_b128 v15, %s offset:%d" % (vr(c.ACC[t][b], 4), 2048 + k * 1024))
    a("s_waitcnt lgkmcnt(0)")
    a("v_readfirstlane_b32 s%d, v8" % S_NONCE)
    a("v_readfirstlane_b32 s%d, v9" % (S_NONCE + 1))
    QF = 120; KF = 136; VF = 152
    for t in (2, 3, 0, 1):
        for l in ln_T_list(c.ACC[t][2], 232 + 8, LS + 2*t, 250) + ln_T_list(c.ACC[t][3], 232 + 12, LS + 2*t, 250): a(l)
        pack4(a, KF + 4*t, c.ACC[t][2], c.ACC[t][3])
        if t >= 2: a("ds_write_b128 v15, %s offset:%d" % (vr(KF + 4*t, 4), (t - 2) * 1024))
    for t in (0, 1):
        for l in ln_T_list(c.ACC[t][0], 232, LS + 2*t, 250) + ln_T_list(c.ACC[t][1], 232 + 4, LS + 2*t, 250): a(l)
        pack4(a, QF + 4*t, c.ACC[t][0], c.ACC[t][1])
    a("s_waitcnt lgkmcnt(0)")
    stamp(a, 40)
    R.bar()
    stamp(a, 41)
    for t in range(4):
        for nt in range(2):
            acc = c.ACC[t][4 + nt]
            for r in range(4): a("v_mul_f32 v%d, v%d, v%d" % (250 + r, 200 + 8*t + 2*r + 1, 248 + nt))
            for r in range(4): a("v_fma_f32 v%d, v%d, v%d, v%d" % (acc + r, acc + r, 200 + 8*t + 2*r, 250 + r))
    for u in range(2):
        for nt in range(2):
            pack4(a, VF + (u*2 + nt)*4, c.ACC[2*u][4 + nt], c.ACC[2*u + 1][4 + nt])
    WA = 8; RA = 4
    pht_write_addr(a, 3, WA)
    a("s_lshl_b32 s70, s3, 13")
    a("v_lshl_add_u32 v14, v11, 2, v12")
    a("v_bfe_u32 v15, v14, 1, 2")
    a("v_bfe_u32 v2, v14, 2, 1")
    a("v_lshl_or_b32 v15, v2, 2, v15")
    a("v_xor_b32 v15, v15, v13")
    a("v_lshlrev_b32 v14, 6, v14")
    a("v_lshl_add_u32 v14, v15, 3, v14")
    a("v_add_u32 v%d, s70, v14" % RA)
    a("v_xor_b32 v%d, 32, v%d" % (RA + 1, RA))
    ONES = 168
    for r in range(4): a("v_mov_b32 v%d, 0x3f803f80" % (ONES + r))
    PHK = 220
    stamp(a, 42)
    feature_map2(a, WP, [KF, KF + 4], [(PHK, PHK + 4), (PHK + 8, PHK + 12)])
    for t in range(2):
        for sg in range(2):
            for b in range(2):
                a("ds_write_b64 v%d, %s offset:%d" % (WA + b, vr(PHK + 8*t + 4*sg + 2*b, 2), sg * 4096 + t * 1024))
    a("s_waitcnt lgkmcnt(0)")
    stamp(a, 43)
    R.bar()
    KV = 172; Z = 204; PH = 80
    k = 0; frs = []
    for u in range(2):
        for sg in range(2):
            for b in range(2):
                ph = PH + 4*k; k += 1
                for e in range(2):
                    a("ds_read_b64_tr_b16 %s, v%d offset:%d" % (vr(ph + 2*e, 2), RA + b, sg * 4096 + u * 2048 + e * 1024))
                frs.append((u, sg, b, ph))
    for n_, (u, sg, b, ph) in enumerate(frs):
        if n_ in (0, 4): a("s_waitcnt lgkmcnt(%d)" % (8 if n_ == 0 else 0))
        for nt in range(2):
            d = KV + ((sg*2 + b)*2 + nt)*4
            MF(a, d, ph, VF + (u*2 + nt)*4, None if u == 0 else d)
        d = Z + (sg*2 + b)*4
        MF(a, d, ph, ONES, None if u == 0 else d)
    stamp(a, 44)
    a("v_lshlrev_b32 v12, 4, v1")
    a("s_lshl_b32 s70, s3, 13")
    a("s_add_u32 s70, s70, 32768")
    a("v_add_u32 v13, s70, v12")
    a("s_xor_b32 s71, s3, 2")
    a("s_lshl_b32 s71, s71, 13")
    a("s_add_u32 s71, s71, 32768")
    a("v_add_u32 v14, s71, v12")
    a("s_cmp_eq_u32 s6, 0")
    a("s_cbranch_scc1 p1e_i0")
    nb0 = R.nb
    for keep, lab in ((1, None), (0, "p1e_i0")):
        if lab: a.label(lab)
        send = 1 - keep
        for q in range(4):
            a("ds_write_b128 v13, %s offset:%d" % (vr(KV + send*16 + 4*q, 4), q * 1024))
        for q in range(2):
            a("ds_write_b128 v13, %s offset:%d" % (vr(Z + send*8 + 4*q, 4), 4096 + q * 1024))
        a("s_waitcnt lgkmcnt(0)")
        R.nb = nb0
        R.bar()
        X = 80
        for q in range(4):
            a("ds_read_b128 %s, v14 offset:%d" % (vr(X + 4*q, 4), q * 1024))
        for q in range(2):
            a("ds_read_b128 %s, v14 offset:%d" % (vr(X + 16 + 4*q, 4), 4096 + q * 1024))
        a("s_lshl_b32 s70, s5, 4")
        a("s_add_u32 s70, s70, s4")
        a("s_lshl_b32 s72, s70, 9")
        a("s_lshl_b32 s70, s70, 3")
        a("s_lshl_b32 s71, s7, 2")
        a("s_add_u32 s70, s70, s71")
        a("s_add_u32 s70, s70, %d" % (keep * 2))
        a("s_lshl_b32 s70, s70, 10")
        a("s_lshl_b32 s71, s7, 8")
        a("s_add_u32 s72, s72, s71")
        a("s_add_u32 s72, s72, %d" % (keep * 128))
        a("v_lshlrev_b32 v15, 5, v11")
        a("s_waitcnt lgkmcnt(0)")
        for r in range(0, 16, 2): a("v_pk_add_f32 %s, %s, %s" % (vr(KV + keep*16 + r, 2), vr(KV + keep*16 + r, 2), vr(X + r, 2)))
        for r in range(0, 8, 2): a("v_pk_add_f32 %s, %s, %s" % (vr(Z + keep*8 + r, 2), vr(Z + keep*8 + r, 2), vr(X + 16 + r, 2)))
        for nt in range(2):
            pack4(a, X + 4*nt, KV + (keep*4 + 0 + nt)*4, KV + (keep*4 + 2 + nt)*4)
            a("buffer_store_dwordx4 %s, v12, %s, s70 offen offset:%d sc1" % (vr(X + 4*nt, 4), S(SA), nt * 1024))
        a("s_mov_b32 exec_lo, 0x00010001")
        a("s_mov_b32 exec_hi, 0x00010001")
        for b in range(2):
            a("buffer_store_dwordx4 %s, v15, %s, s72 offen offset:%d sc1" % (vr(Z + keep*8 + 4*b, 4), S(SB), b * 16))
        a("s_mov_b64 exec, -1")
        if keep == 1: a("s_branch p1e_done")
    a.label("p1e_done")
    stamp(a, 45)
    PHQ = 220
    feature_map2(a, WP, [QF, QF + 4], [(PHQ, PHQ + 4), (PHQ + 8, PHQ + 12)])
    a("s_waitcnt vmcnt(0)")
    stamp(a, 46)
    publish_flag(a, 0, off_nm, FL_A)
    stamp(a, 3)
    R.bar()
    stamp(a, 4)
    kv_gather(a, False)
    R.bar()
    o_part(a, PHQ, 0, 6, 7, R)
    stamp(a, 5)
    if G.stop_after > 1: R.bar()
    a("s_waitcnt vmcnt(0)")
    publish_flag(a, 1, lambda a: a("s_mov_b32 s71, s88"), FL_B, n=8)

def aux_q_part1(a, R):
    a("s_sub_u32 s77, s3, 4")
    a("s_and_b32 s93, s77, 1")
    a("s_lshr_b32 s92, s77, 1")
    WP = 112; KF = 160; QR = 80; LS = 96; CS = 104
    a("v_lshlrev_b32 v5, 4, v1")
    a("s_lshl_b32 s70, s77, 13")
    a("s_add_u32 s70, s70, %d" % L1_QL)
    a("v_add_u32 v5, s70, v5")
    for t in range(2): a("ds_read_b128 %s, v5 offset:%d" % (vr(KF + 4*t, 4), t * 1024))
    wphi_frags(a, WP, 93)
    a("s_mov_b32 s%d, 0x%x" % (S_L2P, LOG2E))
    a("s_mov_b32 s%d, 0x%x" % (S_L2P + 1, LOG2E))
    a("v_and_b32 v10, 15, v1")
    WA = 8
    pht_write_addr(a, 77, WA)
    a("s_waitcnt lgkmcnt(0)")
    PHK = 144
    feature_map2(a, WP, [KF, KF + 4], [(PHK, PHK + 4), (PHK + 8, PHK + 12)])
    for t in range(2):
        for sg in range(2):
            for b in range(2):
                a("ds_write_b64 v%d, %s offset:%d" % (WA + b, vr(PHK + 8*t + 4*sg + 2*b, 2), sg * 4096 + (2 + t) * 1024))
    for k in range(4): a("ds_read_b128 %s, v5 offset:%d" % (vr(QR + 4*k, 4), 2048 + k * 1024))
    a("s_lshl_b32 s70, s92, 9")
    a("s_add_u32 s70, s70, %d" % L1_ST)
    a("v_lshlrev_b32 v14, 3, v10")
    a("v_add_u32 v14, s70, v14")
    for t in range(2): a("ds_read_b64 %s, v14 offset:%d" % (vr(LS + 2*t, 2), (2 + t) * 128))
    a("s_lshl_b32 s71, s93, 7")
    a("s_add_u32 s71, s71, %d" % L1_CS)
    a("v_lshlrev_b32 v14, 4, v11")
    a("v_add_u32 v14, s71, v14")
    for b in range(2): a("ds_read_b128 %s, v14 offset:%d" % (vr(CS + 4*b, 4), b * 64))
    a("v_mov_b32 v14, %d" % L_NONCE)
    a("ds_read_b64 v[6:7], v14")
    a("s_waitcnt lgkmcnt(0)")
    R.bar()
    R.bar()
    a("v_readfirstlane_b32 s%d, v6" % S_NONCE)
    a("v_readfirstlane_b32 s%d, v7" % (S_NONCE + 1))
    QF = 160
    for t in range(2):
        for l in ln_T_list(QR + 8*t, CS, LS + 2*t, 100) + ln_T_list(QR + 8*t + 4, CS + 4, LS + 2*t, 100): a(l)
        pack4(a, QF + 4*t, QR + 8*t, QR + 8*t + 4)
    feature_map2(a, WP, [QF, QF + 4], [(128, 132), (136, 140)])

def aux_q_part2(a):
    o_part(a, 128, 2, 92, 93, None)

def p3_epilogue(a, c):
    srd(a, SA, P_WS, WS_H, SZ_ACT)
    srd(a, SB, P_WS, WS_HSTP, 32*2048*8)
    a("v_and_b32 v10, 15, v1")
    a("v_lshrrev_b32 v11, 4, v1")
    a("v_bfe_u32 v12, v10, 1, 3")
    a("v_lshrrev_b32 v13, 1, v11")
    a("s_lshl_b32 s70, s7, 2")
    a("v_add_u32 v13, s70, v13")
    a("v_xor_b32 v12, v12, v13")
    a("s_lshl_b32 s70, s6, 13")
    a("s_add_u32 s70, s70, %d" % L3_XT)
    a("v_lshlrev_b32 v13, 7, v10")
    a("v_and_b32 v14, 1, v11")
    a("v_lshl_add_u32 v13, v14, 3, v13")
    a("v_add_u32 v13, s70, v13")
    a("v_lshl_add_u32 v96, v12, 4, v13")
    a("v_xor_b32 v12, 2, v12")
    a("v_lshl_add_u32 v97, v12, 4, v13")
    XR = 100
    for t in range(4):
        for b in range(2):
            a("ds_read_b64 %s, v%d offset:%d" % (vr(XR + (t*2 + b)*2, 2), 96 + b, t * 2048))
    a("v_lshlrev_b32 v15, 4, v1")
    a("s_lshl_b32 s70, s4, 2")
    a("s_lshl_b32 s71, s6, 1")
    a("s_add_u32 s70, s70, s71")
    a("s_mov_b32 s72, s70")
    a("s_lshl_b32 s70, s70, 7")
    a("s_lshl_b32 s71, s5, 3")
    a("s_add_u32 s70, s70, s71")
    a("s_lshl_b32 s71, s7, 2")
    a("s_add_u32 s70, s70, s71")
    a("s_lshl_b32 s70, s70, 9")
    a("s_lshl_b32 s71, s5, 1")
    a("s_add_u32 s71, s71, s7")
    a("s_lshl_b32 s71, s71, 11")
    a("s_lshl_b32 s73, s72, 5")
    a("s_add_u32 s71, s71, s73")
    a("s_lshl_b32 s71, s71, 3")
    a("v_lshlrev_b32 v9, 3, v10")
    a("v_and_b32 v14, 1, v11")
    a("v_lshl_add_u32 v9, v14, 2, v9")
    a("v_lshrrev_b32 v14, 1, v11")
    a("v_lshl_add_u32 v9, v14, 7, v9")
    a("v_and_b32 v14, 1, v11")
    a("v_cmp_eq_u32 s[74:75], 0, v14")
    a("v_cmp_gt_u32 s[76:77], 2, v11")
    a("s_waitcnt lgkmcnt(0)")
    St = 120; P = 128
    for u in range(2):
        for tt in range(2):
            t = 2*u + tt
            for b in range(2):
                acc = c.ACC[t][b]
                for d in range(2):
                    x = XR + (t*2 + b)*2 + d
                    tp = 136 + 2 * (b * 2 + d)
                    a("v_lshlrev_b32 v%d, 16, v%d" % (tp, x))
                    a("v_and_b32 v%d, 0xffff0000, v%d" % (tp + 1, x))
                    a("v_pk_add_f32 %s, %s, %s" % (vr(acc + 2*d, 2), vr(acc + 2*d, 2), vr(tp, 2)))
            s1 = St + 2*tt; s2 = s1 + 1
            A0 = c.ACC[t][0]
            a("v_pk_add_f32 v[144:145], %s, %s" % (vr(A0, 2), vr(A0 + 2, 2)))
            a("v_pk_mul_f32 v[146:147], %s, %s" % (vr(A0, 2), vr(A0, 2)))
            a("v_pk_fma_f32 v[146:147], %s, %s, v[146:147]" % (vr(A0 + 2, 2), vr(A0 + 2, 2)))
            for r in (4, 6):
                a("v_pk_add_f32 v[144:145], v[144:145], %s" % vr(A0 + r, 2))
                a("v_pk_fma_f32 v[146:147], %s, %s, v[146:147]" % (vr(A0 + r, 2), vr(A0 + r, 2)))
            a("v_add_f32 v%d, v144, v145" % s1)
            a("v_add_f32 v%d, v146, v147" % s2)
            xq(a, "v_add_f32", s1, 124)
            xq(a, "v_add_f32", s2, 125)
        a("v_cndmask_b32 v124, v%d, v%d, s[74:75]" % (St + 1, St))
        a("v_cndmask_b32 v125, v%d, v%d, s[74:75]" % (St + 3, St + 2))
        a("v_cndmask_b32 v124, v125, v124, s[76:77]")
        a("buffer_store_dword v124, v9, %s, s71 offen sc1" % S(SB))
        for b in range(2):
            pack_pair(a, c.ACC[2*u][b], c.ACC[2*u + 1][b], P + 4*b)
            a("buffer_store_dwordx4 %s, v15, %s, s70 offen offset:%d sc1" % (vr(P + 4*b, 4), S(SA), b * 1024))
        if u == 0:
            a("s_add_u32 s70, s70, %d" % (128 * 512))
            a("s_add_u32 s71, s71, %d" % (32 * 8))

def p4_epilogue(a, c):
    srd(a, SA, P_WS, WS_F, SZ_F)
    a("v_and_b32 v10, 15, v1")
    a("v_lshrrev_b32 v11, 4, v1")
    a("s_mul_i32 s70, s7, 448")
    a("s_add_u32 s70, s70, %d" % L4_TAB)
    a("v_lshlrev_b32 v12, 4, v11")
    a("v_add_u32 v12, s70, v12")
    a("s_lshl_b32 s70, s6, 9")
    a("s_add_u32 s70, s70, %d" % (L4_TAB + 2048))
    a("v_lshlrev_b32 v13, 3, v10")
    a("v_add_u32 v13, s70, v13")
    ST = 128
    for t in range(4):
        a("ds_read_b64 %s, v13 offset:%d" % (vr(ST + 2*t, 2), t * 128))
    a("v_lshlrev_b32 v15, 4, v1")
    a("s_lshl_b32 s70, s4, 2")
    a("s_lshl_b32 s71, s6, 1")
    a("s_add_u32 s70, s70, s71")
    a("s_mul_i32 s70, s70, 448")
    a("s_mul_i32 s71, s5, 28")
    a("s_add_u32 s70, s70, s71")
    a("s_mul_i32 s71, s7, 14")
    a("s_add_u32 s70, s70, s71")
    a("s_lshl_b32 s70, s70, 9")
    a("s_add_u32 s71, s70, %d" % (448 * 512))
    TB = 136
    for b in range(7):
        a("ds_read_b128 %s, v12 offset:%d" % (vr(TB + 8*b, 4), 64 * b))
        a("ds_read_b128 %s, v12 offset:%d" % (vr(TB + 8*b + 4, 4), 1024 + 64 * b))
    a("v_add_u32 v14, 4096, v15")
    a("s_waitcnt lgkmcnt(0)")
    T = 192; P = 208
    for b in range(7):
        cs = TB + 8*b; b1 = cs + 4
        for t in range(4):
            tmp = T + 4*t
            for r in (0, 2):
                a("v_pk_fma_f32 %s, %s, %s, %s op_sel:[0,1,0] op_sel_hi:[1,1,1]" % (vr(tmp + r, 2), vr(cs + r, 2), vr(ST + 2*t, 2), vr(b1 + r, 2)))
        for t in range(4):
            acc = c.ACC[t][b]; tmp = T + 4*t
            for r in (0, 2):
                a("v_pk_fma_f32 %s, %s, %s, %s op_sel:[0,0,0] op_sel_hi:[1,0,1]" % (vr(acc + r, 2), vr(acc + r, 2), vr(ST + 2*t, 2), vr(tmp + r, 2)))
        for t in range(4):
            acc = c.ACC[t][b]
            for r in range(4): a("v_max_f32 v%d, 0, v%d" % (acc + r, acc + r))
        for t in range(4):
            acc = c.ACC[t][b]
            for r in (0, 2): a("v_pk_mul_f32 %s, %s, %s" % (vr(acc + r, 2), vr(acc + r, 2), vr(acc + r, 2)))
        for u in range(2):
            pk = P + 4*u + 8*(b & 1)
            pack_pair(a, c.ACC[2*u][b], c.ACC[2*u + 1][b], pk)
            off = b * 1024
            so = "s70" if u == 0 else "s71"
            if off < 4096:
                a("buffer_store_dwordx4 %s, v15, %s, %s offen offset:%d sc1" % (vr(pk, 4), S(SA), so, off))
            else:
                a("buffer_store_dwordx4 %s, v14, %s, %s offen offset:%d sc1" % (vr(pk, 4), S(SA), so, off - 4096))

HR5 = 144; BR5 = 176
def p5_pre(a, c):
    srd(a, SA, P_WS, WS_H, SZ_ACT)
    srd(a, SB, P_B2, 0, 2048)
    a("v_and_b32 v10, 15, v1")
    a("v_lshrrev_b32 v11, 4, v1")
    a("v_lshlrev_b32 v12, 4, v10")
    a("v_lshrrev_b32 v13, 1, v11")
    a("v_lshl_add_u32 v12, v13, 9, v12")
    a("v_and_b32 v13, 1, v11")
    a("v_lshl_add_u32 v12, v13, 3, v12")
    a("s_lshl_b32 s70, s4, 2")
    a("s_lshl_b32 s71, s6, 1")
    a("s_add_u32 s70, s70, s71")
    a("s_lshl_b32 s70, s70, 7")
    a("s_lshl_b32 s71, s5, 4")
    a("s_add_u32 s70, s70, s71")
    a("s_lshl_b32 s71, s7, 3")
    a("s_add_u32 s70, s70, s71")
    a("s_lshl_b32 s70, s70, 9")
    a("s_cmp_eq_u32 s6, s82")
    a("s_cbranch_scc0 p5pre_skip")
    for t in range(4):
        for b in range(4):
            a("buffer_load_dwordx2 %s, v12, %s, s70 offen offset:%d sc1" % (vr(HR5 + (t*4 + b)*2, 2), S(SA), b * 1024 + (t & 1) * 256))
        if t == 1: a("s_add_u32 s70, s70, %d" % (128 * 512))
    a("v_lshlrev_b32 v13, 3, v11")
    a("s_lshl_b32 s70, s5, 8")
    a("s_lshl_b32 s71, s7, 7")
    a("s_add_u32 s70, s70, s71")
    for b in range(4):
        a("buffer_load_dwordx2 %s, v13, %s, s70 offen offset:%d" % (vr(BR5 + 2*b, 2), S(SB), b * 32))
    a.label("p5pre_skip")

def p5_fetch_partial(a, c):
    srd(a, SC, P_WS, WS_PX, 128*2*2*16384)
    srd(a, SF, P_WS, WS_FLAG, FLAG_SZ)
    a("s_lshl_b32 s72, s4, 3")
    a("s_add_u32 s72, s72, s5")
    a("s_lshl_b32 s73, s72, 2")
    a("s_xor_b32 s74, s82, 1")
    a("s_lshl_b32 s74, s74, 1")
    a("s_add_u32 s73, s73, s74")
    a("s_add_u32 s73, s73, s7")
    a("s_lshl_b32 s74, s73, 3")
    flag_poll(a, 74, FL_X, 1, vtmp=8)
    a("v_lshlrev_b32 v15, 4, v1")
    a("s_lshl_b32 s74, s73, 14")
    for q in range(16):
        if q and q % 4 == 0: a("s_add_u32 s74, s74, 4096")
        a("buffer_load_dwordx4 %s, v15, %s, s74 offen offset:%d sc1" % (vr(184 + 4*q, 4), S(SC), (q % 4) * 1024))

def p5_epilogue(a, c):
    srd(a, SC, P_WS, WS_PX, 128*2*2*16384)
    srd(a, SD, P_OUT, 0, SZ_ACT)
    srd(a, SF, P_WS, WS_FLAG, FLAG_SZ)
    a("s_lshl_b32 s72, s4, 3")
    a("s_add_u32 s72, s72, s5")
    a("v_lshlrev_b32 v15, 4, v1")
    a("s_cmp_eq_u32 s6, s82")
    a("s_cbranch_scc1 p5_keep")
    a("s_lshl_b32 s73, s72, 2")
    a("s_lshl_b32 s74, s82, 1")
    a("s_add_u32 s73, s73, s74")
    a("s_add_u32 s73, s73, s7")
    a("s_lshl_b32 s74, s73, 14")
    for q in range(16):
        if q and q % 4 == 0: a("s_add_u32 s74, s74, 4096")
        a("buffer_store_dwordx4 %s, v15, %s, s74 offen offset:%d sc1" % (vr(16 + 4*q, 4), S(SC), (q % 4) * 1024))
    for k in range(KSEND, KKEEP):
        a("s_barrier")
        if k == KSEND + 3:
            a("s_waitcnt vmcnt(0)")
            a("s_lshl_b32 s74, s73, 3")
            flag_write(a, 74, FL_X)
    a("s_endpgm")
    a.label("p5_keep")
    PR = 184
    if not G.p5pre: p5_fetch_partial(a, c)
    a("v_and_b32 v10, 15, v1")
    a("v_lshrrev_b32 v11, 4, v1")
    a("v_and_b32 v13, 1, v11")
    a("v_lshl_add_u32 v12, v13, 4, v10")
    a("v_lshlrev_b32 v12, 11, v12")
    a("v_lshrrev_b32 v13, 1, v11")
    a("v_lshl_add_u32 v12, v13, 4, v12")
    a("s_lshl_b32 s70, s4, 7")
    a("s_lshl_b32 s71, s6, 6")
    a("s_add_u32 s70, s70, s71")
    a("s_lshl_b32 s70, s70, 11")
    a("s_lshl_b32 s71, s5, 8")
    a("s_add_u32 s70, s70, s71")
    a("s_lshl_b32 s71, s7, 7")
    a("s_add_u32 s70, s70, s71")
    BF = 80
    a("s_waitcnt vmcnt(16)")
    for b in range(4):
        for d in range(2):
            a("v_lshlrev_b32 v%d, 16, v%d" % (BF + 4*b + 2*d, BR5 + 2*b + d))
            a("v_and_b32 v%d, 0xffff0000, v%d" % (BF + 4*b + 2*d + 1, BR5 + 2*b + d))
    for t in range(4):
        for b in range(4):
            acc = c.ACC[t][b]
            for d in range(2):
                x = HR5 + (t*4 + b)*2 + d
                tp = 112 + 2 * ((b * 2 + d) & 7)
                a("v_lshlrev_b32 v%d, 16, v%d" % (tp, x))
                a("v_and_b32 v%d, 0xffff0000, v%d" % (tp + 1, x))
                a("v_pk_add_f32 %s, %s, %s" % (vr(acc + 2*d, 2), vr(acc + 2*d, 2), vr(BF + 4*b + 2*d, 2)))
                a("v_pk_add_f32 %s, %s, %s" % (vr(acc + 2*d, 2), vr(acc + 2*d, 2), vr(tp, 2)))
    a("s_waitcnt vmcnt(0)")
    for r in range(0, 64, 2): a("v_pk_add_f32 %s, %s, %s" % (vr(16 + r, 2), vr(16 + r, 2), vr(PR + r, 2)))
    P = 96
    for u in range(2):
        for b in range(4):
            pk = P + 4 * (b & 1) + 8 * u
            pack_pair(a, c.ACC[2*u][b], c.ACC[2*u + 1][b], pk)
            a("buffer_store_dwordx4 %s, v12, %s, s70 offen offset:%d" % (vr(pk, 4), S(SD), b * 32))
        if u == 0: a("s_add_u32 s70, s70, %d" % (32 * 2048))
    stamp(a, 14)

def loader_role(a):
    R = Role(a)
    a("s_sub_u32 s7, s3, 4")
    c = p1_cfg()
    loader_phase(R, c)
    R.bar()
    aux_q_part1(a, R)
    R.bar()
    kv_gather(a, False)
    R.bar()
    aux_q_part2(a)
    def pubB(a, nyounger):
        a("s_waitcnt vmcnt(%d)" % nyounger)
        publish_flag(a, 1, lambda a: a("s_mov_b32 s71, s88"), FL_B, n=8)
    if G.stop_after <= 1:
        pubB(a, 0); return R
    a("s_sub_u32 s7, s3, 4")
    c3 = p3_cfg(); c3.pre_t_hook = pubB
    loader_phase(R, c3)
    if G.stop_after <= 3: return R
    loader_phase(R, p4_cfg())
    if G.stop_after <= 4: return R
    loader_phase(R, p5_cfg())
    return R

def bar_loop(R, n, name):
    a = R.a
    a("s_mov_b32 s%d, 0" % S_CNT)
    a.label(name)
    R.bar(n)
    a("s_add_u32 s%d, s%d, 1" % (S_CNT, S_CNT))
    a("s_cmp_lt_u32 s%d, %d" % (S_CNT, n))
    a("s_cbranch_scc1 %s" % name)


def touches(a, items, vbase, SR=SX):
    a("s_lshl_b32 s70, s2, 1")
    a("s_add_u32 s70, s70, s7")
    a("s_lshl_b32 s70, s70, 13")
    a("v_lshlrev_b32 v16, 7, v1")
    k = 0
    for (p, nbytes) in items:
        srd(a, SR, p, 0, nbytes)
        n = (nbytes // 8192 + 511) // 512
        a("s_mov_b32 s71, s70")
        for i in range(n):
            a("buffer_load_dword v%d, v16, %s, s71 offen" % (vbase + k, S(SR))); k += 1
            if i < n - 1: a("s_add_u32 s71, s71, %d" % (512 * 8192))
    return k

_cpf = [0]
def code_prefetch(a, vtmp):
    _cpf[0] += 1; k = _cpf[0]
    a("s_getpc_b64 s[72:73]")
    a.label("kp_pc%d" % k)
    a("s_sub_u32 s72, s72, kp_pc%d-kp_kernel" % k)
    a("s_subb_u32 s73, s73, 0")
    a("v_lshlrev_b32 v%d, 7, v1" % vtmp)
    a("s_mov_b32 s75, kp_codeend-kp_kernel")
    NL = 8
    for i in range(NL):
        a("v_cmp_gt_u32 vcc, s75, v%d" % vtmp)
        a("v_cndmask_b32 v%d, 0, v%d, vcc" % (vtmp + 1, vtmp))
        a("global_load_dword v%d, v%d, s[72:73]" % (vtmp + 2, vtmp + 1))
        if i < NL - 1: a("v_add_u32 v%d, 8192, v%d" % (vtmp, vtmp))
    return NL

def start_touch(a, wid_sgpr, batch):
    a("v_lshlrev_b32 v16, 7, v1")
    if batch == 1:
        a("s_cmp_lt_u32 s%d, 512" % wid_sgpr)
        a("s_cbranch_scc0 st_w_%d" % wid_sgpr)
        srd(a, SX, P_X, 0, SZ_ACT)
        a("s_lshl_b32 s71, s%d, 13" % wid_sgpr)
        a("s_branch st_d_%d" % wid_sgpr)
        a.label("st_w_%d" % wid_sgpr)
        srd(a, SX, P_WQKV, 0, 288 * 8192)
        a("s_sub_u32 s71, s%d, 512" % wid_sgpr)
        a("s_lshl_b32 s71, s71, 13")
        a.label("st_d_%d" % wid_sgpr)
    else:
        srd(a, SX, P_WQKV, 0, 1024*3072*2)
        a("s_add_u32 s71, s%d, 288" % wid_sgpr)
        a("s_lshl_b32 s71, s71, 13")
    a("buffer_load_dword v254, v16, %s, s71 offen" % S(SX))

def helper_p1(R):
    a = R.a
    if G.hstage:
        c = p1_cfg()
        c.srds_loader(a, c)
        loader_setup(a, c)
        rot_begin(a, c)
        IX(a, c, 2 * c.SS, k=2); IW(a, c, 2 * c.SS, k=2)
    if G.st_touch:
        a("s_lshl_b32 s75, s2, 1")
        a("s_add_u32 s75, s75, s7")
        a("s_sleep %d" % G.t2sleep)
        start_touch(a, 75, 2)
    if G.tlb_warm:
        srd(a, SX, P_WS, 0, 0x3000000)
        a("v_lshlrev_b32 v16, 21, v1")
        a("v_add_u32 v16, 0x1fff80, v16")
        a("buffer_load_dword v253, v16, %s, 0 offen" % S(SX))
        srd(a, SX, P_OUT, 0, SZ_ACT)
        a("v_lshlrev_b32 v16, 20, v1")
        a("buffer_load_dword v252, v16, %s, 0 offen" % S(SX))
    if G.code_pf:
        a("s_cmp_lg_u32 s7, 1")
        a("s_cbranch_scc1 h_nocpf")
        code_prefetch(a, 30)
        a.label("h_nocpf")
    srd(a, SX, P_DBG, 0, 256)
    a("s_or_b32 s70, s2, s7")
    a("s_cmp_lg_u32 s70, 0")
    a("s_cbranch_scc1 h_nononce")
    a("s_memrealtime s[70:71]")
    a("s_waitcnt lgkmcnt(0)")
    a("s_or_b32 s70, s70, 1")
    a("s_xor_b32 s71, s71, 0x5bd1e995")
    a("v_mov_b32 v20, s70")
    a("v_mov_b32 v21, s71")
    a("v_mov_b32 v22, 0")
    a("s_mov_b64 exec, 1")
    a("buffer_store_dwordx2 v[20:21], v22, %s, 0 offen sc1" % S(SX))
    a("s_mov_b64 exec, -1")
    a.label("h_nononce")
    a("v_mov_b32 v22, 0")
    R.bar()
    a("buffer_load_dwordx2 v[20:21], v22, %s, 0 offen sc1" % S(SX))
    R.bar(); R.bar()
    a("s_mov_b32 s80, 0")
    a.label("h_npoll")
    a("s_waitcnt vmcnt(0)")
    a("v_readfirstlane_b32 s%d, v20" % S_NONCE)
    a("v_readfirstlane_b32 s%d, v21" % (S_NONCE + 1))
    a("s_cmp_lg_u32 s%d, 0" % S_NONCE)
    a("s_cbranch_scc1 h_nok")
    a("buffer_load_dwordx2 v[20:21], v22, %s, 0 offen sc1" % S(SX))
    a("s_add_u32 s80, s80, 1")
    a("s_cmp_lt_u32 s80, 0x40000")
    a("s_cbranch_scc1 h_npoll")
    a.label("h_nok")
    a("v_mov_b32 v22, %d" % L_NONCE)
    a("ds_write_b64 v22, v[20:21]")
    a("s_waitcnt lgkmcnt(0)")
    P = G.p1peel
    for _ in range(P): R.bar()
    a("s_cmp_lg_u32 s7, 0")
    a("s_cbranch_scc1 h1_path")
    nb0 = R.nb; tk0 = R.tk
    srd(a, SC, P_WS, WS_RSP, 16*2048*16)
    a("v_lshlrev_b32 v18, 4, v1")
    a("v_add_u32 v19, %d, v18" % L1_ST)
    a("ds_read_b128 v[24:27], v19")
    a("v_lshlrev_b32 v17, 5, v1")
    a("s_lshl_b32 s70, s5, 11")
    a("s_lshl_b32 s71, s4, 7")
    a("s_add_u32 s70, s70, s71")
    a("s_lshl_b32 s70, s70, 4")
    a("s_waitcnt lgkmcnt(0)")
    a("v_mov_b32 v28, v24\nv_mov_b32 v29, v25\nv_mov_b32 v30, s%d\nv_mov_b32 v31, s%d" % (S_NONCE, S_NONCE))
    a("v_mov_b32 v24, v26\nv_mov_b32 v25, v27\nv_mov_b32 v26, s%d\nv_mov_b32 v27, s%d" % (S_NONCE, S_NONCE))
    a("buffer_store_dwordx4 v[28:31], v17, %s, s70 offen sc1" % S(SC))
    a("buffer_store_dwordx4 v[24:27], v17, %s, s70 offen offset:16 sc1" % S(SC))
    LD = min(P + 5, 11)
    for _ in range(LD - 1 - (P + 1)): R.bar()
    def rs_loads(first=0, last=16):
        for k in range(first, last):
            a("s_lshl_b32 s70, s4, 11")
            a("s_add_u32 s70, s70, %d" % (k * 2048 * 16))
            a("buffer_load_dwordx4 %s, v17, %s, s70 offen sc1" % (vr(32 + 8*k, 4), S(SC)))
            a("buffer_load_dwordx4 %s, v17, %s, s70 offen offset:16 sc1" % (vr(36 + 8*k, 4), S(SC)))
    rs_loads(0, 16)
    for _ in range(13 - (LD - 1)): R.bar()
    tag_check(a, [32 + 4*k + 2 for k in range(32)], 160, "rs", rs_loads)
    for k in range(1, 16):
        a("v_pk_add_f32 v[32:33], v[32:33], %s" % vr(32 + 8*k, 2))
        a("v_pk_add_f32 v[36:37], v[36:37], %s" % vr(36 + 8*k, 2))
    R.bar()
    for e in (32, 36):
        a("v_mul_f32 v%d, 0x3a800000, v%d" % (e, e))
        a("v_mul_f32 v%d, 0x3a800000, v%d" % (e + 1, e + 1))
        a("v_fma_f32 v%d, -v%d, v%d, v%d" % (e + 1, e, e, e + 1))
        a("v_max_f32 v%d, 0, v%d" % (e + 1, e + 1))
        a("v_add_f32 v%d, 0x3727c5ac, v%d" % (e + 1, e + 1))
    a("v_rsq_f32 v40, v33")
    a("v_rsq_f32 v42, v37")
    a("v_mul_f32 v41, v32, v40")
    a("v_mul_f32 v43, v36, v42")
    a("v_sub_f32 v41, 0, v41")
    a("v_sub_f32 v43, 0, v43")
    a("ds_write_b128 v19, v[40:43]")
    a("s_waitcnt lgkmcnt(0)")
    R.bar()
    a("s_branch h_p1done")
    a.label("h1_path")
    R.nb = nb0; R.tk = tk0
    srd(a, SD, P_WS, WS_CSQ, 16*16*1024)
    a("v_mul_u32_u24 v19, 12, v1")
    a("v_add_u32 v19, %d, v19" % L1_CSA)
    for e in range(3): a("ds_read_b32 v%d, v19 offset:%d" % (24 + e, 4 * e))
    a("v_mov_b32 v27, s%d" % S_NONCE)
    a("v_lshlrev_b32 v18, 4, v1")
    a("s_lshl_b32 s70, s4, 4")
    a("s_add_u32 s70, s70, s5")
    a("s_lshl_b32 s70, s70, 10")
    a("s_waitcnt lgkmcnt(0)")
    a("buffer_store_dwordx4 v[24:27], v18, %s, s70 offen sc1" % S(SD))
    for _ in range(LD - 1 - (P + 1)): R.bar()
    def cs_loads():
        for mm in range(16):
            a("s_lshl_b32 s70, s5, 10")
            a("s_add_u32 s70, s70, %d" % (mm * 16 * 1024))
            a("buffer_load_dwordx4 %s, v18, %s, s70 offen sc1" % (vr(32 + 4*mm, 4), S(SD)))
    cs_loads()
    for _ in range(13 - (LD - 1)): R.bar()
    tag_check(a, [32 + 4*k + 3 for k in range(16)], 160, "cs", cs_loads)
    for k in range(1, 16):
        a("v_pk_add_f32 v[32:33], v[32:33], %s" % vr(32 + 4*k, 2))
        a("v_add_f32 v34, v34, v%d" % (32 + 4*k + 2))
    a("v_mul_u32_u24 v19, 12, v1")
    a("v_add_u32 v19, %d, v19" % L1_CS)
    for e in range(3): a("ds_write_b32 v19, v%d offset:%d" % (32 + e, 4 * e))
    a("s_waitcnt lgkmcnt(0)")
    R.bar(); R.bar()
    a.label("h_p1done")
    if G.touch_mode == 0:
        touches(a, [(P_WO, 1024*1024*2), (P_W1, 1024*3584*2), (P_W2, 3584*1024*2)], 200)

def helper_role(a):
    R = Role(a)
    a("s_sub_u32 s7, s3, 6")
    if G.hprio: a("s_setprio 3")
    srd(a, SF, P_WS, WS_FLAG, FLAG_SZ)
    a("v_mov_b32 v20, 0")
    a("v_lshlrev_b32 v21, 2, v1")
    a("v_add_u32 v21, %d, v21" % (L_TOP + 16))
    a("s_mov_b64 exec, 0xff")
    a("ds_write_b32 v21, v20")
    a("s_mov_b64 exec, -1")
    a("s_waitcnt lgkmcnt(0)")
    c = p1_cfg(); c.tmap(a, c)
    R.trace = True
    helper_p1(R)
    R.trace = False
    if G.prof:
        srd(a, SX, P_WS, WS_PROF + 0x10000, 0x40000)
        a("s_lshl_b32 s70, s2, 1")
        a("s_add_u32 s70, s70, s7")
        a("s_lshl_b32 s70, s70, 8")
        a("v_lshlrev_b32 v2, 2, v1")
        a("buffer_store_dword v255, v2, %s, s70 offen" % S(SX))
    R.bar()
    aux_q_part1(a, R)
    def poll_if_h0(name, pre, grp):
        a("s_cmp_lg_u32 s7, 0")
        a("s_cbranch_scc1 %s" % name)
        pre(a)
        flag_poll(a, 70, grp, 16)
        a.label(name)
    poll_if_h0("h_a_skip", lambda a: a("s_lshl_b32 s70, s5, 7"), FL_A)
    R.bar()
    kv_gather(a, True)
    R.bar()
    aux_q_part2(a)
    if G.stop_after <= 1:
        a("s_waitcnt vmcnt(0)")
        publish_flag(a, 1, lambda a: a("s_mov_b32 s71, s88"), FL_B, n=8)
        return R
    R.bar()
    a("s_waitcnt vmcnt(0)")
    publish_flag(a, 1, lambda a: a("s_mov_b32 s71, s88"), FL_B, n=8)
    def staged(name, cfg, grp, masks, nbar_after):
        cfg.tmap(a, cfg)
        if not G.staged:
            poll_if_h0(name, lambda a: a("s_lshl_b32 s70, s4, 7"), grp)
            for _ in masks: R.bar()
            return
        a("s_mov_b32 s%d, 0" % S_RDY)
        for k, mk in enumerate(masks):
            a("s_cmp_lg_u32 s7, 0")
            a("s_cbranch_scc1 %s_%d" % (name, k))
            a("s_lshl_b32 s70, s4, 7")
            poll_mask(a, 70, grp, mk)
            a.label("%s_%d" % (name, k))
            R.bar()
    imm = lambda v: (lambda a: a("s_mov_b32 s76, 0x%x" % v))
    c3 = p3_cfg()
    staged("h_b", c3, FL_B, [imm(0x3), imm(0x1f), imm(0xffff)], 0)
    bar_loop(R, 15, "h3_loop")
    if G.stop_after <= 3: return R
    c4 = p4_cfg()
    R.bar()
    def m4(extra):
        def f(a):
            a("s_lshl_b32 s76, 1, s4")
            a("s_or_b32 s76, s76, 0x%x" % extra)
        return f
    staged("h_c", c4, FL_C, [m4(0x3), m4(0x7), imm(0xffff)], 0)
    p4_tables(R)
    if G.stop_after <= 4: return R
    c5 = p5_cfg()
    R.bar()
    def m5(v0, v1):
        def f(a):
            a("s_cmp_eq_u32 s82, 0")
            a("s_cselect_b32 s76, 0x%x, s77" % v0) if False else None
            a("s_mov_b32 s76, 0x%x" % v0)
            a("s_cmp_eq_u32 s82, 0")
            a("s_cbranch_scc1 m5_%x" % v0)
            a("s_mov_b32 s76, 0x%x" % v1)
            a.label("m5_%x" % v0)
        return f
    staged("h_d", c5, FL_D, [m5(0x1, 0x200), m5(0x3, 0x600), imm(0xffff)], 0)
    R.nb += KKEEP - 1
    return R

def p4_tables(R):
    a = R.a
    srd(a, SA, P_WS, WS_HSTP, 32*2048*8)
    srd(a, SB, P_WS, WS_CS2, 16*16*2*1024)
    srd(a, SC, P_B1, 0, 3584*2)
    a("v_lshlrev_b32 v16, 3, v1")
    a("s_lshl_b32 s70, s4, 7")
    a("s_lshl_b32 s71, s7, 6")
    a("s_add_u32 s70, s70, s71")
    a("s_lshl_b32 s70, s70, 3")
    L = 32
    for p in range(32):
        a("buffer_load_dwordx2 %s, v16, %s, s70 offen sc1" % (vr(L + 2*p, 2), S(SA)))
        if p < 31: a("s_add_u32 s70, s70, %d" % (2048 * 8))
    a("v_lshlrev_b32 v17, 2, v1")
    a("s_mul_i32 s72, s5, 448")
    a("s_mul_i32 s73, s7, 224")
    a("s_add_u32 s72, s72, s73")
    a("buffer_load_dword v100, v17, %s, s72 offen" % S(SC))
    R.bar()
    a("v_mul_u32_u24 v19, 12, v1")
    a("s_mul_i32 s70, s7, 448")
    a("s_add_u32 s70, s70, %d" % (L4_TAB + 3072))
    a("v_add_u32 v19, s70, v19")
    for e in range(3): a("ds_read_b32 v%d, v19 offset:%d" % (24 + e, 4 * e))
    a("v_mov_b32 v27, s%d" % S_NONCE)
    a("v_lshlrev_b32 v18, 4, v1")
    a("s_lshl_b32 s70, s4, 4")
    a("s_add_u32 s70, s70, s5")
    a("s_lshl_b32 s70, s70, 1")
    a("s_add_u32 s70, s70, s7")
    a("s_lshl_b32 s70, s70, 10")
    a("s_waitcnt lgkmcnt(0)")
    a("buffer_store_dwordx4 v[24:27], v18, %s, s70 offen sc1" % S(SB))
    R.bar(); R.bar(); R.bar(); R.bar()
    a("s_waitcnt vmcnt(1)")
    for p in range(1, 32): a("v_pk_add_f32 v[32:33], v[32:33], %s" % vr(L + 2*p, 2))
    R.bar()
    a("v_mul_f32 v%d, 0x3a800000, v%d" % (L, L))
    a("v_mul_f32 v%d, 0x3a800000, v%d" % (L + 1, L + 1))
    a("v_fma_f32 v%d, -v%d, v%d, v%d" % (L + 1, L, L, L + 1))
    a("v_max_f32 v%d, 0, v%d" % (L + 1, L + 1))
    a("v_add_f32 v%d, 0x3727c5ac, v%d" % (L + 1, L + 1))
    a("v_rsq_f32 v%d, v%d" % (L + 2, L + 1))
    a("v_mul_f32 v%d, v%d, v%d" % (L + 3, L, L + 2))
    a("v_sub_f32 v%d, 0, v%d" % (L + 3, L + 3))
    a("s_lshl_b32 s70, s7, 9")
    a("s_add_u32 s70, s70, %d" % (L4_TAB + 2048))
    a("v_add_u32 v20, s70, v16")
    a("ds_write_b64 v20, %s" % vr(L + 2, 2))
    a("v_lshlrev_b32 v102, 16, v100")
    a("v_and_b32 v103, 0xffff0000, v100")
    a("s_mul_i32 s70, s7, 448")
    a("s_add_u32 s70, s70, %d" % (L4_TAB + 1024))
    a("v_add_u32 v20, s70, v16")
    a("s_mov_b32 exec_lo, -1")
    a("s_mov_b32 exec_hi, 0x00ffffff")
    a("ds_write_b64 v20, v[102:103]")
    a("s_mov_b64 exec, -1")
    R.bar()
    def cs_loads():
        for mm in range(16):
            a("s_lshl_b32 s70, s5, 1")
            a("s_add_u32 s70, s70, s7")
            a("s_lshl_b32 s70, s70, 10")
            a("s_add_u32 s70, s70, %d" % (mm * 16 * 2 * 1024))
            a("buffer_load_dwordx4 %s, v18, %s, s70 offen sc1" % (vr(32 + 4*mm, 4), S(SB)))
    cs_loads()
    for _ in range(4): R.bar()
    tag_check(a, [32 + 4*k + 3 for k in range(16)], 160, "cs4", cs_loads)
    for k in range(1, 16):
        a("v_pk_add_f32 v[32:33], v[32:33], %s" % vr(32 + 4*k, 2))
        a("v_add_f32 v34, v34, v%d" % (32 + 4*k + 2))
    a("v_mul_u32_u24 v19, 12, v1")
    a("s_mul_i32 s70, s7, 448")
    a("s_add_u32 s70, s70, %d" % L4_TAB)
    a("v_add_u32 v19, s70, v19")
    a("s_mov_b32 exec_lo, -1")
    a("s_mov_b32 exec_hi, 0x1f")
    for e in range(3): a("ds_write_b32 v19, v%d offset:%d" % (32 + e, 4 * e))
    a("s_mov_b32 exec_lo, 0")
    a("s_mov_b32 exec_hi, 0x20")
    a("ds_write_b32 v19, v32")
    a("s_mov_b64 exec, -1")
    a("s_waitcnt lgkmcnt(0)")
    for _ in range(4): R.bar()

def wave_sum(a, v, t):
    for r in (8, 4, 2, 1):
        a("v_add_f32_dpp v%d, v%d, v%d row_ror:%d row_mask:0xf bank_mask:0xf" % (v, v, v, r))
    xq(a, "v_add_f32", v, t)

def k1(a):
    n = "k1_kernel"
    kernel_begin(a, n)
    a("s_cmp_ge_u32 s2, 480")
    a("s_cbranch_scc1 k1_end")
    for sdst, nm in ((32, "x"), (34, "ws"), (36, "w1"), (38, "wqkv")):
        a("s_load_dwordx2 %s, s[0:1], %d" % (sr(sdst, 2), KA[nm]))
    a("v_lshrrev_b32 v2, 6, v0")
    a("v_and_b32 v1, 63, v0")
    a("v_readfirstlane_b32 s3, v2")
    a("s_waitcnt lgkmcnt(0)")
    a("s_cmp_ge_u32 s2, 256")
    a("s_cbranch_scc1 k1_cs")
    srd(a, 8, 32, 0, SZ_ACT)
    srd(a, 12, 34, WS_XN, SZ_ACT)
    a("s_lshl_b32 s4, s2, 3")
    a("s_add_u32 s4, s4, s3")
    a("s_lshl_b32 s20, s4, 13")
    a("s_lshl_b32 s4, s4, 11")
    a("v_lshlrev_b32 v2, 4, v1")
    a("buffer_load_dwordx4 v[4:7], v2, s[8:11], s4 offen")
    a("buffer_load_dwordx4 v[8:11], v2, s[8:11], s4 offen offset:1024")
    srd(a, 16, 38, 0, 1024*3072*2)
    a("v_lshlrev_b32 v3, 7, v1")
    a("buffer_load_dword v40, v3, s[16:19], s20 offen")
    a("s_or_b32 s21, s2, s3")
    a("s_cmp_lg_u32 s21, 0")
    a("s_cbranch_scc1 k1_nononce")
    a("s_memrealtime s[22:23]")
    srd(a, 24, 34, WS_NONCE, 64)
    a("s_waitcnt lgkmcnt(0)")
    a("s_or_b32 s22, s22, 1")
    a("s_xor_b32 s23, s23, 0x5bd1e995")
    a("v_mov_b32 v42, s22")
    a("v_mov_b32 v43, s23")
    a("v_mov_b32 v44, 0")
    a("s_mov_b64 exec, 1")
    a("buffer_store_dwordx2 v[42:43], v44, s[24:27], 0 offen")
    a("s_mov_b64 exec, -1")
    a.label("k1_nononce")
    a("s_waitcnt vmcnt(1)")
    X = 16
    for i in range(8):
        a("v_lshlrev_b32 v%d, 16, v%d" % (X + 2*i, 4 + i))
        a("v_and_b32 v%d, 0xffff0000, v%d" % (X + 2*i + 1, 4 + i))
    a("v_add_f32 v12, v%d, v%d" % (X, X+1))
    for i in range(2, 16): a("v_add_f32 v12, v12, v%d" % (X + i))
    wave_sum(a, 12, 13)
    a("v_mul_f32 v12, 0x3a800000, v12")
    for i in range(16): a("v_sub_f32 v%d, v%d, v12" % (X + i, X + i))
    a("v_mul_f32 v14, v%d, v%d" % (X, X))
    for i in range(1, 16): a("v_fmac_f32 v14, v%d, v%d" % (X + i, X + i))
    wave_sum(a, 14, 13)
    a("v_mov_b32 v15, 0x3727c5ac")
    a("v_fmac_f32 v15, 0x3a800000, v14")
    a("v_rsq_f32 v15, v15")
    for i in range(16): a("v_mul_f32 v%d, v%d, v15" % (X + i, X + i))
    for i in range(8): a("v_cvt_pk_bf16_f32 v%d, v%d, v%d" % (4 + i, X + 2*i, X + 2*i + 1))
    a("buffer_store_dwordx4 v[4:7], v2, s[12:15], s4 offen sc1")
    a("buffer_store_dwordx4 v[8:11], v2, s[12:15], s4 offen offset:1024 sc1")
    a("s_endpgm")
    a.label("k1_cs")
    srd(a, 8, 36, 0, 1024*3584*2)
    srd(a, 12, 34, WS_CS1P, 8*3584*4)
    a("s_sub_u32 s4, s2, 256")
    a("s_mul_hi_u32 s5, s4, 0x%x" % ((2**32 + 27)//28))
    a("s_mul_i32 s6, s5, 28")
    a("s_sub_u32 s6, s4, s6")
    a("v_lshrrev_b32 v2, 4, v0")
    a("v_mul_u32_u24 v2, 7168, v2")
    a("v_and_b32 v3, 15, v0")
    a("v_lshl_add_u32 v2, v3, 4, v2")
    a("s_mul_i32 s7, s5, %d" % (128*7168))
    a("s_lshl_b32 s16, s6, 8")
    a("s_add_u32 s7, s7, s16")
    for i in range(4):
        a("buffer_load_dwordx4 %s, v2, s[8:11], s7 offen" % vr(4 + 4*i, 4))
        if i < 3: a("s_add_u32 s7, s7, %d" % (32*7168))
    A = 24
    a("s_waitcnt vmcnt(0)")
    for d in range(4):
        a("v_lshlrev_b32 v%d, 16, v%d" % (A + 2*d, 4 + d))
        a("v_and_b32 v%d, 0xffff0000, v%d" % (A + 2*d + 1, 4 + d))
    for i in range(1, 4):
        for d in range(4):
            a("v_lshlrev_b32 v20, 16, v%d" % (4 + 4*i + d))
            a("v_and_b32 v21, 0xffff0000, v%d" % (4 + 4*i + d))
            a("v_add_f32 v%d, v%d, v20" % (A + 2*d, A + 2*d))
            a("v_add_f32 v%d, v%d, v21" % (A + 2*d + 1, A + 2*d + 1))
    for e in range(8): xq(a, "v_add_f32", A + e, 20)
    a("v_and_b32 v3, 15, v1")
    a("v_lshlrev_b32 v3, 5, v3")
    a("s_lshl_b32 s16, s3, 9")
    a("v_add_u32 v3, s16, v3")
    a("ds_write_b128 v3, %s" % vr(A, 4))
    a("ds_write_b128 v3, %s offset:16" % vr(A + 4, 4))
    a("s_waitcnt lgkmcnt(0)")
    a("s_barrier")
    a("s_cmp_ge_u32 s3, 2")
    a("s_cbranch_scc1 k1_end")
    a("v_lshlrev_b32 v3, 2, v0")
    for w in range(8): a("ds_read_b32 v%d, v3 offset:%d" % (4 + w, w * 512))
    a("s_waitcnt lgkmcnt(0)")
    for w in range(1, 8): a("v_add_f32 v4, v4, v%d" % (4 + w))
    a("s_mul_i32 s7, s5, %d" % (3584*4))
    a("s_lshl_b32 s16, s6, 9")
    a("s_add_u32 s7, s7, s16")
    a("buffer_store_dword v4, v3, s[12:15], s7 offen sc1")
    a.label("k1_end")
    a("s_endpgm")
    return dict(name=n, grid=480, block=512, lds=4096, vgpr=48)

def kp(a):
    n = "kp_kernel"
    kernel_begin(a, n)
    a("s_cmp_ge_u32 s2, 256")
    a("s_cbranch_scc1 kp_end")
    if G.prof:
        a("s_memrealtime s[96:97]")
    for sdst, nm in ((P_WS, "ws"), (P_X, "x"), (P_WQKV, "wqkv"), (P_WPHI, "wphi"), (P_WO, "wo"), (P_W1, "w1"),
                     (P_B1, "b1"), (P_W2, "w2"), (P_B2, "b2"), (P_OUT, "out"), (P_DBG, "dbg")):
        a("s_load_dwordx2 %s, s[0:1], %d" % (sr(sdst, 2), KA[nm]))
    a("s_and_b32 s30, s2, 7")
    a("s_lshr_b32 s31, s2, 3")
    a("v_lshrrev_b32 v2, 6, v0")
    a("v_and_b32 v1, 63, v0")
    a("v_readfirstlane_b32 s3, v2")
    a("s_waitcnt lgkmcnt(0)")
    if G.loader_first:
        a("s_cmp_lt_u32 s3, 4")
        a("s_cbranch_scc1 kp_compute")
        a("s_cmp_ge_u32 s3, 6")
        a("s_cbranch_scc1 kp_helper")
        Rl = loader_role(a)
        a("s_endpgm")
        a.label("kp_compute")
    else:
        a("s_cmp_ge_u32 s3, 6")
        a("s_cbranch_scc1 kp_helper")
        a("s_cmp_ge_u32 s3, 4")
        a("s_cbranch_scc1 kp_loader")
    if G.prof: a("v_writelane_b32 v255, s96, 0")
    Rc = compute_role(a)
    if G.prof:
        a("s_waitcnt vmcnt(0)")
        stamp(a, 15)
        a("s_cmp_lg_u32 s7, 0")
        a("s_cbranch_scc1 kp_end")
        srd(a, SA, P_WS, WS_PROF, 256*256)
        a("s_lshl_b32 s70, s2, 8")
        a("v_lshlrev_b32 v2, 2, v1")
        a("buffer_store_dword v255, v2, %s, s70 offen" % S(SA))
    a("s_endpgm")
    if not G.loader_first:
        a.label("kp_loader")
        Rl = loader_role(a)
        a("s_endpgm")
    a.label("kp_helper")
    Rh = helper_role(a)
    a("s_endpgm")
    a.label("kp_end")
    a("s_endpgm")
    a.label("kp_codeend")
    print("barriers: compute %d loader %d helper %d" % (Rc.nb, Rl.nb, Rh.nb))
    assert Rc.nb == Rl.nb == Rh.nb
    return dict(name=n, grid=256, block=512, lds=163840, vgpr=256)

def build(prof=False, stop_after=5):
    G.prof = prof; G.stop_after = stop_after
    body = Asm()
    descs = [kp(body)]
    head = HEADER
    for d in descs:
        head += "; @launch kernel=%s grid=(%d,1,1) block=(%d,1,1) lds=%d\n" % (d["name"], d["grid"], d["block"], d["lds"])
    btxt = body.text()
    if G.xsc1:
        btxt = "\n".join((l.rstrip()[:-4] + " sc1 lds") if (l.startswith("buffer_load_dwordx4") and l.rstrip().endswith(" lds") and S(SX) in l) else l for l in btxt.split("\n"))
    txt = head + '.amdgcn_target "amdgcn-amd-amdhsa--gfx950"\n' + btxt
    txt += '.section .rodata,"a"\n'
    for d in descs:
        txt += ".p2align 6\n" + kernel_desc(d["name"], d["vgpr"], 102)
    return txt

if __name__ == "__main__":
    import sys
    stop = 5
    G.st_touch = "nost" not in sys.argv
    G.code_pf = "nocpf" not in sys.argv
    G.tlb_warm = "tlb" in sys.argv
    G.hprio = "nohprio" not in sys.argv
    G.hstage = False
    G.t2sleep = 16
    G.loader_first = "nolf" not in sys.argv
    G.t1sleep = 0
    G.xsc1 = "noxsc1" not in sys.argv
    for x in sys.argv:
        if x.startswith("t1s"): G.t1sleep = int(x[3:])
    G.staged = "nostaged" not in sys.argv
    G.jit_cpf = "nojit" not in sys.argv
    G.p5skip = "nop5skip" not in sys.argv
    G.p5pre = "nop5pre" not in sys.argv
    G.x_noh4 = "noh4" in sys.argv
    G.x_norot4 = "norot4" in sys.argv
    G.touch_mode = 1
    for x in sys.argv:
        if x.startswith("tm"): G.touch_mode = int(x[2:])
    for x in sys.argv:
        if x.startswith("peel"): G.p1peel = int(x[4:])
        if x.startswith("sleep"): G.t2sleep = int(x[5:])
    for x in sys.argv:
        if x.startswith("stop"): stop = int(x[4:])
    open(sys.argv[1], "w").write(build(prof="prof" in sys.argv, stop_after=stop))
```

```python
from asmgen import *

WS_XN   = 0x0000000
WS_ST1  = 0x0000000
WS_CSQ  = 0x0010000
WS_RSP  = 0x0080000
WS_CS2  = 0x0100000
WS_KVP  = 0x0400000
WS_ZP   = 0x0700000
WS_O    = 0x0800000
WS_H    = 0x0C00000
WS_HSTP = 0x1000000
WS_CS1P = 0x1100000
WS_FLAG = 0x1200000
WS_NONCE= 0x1280000
WS_F    = 0x1400000
WS_PX   = 0x2400000
WS_PROF = 0x4000000
SZ_ACT  = 2048*1024*2
SZ_F    = 2048*3584*2
FL_A, FL_B, FL_C, FL_D, FL_X, FL_E, FL_G = 0x0000, 0x1000, 0x2000, 0x3000, 0x4000, 0x6000, 0x7000
FLAG_SZ = 0x8000

KA = dict(x=0, wqkv=8, wphi=16, wo=24, w1=40, b1=48, w2=56, b2=64, out=72, dbg=80, ws=88)
P_WS, P_X, P_WQKV, P_WPHI, P_WO, P_W1, P_B1, P_W2, P_B2, P_OUT = 8, 10, 12, 14, 16, 18, 20, 22, 24, 26
P_DBG = 84
S_NONCE = 28
SX, SW, SA, SB, SC, SD, SF = 32, 36, 40, 44, 48, 52, 56
S_XOFF, S_WOFF, S_LDSX, S_LDSW, S_TMP, S_CNT, S_DELTA, S_BUF, S_SS, S_NEG = 60, 61, 62, 63, 64, 65, 66, 67, 68, 69
S_L2E = 83
LOG2E = 0x3fb8aa3b
MF16 = "v_mfma_f32_16x16x32_bf16"

class G:
    prof = False
    stop_after = 5
    nstamp = 0
    st_touch = True
    code_pf = True
    tlb_warm = False
    hprio = True
    hstage = False
    p1peel = 2
    touch2 = False
    p5v = 1
    p6n1 = 8
    p6n2 = 3
    p5ns = 4
    dry = True
    hper = 8
    early_touch = 0
    loader_first = True
    t1sleep = 0
    xsc1 = True
    staged = True
    jit_cpf = True
    p5skip = True
    p5pre = True
    x_noh4 = False
    x_norot4 = False
    touch_mode = 1

def srd(a, d, p, off, size):
    if off:
        a("s_add_u32 s%d, s%d, 0x%x" % (d, p, off))
        a("s_addc_u32 s%d, s%d, 0" % (d + 1, p + 1))
    else:
        a("s_mov_b32 s%d, s%d" % (d, p))
        a("s_mov_b32 s%d, s%d" % (d + 1, p + 1))
    a("s_mov_b32 s%d, 0x%x" % (d + 2, size))
    a("s_mov_b32 s%d, 0x20000" % (d + 3))

def S(b): return sr(b, 4)

def stamp(a, k):
    if G.prof:
        a("s_memrealtime s[98:99]")
        a("s_waitcnt lgkmcnt(0)")
        a("v_writelane_b32 v255, s98, %d" % k)

def cstamp(a, k):
    if G.prof:
        a("s_memtime s[98:99]")
        a("s_waitcnt lgkmcnt(0)")
        a("v_writelane_b32 v255, s98, %d" % k)

class Role:
    def __init__(self, a): self.a = a; self.nb = 0; self.trace = False; self.tk = 0
    def bar(self, n=1):
        if self.trace and G.prof and n == 1 and self.tk < 62:
            stamp(self.a, self.tk); self.tk += 1
        self.a("s_barrier"); self.nb += n

def tile_map(a, mx, nx):
    import math
    mgroups = 16 // mx
    lm = int(math.log2(mgroups)); lmx = int(math.log2(mx))
    a("s_and_b32 s4, s30, %d" % (mgroups - 1))
    a("s_lshr_b32 s5, s30, %d" % lm)
    a("s_mul_i32 s4, s4, %d" % mx)
    a("s_mul_i32 s5, s5, %d" % nx)
    a("s_and_b32 s%d, s31, %d" % (S_TMP, mx - 1))
    a("s_add_u32 s4, s4, s%d" % S_TMP)
    a("s_lshr_b32 s%d, s31, %d" % (S_TMP, lmx))
    a("s_add_u32 s5, s5, s%d" % S_TMP)

class Cfg: pass

def loader_setup(a, c):
    if c.xmode == "row":
        a("v_lshrrev_b32 v10, 3, v1")
        a("v_mul_u32_u24 v10, %d, v10" % c.ldx)
        a("v_and_b32 v11, 7, v1")
        a("v_lshrrev_b32 v12, 4, v1")
        a("v_xor_b32 v13, v11, v12")
        a("v_lshl_add_u32 v2, v13, 4, v10")
        a("v_xor_b32 v13, 4, v13")
        a("v_lshl_add_u32 v3, v13, 4, v10")
        a("s_lshl_b32 s%d, s4, 7" % S_XOFF)
        a("s_lshl_b32 s%d, s7, 6" % S_TMP)
        a("s_add_u32 s%d, s%d, s%d" % (S_XOFF, S_XOFF, S_TMP))
        a("s_mul_i32 s%d, s%d, %d" % (S_XOFF, S_XOFF, c.ldx))
    else:
        a("v_lshlrev_b32 v2, 4, v1")
        a("s_lshl_b32 s%d, s4, 2" % S_XOFF)
        a("s_lshl_b32 s%d, s7, 1" % S_TMP)
        a("s_add_u32 s%d, s%d, s%d" % (S_XOFF, S_XOFF, S_TMP))
        a("s_mul_i32 s%d, s%d, %d" % (S_XOFF, S_XOFF, c.KX // 8 * 512))
    if c.wmode == "pair":
        a("v_lshrrev_b32 v10, 5, v1")
        a("v_lshlrev_b32 v10, 2, v10")
        a("v_bfe_u32 v11, v1, 2, 2")
        a("v_add_u32 v10, v10, v11")
        a("v_mul_u32_u24 v10, %d, v10" % c.ldw)
        a("v_bfe_u32 v11, v1, 4, 1")
        a("v_lshl_add_u32 v10, v11, 6, v10")
        a("v_and_b32 v11, 3, v1")
        a("v_lshl_add_u32 v4, v11, 4, v10")
        a("v_xor_b32 v11, 2, v11")
        a("v_lshl_add_u32 v5, v11, 4, v10")
        a("s_mul_i32 s%d, s7, %d" % (S_WOFF, 32 * c.ldw))
        a("s_mul_i32 s%d, s5, %d" % (S_TMP, c.ntile_bytes))
        a("s_add_u32 s%d, s%d, s%d" % (S_WOFF, S_WOFF, S_TMP))
        a("s_mul_i32 s%d, s7, %d" % (S_LDSW, 4 * (c.NB // 2) * 1024))
    else:
        a("v_lshrrev_b32 v12, 4, v1")
        a("v_bfe_u32 v13, v1, 2, 2")
        a("v_and_b32 v14, 3, v1")
        for t in range(7):
            a("v_add_u32 v15, %d, v12" % (4 * t))
            a("v_mul_u32_u24 v16, 37, v15")
            a("v_lshrrev_b32 v16, 8, v16")
            a("v_mul_u32_u24 v17, 7, v16")
            a("v_sub_u32 v17, v15, v17")
            a("v_and_b32 v18, 2, v16")
            a("v_xor_b32 v18, v18, v14")
            a("v_lshl_add_u32 v16, v16, 2, v13")
            a("v_mul_u32_u24 v16, %d, v16" % c.ldw)
            a("v_lshl_add_u32 v16, v17, 6, v16")
            a("v_lshl_add_u32 v%d, v18, 4, v16" % (4 + t))
        a("s_mul_i32 s%d, s7, %d" % (S_WOFF, 32 * c.ldw))
        a("s_mul_i32 s%d, s5, %d" % (S_TMP, c.ntile_bytes))
        a("s_add_u32 s%d, s%d, s%d" % (S_WOFF, S_WOFF, S_TMP))
        a("s_mul_i32 s%d, s7, 14336" % S_LDSW)
    if c.koff: c.koff(a, c)
    a("s_add_u32 s%d, s%d, %d" % (S_LDSW, S_LDSW, c.LB + 16384))
    a("s_lshl_b32 s%d, s7, 13" % S_LDSX)
    if c.LB: a("s_add_u32 s%d, s%d, %d" % (S_LDSX, S_LDSX, c.LB))
    a("s_mov_b32 s%d, %d" % (S_SS, c.SS))
    a("s_mov_b32 s%d, 0x%x" % (S_NEG, (-(c.NS - 1) * c.SS) & 0xffffffff))

def nX(c): return 8
def nW(c): return c.NB * 2

def issue_x(a, c, ldsoff=0):
    if c.xmode == "row":
        for j in range(8):
            a("s_add_u32 m0, s%d, %d" % (S_LDSX, ldsoff + j * 1024))
            a("s_add_u32 s%d, s%d, %d" % (S_TMP, S_XOFF, j * 8 * c.ldx))
            a("buffer_load_dwordx4 v%d, %s, s%d offen lds" % (2 + (j & 1), S(SX), S_TMP))
        a("s_add_u32 s%d, s%d, 128" % (S_XOFF, S_XOFF))
    else:
        a("s_add_u32 m0, s%d, %d" % (S_LDSX, ldsoff))
        a("s_add_u32 s%d, s%d, %d" % (S_TMP, S_XOFF, c.KX // 8 * 512))
        for j in range(4):
            a("buffer_load_dwordx4 v2, %s, s%d offen offset:%d lds" % (S(SX), S_XOFF, j * 1024))
        a("s_add_u32 m0, s%d, %d" % (S_LDSX, ldsoff + 4096))
        a("s_add_u32 s%d, s%d, 4096" % (S_XOFF, S_XOFF))
        for j in range(4):
            a("buffer_load_dwordx4 v2, %s, s%d offen offset:%d lds" % (S(SX), S_TMP, j * 1024))

def issue_w(a, c, ldsoff=0):
    if c.wmode == "pair":
        NP = c.NB // 2
        for kpl in range(4):
            for np_ in range(NP):
                a("s_add_u32 m0, s%d, %d" % (S_LDSW, ldsoff + (kpl * NP + np_) * 1024))
                if getattr(c, "strip_sgpr", None):
                    a("s_add_u32 s%d, s%d, %d" % (S_TMP, S_WOFF, kpl * 8 * c.ldw))
                    a("s_add_u32 s%d, s%d, s%d" % (S_TMP, S_TMP, c.strip_sgpr + np_))
                else:
                    a("s_add_u32 s%d, s%d, %d" % (S_TMP, S_WOFF, kpl * 8 * c.ldw + c.strip[np_]))
                a("buffer_load_dwordx4 v%d, %s, s%d offen lds" % (4 + (kpl & 1), S(SW), S_TMP))
    else:
        for g in range(2):
            if g == 1: a("s_add_u32 s%d, s%d, %d" % (S_TMP, S_WOFF, 16 * c.ldw))
            for t in range(7):
                a("s_add_u32 m0, s%d, %d" % (S_LDSW, ldsoff + g * 7168 + t * 1024))
                a("s_nop 0")
                a("buffer_load_dwordx4 v%d, %s, s%d offen lds" % (4 + t, S(SW), S_WOFF if g == 0 else S_TMP))
    a("s_add_u32 s%d, s%d, %d" % (S_WOFF, S_WOFF, 64 * c.ldw))

S_S0 = 86
def xstride(c): return 128 if c.xmode == "row" else 4096
def rot_begin(a, c):
    if not c.rot: return
    c.rot(a, c)
    a("s_mul_i32 s%d, s%d, %d" % (S_TMP, S_S0, xstride(c)))
    a("s_add_u32 s92, s%d, s%d" % (S_XOFF, S_TMP))
    a("s_mul_i32 s%d, s%d, %d" % (S_TMP, S_S0, 64 * c.ldw))
    a("s_add_u32 s93, s%d, s%d" % (S_WOFF, S_TMP))
    a("s_mov_b32 s90, 0")
    a("s_mov_b32 s91, 0")
def IX(a, c, off=0, k=None):
    if c.rot and k == c.peel_at:
        a("s_mov_b32 s89, s%d" % S_XOFF)
        a("s_mov_b32 s%d, s92" % S_XOFF)
        issue_x(a, c, off)
        a("s_mov_b32 s%d, s89" % S_XOFF)
        return
    if c.rot:
        a("s_cmp_eq_u32 s90, s%d" % S_S0)
        a("s_cselect_b32 s%d, %d, 0" % (S_TMP, xstride(c)))
        a("s_add_u32 s%d, s%d, s%d" % (S_XOFF, S_XOFF, S_TMP))
        a("s_add_u32 s90, s90, 1")
    issue_x(a, c, off)
def IW(a, c, off=0, k=None):
    if c.rot and k == c.peel_at:
        a("s_mov_b32 s89, s%d" % S_WOFF)
        a("s_mov_b32 s%d, s93" % S_WOFF)
        issue_w(a, c, off)
        a("s_mov_b32 s%d, s89" % S_WOFF)
        return
    if c.rot:
        a("s_cmp_eq_u32 s91, s%d" % S_S0)
        a("s_cselect_b32 s%d, %d, 0" % (S_TMP, 64 * c.ldw))
        a("s_add_u32 s%d, s%d, s%d" % (S_WOFF, S_WOFF, S_TMP))
        a("s_add_u32 s91, s91, 1")
    issue_w(a, c, off)

def trickle_setup(a, c):
    tr = getattr(c, "trickle", None)
    if not tr: return
    for k, (p, nbytes, K, start) in enumerate(tr):
        srd(a, (SC, SD)[k], p, 0, nbytes)
        a("s_lshl_b32 s%d, s2, 1" % (78 + k))
        a("s_add_u32 s%d, s%d, s7" % (78 + k, 78 + k))
        a("s_lshl_b32 s%d, s%d, 7" % (78 + k, 78 + k))
        if start: a("s_add_u32 s%d, s%d, %d" % (78 + k, 78 + k, start * 65536))
def trickle(a, c):
    tr = getattr(c, "trickle", None)
    if not tr: return
    for k, (p, nbytes, K, start) in enumerate(tr):
        for _ in range(K):
            a("s_buffer_load_dword s87, %s, s%d" % (S((SC, SD)[k]), 78 + k))
            a("s_add_u32 s%d, s%d, 65536" % (78 + k, 78 + k))

def adv_buf(a, c):
    a("s_add_u32 s%d, s%d, 1" % (S_BUF, S_BUF))
    a("s_cmp_eq_u32 s%d, %d" % (S_BUF, c.NS))
    a("s_cselect_b32 s%d, s%d, s%d" % (S_DELTA, S_NEG, S_SS))
    a("s_cselect_b32 s%d, 0, s%d" % (S_BUF, S_BUF))
    a("s_add_u32 s%d, s%d, s%d" % (S_LDSX, S_LDSX, S_DELTA))
    a("s_add_u32 s%d, s%d, s%d" % (S_LDSW, S_LDSW, S_DELTA))

def loader_phase(R, c):
    a = R.a; n = c.name + "_ld"
    c.tmap(a, c)
    c.srds_loader(a, c)
    loader_setup(a, c)
    NS, NST = c.NS, c.NST
    x, w = nX(c), nW(c); nn = x + w
    order = []
    pre = 0
    if c.loader_pre: pre = c.loader_pre(a, c) or 0
    rot_begin(a, c)
    trickle_setup(a, c)
    if c.flag:
        for _ in range(getattr(c, "pre_s_bars", 0)): R.bar()
        R.bar()
        if getattr(c, "pre_t_hook", None): c.pre_t_hook(a, pre)
        for s in range(NS):
            IW(a, c, s * c.SS, k=s); order.append((s, w))
        R.bar()
        IX(a, c, 0, k=0); IX(a, c, c.SS, k=1); order += [(0, x), (1, x)]
        a("s_waitcnt vmcnt(%d)" % x)
        R.bar()
        for s in range(2, NS):
            IX(a, c, s * c.SS, k=s); order.append((s, x))
    else:
        IX(a, c, 0, k=0); IW(a, c, 0, k=0); IX(a, c, c.SS, k=1); IW(a, c, c.SS, k=1)
        order += [(0, nn), (1, nn)]
        a("s_waitcnt vmcnt(%d)" % nn)
        R.bar()
        for s in range(2, NS):
            if c.helper_stage == s:
                order.append((s, 0))
            else:
                IX(a, c, s * c.SS, k=s); IW(a, c, s * c.SS, k=s); order.append((s, nn))
    a("s_mov_b32 s%d, 0" % S_BUF)
    def allowed(need_stage):
        last = max(k for k, (s, _) in enumerate(order) if s == need_stage)
        return min(63, sum(cnt for (s, cnt) in order[last + 1:]))
    i = 0
    steady = (NS - 2) * nn
    while i < NST - NS and allowed(i + 1) != steady:
        a("s_waitcnt vmcnt(%d)" % allowed(i + 1)); R.bar()
        if c.jump_at is not None and i + NS == c.jump_at: c.jump(a, c)
        IX(a, c, k=i + NS); IW(a, c, k=i + NS); adv_buf(a, c); trickle(a, c); order.append((i + NS, nn))
        i += 1
    first = i
    nloop = NST - NS - first
    if nloop > 0:
        a("s_mov_b32 s%d, %d" % (S_CNT, first))
        a.label(n + "_loop")
        a("s_waitcnt vmcnt(%d)" % steady); R.bar(nloop)
        if c.jump_at is not None:
            a("s_cmp_lg_u32 s%d, %d" % (S_CNT, c.jump_at - NS))
            a("s_cbranch_scc1 %s_nj" % n)
            c.jump(a, c)
            a.label(n + "_nj")
        if c.rot and c.peel_at >= first + NS:
            a("s_cmp_lg_u32 s%d, %d" % (S_CNT, c.peel_at - NS))
            a("s_cbranch_scc1 %s_nat" % n)
            IX(a, c, k=c.peel_at); IW(a, c, k=c.peel_at)
            a("s_branch %s_adv" % n)
            a.label(n + "_nat")
            IX(a, c); IW(a, c)
            a.label(n + "_adv")
            adv_buf(a, c)
        else:
            IX(a, c); IW(a, c); adv_buf(a, c)
        trickle(a, c)
        a("s_add_u32 s%d, s%d, 1" % (S_CNT, S_CNT))
        a("s_cmp_lt_u32 s%d, %d" % (S_CNT, NST - NS))
        a("s_cbranch_scc1 %s_loop" % n)
        for k in range(first, NST - NS): order.append((k + NS, nn))
    if getattr(c, "tail_touch", None):
        nt = c.tail_touch(a, c)
        order.append((99, nt))
    for i in range(NST - NS, NST):
        if i + 1 < NST: a("s_waitcnt vmcnt(%d)" % allowed(i + 1))
        R.bar()

def reads(c, p, s):
    xs = []
    for t in range(4):
        if c.xmode == "row":
            xs.append("ds_read_b128 %s, v%d offset:%d" % (vr(c.XF[p][t], 4), c.VXA + s, t * 2048))
        else:
            xs.append("ds_read_b128 %s, v%d offset:%d" % (vr(c.XF[p][t], 4), c.VXA, (t >> 1) * 4096 + (t & 1) * 256 + s * 2048))
    ws = []
    for b in range(c.TNI):
        nb, g, areg = c.wtile(b)
        for e in range(2):
            if c.wmode == "pair":
                NP = c.NB // 2
                off = s * 4 * NP * 1024 + (nb >> 1) * 1024 + e * 512 + (nb & 1) * 256
            else:
                off = ((8 * s + e) * 7 + nb) * 256
            ws.append("ds_read_b64_tr_b16 %s, v%d offset:%d" % (vr(c.WF[p][b] + 2 * e, 2), areg, 16384 + off))
    return ws[:2] + xs + ws[2:]

def compute_addr(a, c):
    a("v_and_b32 v10, 15, v1")
    a("v_lshrrev_b32 v11, 4, v1")
    a("s_lshl_b32 s%d, s6, 13" % S_TMP)
    if c.LB: a("s_add_u32 s%d, s%d, %d" % (S_TMP, S_TMP, c.LB))
    if c.xmode == "row":
        a("v_bfe_u32 v12, v10, 1, 3")
        a("v_xor_b32 v12, v12, v11")
        a("v_lshlrev_b32 v13, 7, v10")
        a("v_add_u32 v13, s%d, v13" % S_TMP)
        for s in range(2):
            a("v_xor_b32 v14, %d, v12" % (4 * s))
            a("v_lshl_add_u32 v%d, v14, 4, v13" % (c.VXA + s))
    else:
        a("v_lshlrev_b32 v13, 9, v11")
        a("v_lshl_add_u32 v13, v10, 4, v13")
        a("v_add_u32 v%d, s%d, v13" % (c.VXA, S_TMP))
    a("v_bfe_u32 v12, v1, 2, 2")
    a("v_lshlrev_b32 v12, 6, v12")
    a("v_and_b32 v13, 3, v1")
    a("v_lshl_add_u32 v12, v13, 3, v12")
    qstride = (c.NB // 2) * 1024 if c.wmode == "pair" else 2 * 7 * 256
    a("v_mul_u32_u24 v13, %d, v11" % qstride)
    a("v_add_u32 v12, v12, v13")
    a("v_and_b32 v13, 1, v11")
    a("v_lshl_add_u32 v12, v13, 5, v12")
    if c.LB: a("v_add_u32 v12, %d, v12" % c.LB)
    if c.wmode == "pair":
        a("s_mul_i32 s%d, s7, %d" % (S_TMP, c.wwave_off))
        a("v_add_u32 v%d, s%d, v12" % (c.VWA, S_TMP))
        a("v_xor_b32 v%d, 32, v%d" % (c.VWA + 1, c.VWA))
    else:
        a("s_lshl_b32 s%d, s7, 5" % S_TMP)
        a("v_xor_b32 v12, s%d, v12" % S_TMP)
        a("v_xor_b32 v13, 32, v12")
        a("s_mul_i32 s%d, s7, 768" % S_TMP)
        a("v_add_u32 v%d, s%d, v12" % (c.VWA, S_TMP))
        a("s_lshl_b32 s%d, s7, 10" % S_TMP)
        a("v_add_u32 v%d, s%d, v13" % (c.VWA + 1, S_TMP))
    a("s_mov_b32 s%d, %d" % (S_SS, c.SS))
    a("s_mov_b32 s%d, 0x%x" % (S_NEG, (-(c.NS - 1) * c.SS) & 0xffffffff))

def zero_acc(a, c):
    for t in range(4):
        for b in range(c.TNI):
            for r in range(4): a("v_mov_b32 v%d, 0" % (c.ACC[t][b] + r))

def stage_body(R, c, extra=None, count_bar=1, drain=None):
    a = R.a
    nx = 2 if c.xmode == "row" else 1
    for s in range(2):
        p = s
        a("s_waitcnt lgkmcnt(0)")
        if s == 1:
            a("s_add_u32 s%d, s%d, 1" % (S_BUF, S_BUF))
            a("s_cmp_eq_u32 s%d, %d" % (S_BUF, c.NS))
            a("s_cselect_b32 s%d, s%d, s%d" % (S_DELTA, S_NEG, S_SS))
            a("s_cselect_b32 s%d, 0, s%d" % (S_BUF, S_BUF))
            for q in range(nx):
                a("v_add_u32 v%d, s%d, v%d" % (c.VXA + q, S_DELTA, c.VXA + q))
            a("v_add_u32 v%d, s%d, v%d" % (c.VWA, S_DELTA, c.VWA))
            a("v_add_u32 v%d, s%d, v%d" % (c.VWA + 1, S_DELTA, c.VWA + 1))
            if drain:
                a("s_cmp_lg_u32 s%d, %d" % (S_CNT, drain))
                a("s_cbranch_scc1 %s_nodrain" % c.name)
                a("s_waitcnt vmcnt(0)")
                a.label(c.name + "_nodrain")
            R.bar(count_bar)
        rd = reads(c, 1 - p, 1 - s)
        mf = []
        for b in range(c.TNI):
            for t in range(4):
                acc = c.ACC[t][b]
                if c.orient[b] == "T":
                    mf.append("%s %s, %s, %s, %s" % (MF16, vr(acc, 4), vr(c.WF[p][b], 4), vr(c.XF[p][t], 4), vr(acc, 4)))
                else:
                    mf.append("%s %s, %s, %s, %s" % (MF16, vr(acc, 4), vr(c.XF[p][t], 4), vr(c.WF[p][b], 4), vr(acc, 4)))
        if extra: mf += extra(c, p, s)
        ri = 0
        for m in mf:
            a(m)
            for _ in range(c.reads_per_gap):
                if ri < len(rd): a(rd[ri]); ri += 1
        while ri < len(rd): a(rd[ri]); ri += 1

def mainloop(R, c, niter_sgpr=None, nbar=None, tail=True):
    a = R.a; n = c.name
    for r in reads(c, 0, 0): a(r)
    a("s_mov_b32 s%d, 0" % S_CNT)
    a("s_mov_b32 s%d, 0" % S_BUF)
    total = nbar if nbar is not None else c.NST
    peel = getattr(c, "extra0", None)
    if peel:
        if c.peel_at > 0:
            a.label(n + "_pre")
            stage_body(R, c, count_bar=c.peel_at); total -= c.peel_at
            a("s_add_u32 s%d, s%d, 1" % (S_CNT, S_CNT))
            a("s_cmp_lt_u32 s%d, %d" % (S_CNT, c.peel_at))
            a("s_cbranch_scc1 %s_pre" % n)
        stage_body(R, c, extra=peel, count_bar=1)
        c.after0(a, c)
        a("s_mov_b32 s%d, %d" % (S_CNT, c.peel_at + 1))
        total -= 1
    a.label(n + "_loop")
    stage_body(R, c, count_bar=total)
    a("s_add_u32 s%d, s%d, 1" % (S_CNT, S_CNT))
    if niter_sgpr is None: a("s_cmp_lt_u32 s%d, %d" % (S_CNT, c.NST))
    else: a("s_cmp_lt_u32 s%d, s%d" % (S_CNT, niter_sgpr))
    a("s_cbranch_scc1 %s_loop" % n)
    if tail: a("s_waitcnt lgkmcnt(0)")

def pack_pair(a, accA, accB, P):
    a("v_cvt_pk_bf16_f32 v%d, v%d, v%d" % (P, accA, accA + 1))
    a("v_cvt_pk_bf16_f32 v%d, v%d, v%d" % (P + 1, accA + 2, accA + 3))
    a("v_cvt_pk_bf16_f32 v%d, v%d, v%d" % (P + 2, accB, accB + 1))
    a("v_cvt_pk_bf16_f32 v%d, v%d, v%d" % (P + 3, accB + 2, accB + 3))
    a("v_permlane16_swap_b32 v%d, v%d" % (P, P + 2))
    a("v_permlane16_swap_b32 v%d, v%d" % (P + 1, P + 3))

def pack4(a, P, A, B):
    a("v_cvt_pk_bf16_f32 v%d, v%d, v%d" % (P, A, A + 1))
    a("v_cvt_pk_bf16_f32 v%d, v%d, v%d" % (P + 1, A + 2, A + 3))
    a("v_cvt_pk_bf16_f32 v%d, v%d, v%d" % (P + 2, B, B + 1))
    a("v_cvt_pk_bf16_f32 v%d, v%d, v%d" % (P + 3, B + 2, B + 3))

def xq(a, op, v, t):
    a("v_mov_b32 v%d, v%d" % (t, v))
    a("v_permlane16_swap_b32 v%d, v%d" % (v, t))
    a("%s v%d, v%d, v%d" % (op, v, v, t))
    a("v_mov_b32 v%d, v%d" % (t, v))
    a("v_permlane32_swap_b32 v%d, v%d" % (v, t))
    a("%s v%d, v%d, v%d" % (op, v, v, t))

def flag_write(a, off_sgpr_or_imm, grp, vtmp=20):
    a("v_mov_b32 v%d, s%d" % (vtmp, S_NONCE))
    a("v_mov_b32 v%d, s%d" % (vtmp + 1, S_NONCE + 1))
    a("v_mov_b32 v%d, %d" % (vtmp + 2, grp))
    a("s_mov_b64 exec, 1")
    a("buffer_store_dwordx2 %s, v%d, %s, s%d offen sc1" % (vr(vtmp, 2), vtmp + 2, S(SF), off_sgpr_or_imm))
    a("s_mov_b64 exec, -1")

_pollcnt = [0]
def flag_poll(a, off_sgpr, grp, nflags, vtmp=20):
    _pollcnt[0] += 1
    L = "poll%d" % _pollcnt[0]
    a("v_lshlrev_b32 v%d, 3, v1" % (vtmp + 2))
    a("v_add_u32 v%d, %d, v%d" % (vtmp + 2, grp, vtmp + 2))
    a("s_mov_b64 exec, 0x%x" % ((1 << nflags) - 1))
    a("s_mov_b32 s80, 0")
    a.label(L)
    a("buffer_load_dwordx2 %s, v%d, %s, s%d offen sc1" % (vr(vtmp, 2), vtmp + 2, S(SF), off_sgpr))
    a("s_waitcnt vmcnt(0)")
    a("v_cmp_ne_u32 vcc, s%d, v%d" % (S_NONCE, vtmp))
    a("v_cmp_ne_u32 s[78:79], s%d, v%d" % (S_NONCE + 1, vtmp + 1))
    a("s_or_b64 s[78:79], vcc, s[78:79]")
    a("s_cmp_eq_u64 s[78:79], 0")
    a("s_cbranch_scc1 %s_ok" % L)
    a("s_sleep 2")
    a("s_add_u32 s80, s80, 1")
    a("s_cmp_lt_u32 s80, 0x40000")
    a("s_cbranch_scc1 %s" % L)
    a.label(L + "_ok")
    a("s_mov_b64 exec, -1")


def flag_poll_v(a, voff, nflags, vtmp=20, split=None):
    _pollcnt[0] += 1
    L = "poll%d" % _pollcnt[0]
    a("s_mov_b64 exec, 0x%x" % ((1 << nflags) - 1))
    a("buffer_load_dwordx2 %s, v%d, %s, 0 offen sc1" % (vr(vtmp, 2), voff, S(SF)))
    if split: split()
    a("s_mov_b32 s80, 0")
    a.label(L)
    a("s_waitcnt vmcnt(0)")
    a("v_cmp_ne_u32 vcc, s%d, v%d" % (S_NONCE, vtmp))
    a("v_cmp_ne_u32 s[78:79], s%d, v%d" % (S_NONCE + 1, vtmp + 1))
    a("s_or_b64 s[78:79], vcc, s[78:79]")
    a("s_cmp_eq_u64 s[78:79], 0")
    a("s_cbranch_scc1 %s_ok" % L)
    a("buffer_load_dwordx2 %s, v%d, %s, 0 offen sc1" % (vr(vtmp, 2), voff, S(SF)))
    a("s_add_u32 s80, s80, 1")
    a("s_cmp_lt_u32 s80, 0x40000")
    a("s_cbranch_scc1 %s" % L)
    a.label(L + "_ok")
    a("s_mov_b64 exec, -1")


L_TOP = 163840 - 64
def publish_flag(a, k, off_code, grp, n=4):
    _pollcnt[0] += 1
    L = "pub%d" % _pollcnt[0]
    a("v_mov_b32 v8, %d" % (L_TOP + 16 + 4 * k))
    a("v_mov_b32 v9, 1")
    a("s_mov_b64 exec, 1")
    a("ds_add_rtn_u32 v9, v8, v9")
    a("s_waitcnt lgkmcnt(0)")
    a("v_readfirstlane_b32 s72, v9")
    a("s_mov_b64 exec, -1")
    a("s_cmp_lg_u32 s72, %d" % (n - 1))
    a("s_cbranch_scc1 %s" % L)
    srd(a, SF, P_WS, WS_FLAG, FLAG_SZ)
    off_code(a)
    flag_write(a, 71, grp, vtmp=8)
    a.label(L)


def tag_check(a, regs, acc, name, reload_code, sub=None):
    a("s_mov_b32 s80, 0")
    a.label(name + "_retry")
    a("s_waitcnt vmcnt(0)")
    if sub:
        import phases3 as _p
        _p.call(a, sub)
    else:
        a("v_min3_u32 v%d, v%d, v%d, v%d" % (acc, regs[0], regs[1], regs[2]))
        a("v_max3_u32 v%d, v%d, v%d, v%d" % (acc + 1, regs[0], regs[1], regs[2]))
        k = 3
        while k < len(regs):
            r2 = regs[k + 1] if k + 1 < len(regs) else regs[k]
            a("v_min3_u32 v%d, v%d, v%d, v%d" % (acc, acc, regs[k], r2))
            a("v_max3_u32 v%d, v%d, v%d, v%d" % (acc + 1, acc + 1, regs[k], r2))
            k += 2
    a("v_cmp_ne_u32 vcc, s%d, v%d" % (S_NONCE, acc))
    a("v_cmp_ne_u32 s[78:79], s%d, v%d" % (S_NONCE, acc + 1))
    a("s_or_b64 s[78:79], vcc, s[78:79]")
    a("s_cmp_eq_u64 s[78:79], 0")
    a("s_cbranch_scc1 %s_ok" % name)
    reload_code()
    a("s_add_u32 s80, s80, 1")
    a("s_cmp_lt_u32 s80, 0x20000")
    a("s_cbranch_scc1 %s_retry" % name)
    a.label(name + "_ok")


S_RDY = 81
def poll_mask(a, off_sgpr, grp, need_code, vtmp=20):
    _pollcnt[0] += 1
    L = "pm%d" % _pollcnt[0]
    need_code(a)
    a("s_mov_b32 s80, 0")
    a("v_lshlrev_b32 v%d, 3, v1" % (vtmp + 2))
    a("v_add_u32 v%d, %d, v%d" % (vtmp + 2, grp, vtmp + 2))
    a.label(L)
    a("s_and_b32 s77, s%d, s76" % S_RDY)
    a("s_cmp_eq_u32 s77, s76")
    a("s_cbranch_scc1 %s_ok" % L)
    a("s_mov_b64 exec, 0xffff")
    a("buffer_load_dwordx2 %s, v%d, %s, s%d offen sc1" % (vr(vtmp, 2), vtmp + 2, S(SF), off_sgpr))
    a("s_waitcnt vmcnt(0)")
    a("v_cmp_eq_u32 vcc, s%d, v%d" % (S_NONCE, vtmp))
    a("v_cmp_eq_u32 s[78:79], s%d, v%d" % (S_NONCE + 1, vtmp + 1))
    a("s_mov_b64 exec, -1")
    a("s_and_b64 s[78:79], vcc, s[78:79]")
    a("s_mov_b32 s%d, s78" % S_RDY)
    a("s_add_u32 s80, s80, 1")
    a("s_cmp_lt_u32 s80, 0x40000")
    a("s_cbranch_scc1 %s" % L)
    a.label(L + "_ok")
```

```python
from gen3 import *

def MF(a, d, x, y, c):
    a("%s %s, %s, %s, %s" % (MF16, vr(d, 4), vr(x, 4), vr(y, 4), vr(c, 4) if c is not None else "0"))

S_L2P = 94
def softmax16_list(P, E, T, outP, outN):
    L = []; a = L.append
    mx, mn, t0, t1, sp, sn = T, T+2, T+4, T+5, T+6, T+7
    a("v_max3_f32 v%d, v%d, v%d, v%d" % (mx, P, P+1, P+2))
    a("v_min3_f32 v%d, v%d, v%d, v%d" % (mn, P, P+1, P+2))
    for r in (3, 5):
        a("v_max3_f32 v%d, v%d, v%d, v%d" % (mx, mx, P+r, P+r+1))
        a("v_min3_f32 v%d, v%d, v%d, v%d" % (mn, mn, P+r, P+r+1))
    a("v_max_f32 v%d, v%d, v%d" % (mx, mx, P+7))
    a("v_min_f32 v%d, v%d, v%d" % (mn, mn, P+7))
    for sw in ("v_permlane16_swap_b32", "v_permlane32_swap_b32"):
        a("v_mov_b32 v%d, v%d" % (t0, mx))
        a("v_mov_b32 v%d, v%d" % (t1, mn))
        a("%s v%d, v%d" % (sw, mx, t0))
        a("%s v%d, v%d" % (sw, mn, t1))
        a("v_max_f32 v%d, v%d, v%d" % (mx, mx, t0))
        a("v_min_f32 v%d, v%d, v%d" % (mn, mn, t1))
    a("v_mul_f32 v%d, s%d, v%d" % (mx, S_L2P, mx))
    a("v_mul_f32 v%d, s%d, v%d" % (mn, S_L2P, mn))
    for r in range(0, 8, 2):
        a("v_pk_fma_f32 %s, %s, s[%d:%d], %s op_sel_hi:[1,1,0] neg_lo:[0,0,1] neg_hi:[0,0,1]" % (vr(E+r, 2), vr(P+r, 2), S_L2P, S_L2P+1, vr(mx, 2)))
        a("v_pk_fma_f32 %s, %s, s[%d:%d], %s op_sel_hi:[1,1,0] neg_lo:[1,0,0] neg_hi:[1,0,0]" % (vr(P+r, 2), vr(P+r, 2), S_L2P, S_L2P+1, vr(mn, 2)))
    for r in range(8):
        a("v_exp_f32 v%d, v%d" % (E+r, E+r))
        a("v_exp_f32 v%d, v%d" % (P+r, P+r))
    a("v_pk_add_f32 %s, %s, %s" % (vr(mx, 2), vr(E, 2), vr(E+2, 2)))
    a("v_pk_add_f32 %s, %s, %s" % (vr(mn, 2), vr(P, 2), vr(P+2, 2)))
    for r in (4, 6):
        a("v_pk_add_f32 %s, %s, %s" % (vr(mx, 2), vr(mx, 2), vr(E+r, 2)))
        a("v_pk_add_f32 %s, %s, %s" % (vr(mn, 2), vr(mn, 2), vr(P+r, 2)))
    a("v_add_f32 v%d, v%d, v%d" % (sp, mx, mx+1))
    a("v_add_f32 v%d, v%d, v%d" % (sn, mn, mn+1))
    for sw in ("v_permlane16_swap_b32", "v_permlane32_swap_b32"):
        a("v_mov_b32 v%d, v%d" % (t0, sp))
        a("v_mov_b32 v%d, v%d" % (t1, sn))
        a("%s v%d, v%d" % (sw, sp, t0))
        a("%s v%d, v%d" % (sw, sn, t1))
        a("v_add_f32 v%d, v%d, v%d" % (sp, sp, t0))
        a("v_add_f32 v%d, v%d, v%d" % (sn, sn, t1))
    a("v_rcp_f32 v%d, v%d" % (mx, sp))
    a("v_rcp_f32 v%d, v%d" % (mn, sn))
    for r in range(0, 8, 2):
        a("v_pk_mul_f32 %s, %s, %s op_sel_hi:[1,0]" % (vr(E+r, 2), vr(E+r, 2), vr(mx, 2)))
        a("v_pk_mul_f32 %s, %s, %s op_sel_hi:[1,0]" % (vr(P+r, 2), vr(P+r, 2), vr(mn, 2)))
    for (o, X) in ((outP, E), (outN, P)):
        for d in range(4): a("v_cvt_pk_bf16_f32 v%d, v%d, v%d" % (o + d, X + 2*d, X + 2*d + 1))
    return L

def interleave(a, *lists):
    n = max(len(l) for l in lists)
    for k in range(n):
        for l in lists:
            if k < len(l): a(l[k])

def feature_map(a, WP, XFr, outs):
    for t0 in (0, 2):
        sets = []
        for k in range(2):
            PK = 16 + 32*k
            MF(a, PK, WP, XFr + 4*(t0 + k), None)
            MF(a, PK + 4, WP + 4, XFr + 4*(t0 + k), None)
        for k in range(2):
            PK = 16 + 32*k
            sets.append(softmax16_list(PK, PK + 8, PK + 16, outs[t0 + k][0], outs[t0 + k][1]))
        interleave(a, *sets)

def feature_map2(a, WP, frags, outs, extra=None):
    sets = []
    for k in range(2):
        PK = 16 + 32*k
        MF(a, PK, WP, frags[k], None)
        MF(a, PK + 4, WP + 4, frags[k], None)
    for k in range(2):
        PK = 16 + 32*k
        sets.append(softmax16_list(PK, PK + 8, PK + 16, outs[k][0], outs[k][1]))
    if extra: sets.append(extra)
    interleave(a, *sets)

def ln_T_list(acc, cs, st, tmp):
    L = []
    for r in (0, 2):
        L.append("v_pk_mul_f32 %s, %s, %s op_sel:[0,1] op_sel_hi:[1,1]" % (vr(tmp + r, 2), vr(cs + r, 2), vr(st, 2)))
    for r in (0, 2):
        L.append("v_pk_fma_f32 %s, %s, %s, %s op_sel:[0,0,0] op_sel_hi:[1,0,1]" % (vr(acc + r, 2), vr(acc + r, 2), vr(st, 2), vr(tmp + r, 2)))
    return L

def pht_write_addr(a, sw, WA):
    a("s_lshl_b32 s70, s%d, 13" % sw)
    a("v_bfe_u32 v14, v10, 1, 2")
    a("v_bfe_u32 v15, v10, 2, 1")
    a("v_lshl_or_b32 v14, v15, 2, v14")
    a("v_xor_b32 v14, v14, v11")
    a("v_lshlrev_b32 v15, 6, v10")
    a("v_lshl_add_u32 v15, v14, 3, v15")
    a("v_add_u32 v%d, s70, v15" % WA)
    a("v_xor_b32 v%d, 32, v%d" % (WA + 1, WA))

def o_part(a, PHQ, ntile0, si, sj, Rr):
    srd(a, SC, P_WS, WS_O, SZ_ACT)
    a("v_lshrrev_b32 v11, 4, v1")
    a("v_lshlrev_b32 v12, 4, v1")
    a("s_lshl_b32 s70, s%d, 12" % sj)
    a("s_add_u32 s70, s70, %d" % L1_KVF)
    a("v_add_u32 v13, s70, v12")
    KF2 = 112; ZF2 = 160
    for k in range(4): a("ds_read_b128 %s, v13 offset:%d" % (vr(KF2 + 4*k, 4), k * 1024))
    a("s_lshl_b32 s70, s%d, 7" % sj)
    a("s_add_u32 s70, s70, %d" % L1_ZF)
    a("v_lshlrev_b32 v14, 4, v11")
    a("v_add_u32 v14, s70, v14")
    for sg in range(2): a("ds_read_b128 %s, v14 offset:%d" % (vr(ZF2 + 4*sg, 4), sg * 64))
    a("s_lshl_b32 s70, s4, 2")
    a("s_lshl_b32 s71, s%d, 1" % si)
    a("s_add_u32 s70, s70, s71")
    a("s_add_u32 s70, s70, %d" % (ntile0 // 2))
    a("s_lshl_b32 s70, s70, 7")
    a("s_lshl_b32 s71, s5, 3")
    a("s_add_u32 s70, s70, s71")
    a("s_lshl_b32 s71, s%d, 2" % sj)
    a("s_add_u32 s70, s70, s71")
    a("s_lshl_b32 s70, s70, 9")
    a("s_lshl_b32 s88, s4, 7")
    a("s_lshl_b32 s71, s5, 3")
    a("s_add_u32 s88, s88, s71")
    a("s_waitcnt lgkmcnt(0)")
    O = 16
    for t in range(2):
        d = 48 + 4*t
        MF(a, d, ZF2, PHQ + t*8, None)
        MF(a, d, ZF2 + 4, PHQ + t*8 + 4, d)
    for t in range(2):
        for nt in range(2):
            d = O + (t*2 + nt)*4
            MF(a, d, KF2 + nt*4, PHQ + t*8, None)
            MF(a, d, KF2 + (2 + nt)*4, PHQ + t*8 + 4, d)
    for t in range(2): a("v_add_f32 v%d, 0x358637bd, v%d" % (64 + 2*t, 48 + 4*t))
    for t in range(2): a("v_rcp_f32 v%d, v%d" % (64 + 2*t, 64 + 2*t))
    for t in range(2):
        for r in range(0, 8, 2): a("v_pk_mul_f32 %s, %s, %s op_sel_hi:[1,0]" % (vr(O + t*8 + r, 2), vr(O + t*8 + r, 2), vr(64 + 2*t, 2)))
    for nt in range(2):
        P = 72 + nt*4
        pack_pair(a, O + nt*4, O + (2 + nt)*4, P)
        a("buffer_store_dwordx4 %s, v12, %s, s70 offen offset:%d sc1" % (vr(P, 4), S(SC), nt * 1024))

def wphi_frags(a, WP, sj):
    a("v_lshrrev_b32 v11, 4, v1")
    a("v_bfe_u32 v12, v1, 2, 2")
    a("v_and_b32 v13, 3, v1")
    a("v_lshlrev_b32 v14, 8, v11")
    a("v_lshl_add_u32 v14, v12, 6, v14")
    a("v_lshl_add_u32 v14, v13, 3, v14")
    a("s_lshl_b32 s70, s%d, 11" % sj)
    a("s_add_u32 s70, s70, %d" % L1_WPHI)
    a("v_add_u32 v14, s70, v14")
    for b in range(2):
        for e in range(2):
            a("ds_read_b64_tr_b16 %s, v14 offset:%d" % (vr(WP + 4*b + 2*e, 2), e * 1024 + b * 32))

def base_cfg(name):
    c = Cfg(); c.name = name
    c.koff = None; c.loader_pre = None; c.jump_at = None; c.jump = None; c.LB = 0; c.rot = None; c.peel_at = 0; c.helper_stage = None
    c.VXA = 2; c.VWA = 6; c.reads_per_gap = 1
    return c

L1_WPHI = 122880; L1_KVF = 126976; L1_ZF = 135168
L1_ST = 135424; L1_CS = 136448; L1_CSA = 137216; L_NONCE = L_TOP
def p1_cfg():
    c = base_cfg("p1"); c.NB = 6; c.TNI = 6
    c.xmode = "row"; c.wmode = "pair"; c.NST = 16; c.NS = 3; c.flag = False
    c.ldx = 2048; c.ldw = 6144; c.strip = [0, 2048, 4096]; c.ntile_bytes = 128
    c.SS = 16384 + 6 * 4096
    c.orient = ["T", "T", "T", "T", "N", "N"]
    c.tmap = lambda a, c: tile_map(a, 8, 4)
    c.wwave_off = 256
    c.wtile = lambda b: (2 * (b >> 1), b & 1, c.VWA + (b & 1))
    c.ACC = [[16 + (t * 6 + b) * 4 for b in range(6)] for t in range(4)]
    c.XF = [[112 + p * 16 + t * 4 for t in range(4)] for p in range(2)]
    c.WF = [[144 + p * 24 + b * 4 for b in range(6)] for p in range(2)]
    def srds_loader(a, c):
        srd(a, SX, P_X, 0, SZ_ACT)
        srd(a, SW, P_WQKV, 0, 1024*3072*2)
        srd(a, SA, P_WPHI, 0, 32*2048)
    c.srds_loader = srds_loader
    def loader_pre(a, c):
        a("v_lshlrev_b32 v20, 4, v1")
        a("s_lshl_b32 s70, s5, 12")
        a("s_lshl_b32 s71, s7, 11")
        a("s_add_u32 s70, s70, s71")
        a("s_add_u32 m0, s71, %d" % L1_WPHI)
        a("s_nop 0")
        a("buffer_load_dwordx4 v20, %s, s70 offen lds" % S(SA))
        a("buffer_load_dwordx4 v20, %s, s70 offen offset:1024 lds" % S(SA))
        return 2
    c.loader_pre = loader_pre
    def rot(a, c):
        a("s_add_u32 s86, s4, s5")
        a("s_and_b32 s86, s86, 15")
    c.rot = rot; c.peel_at = G.p1peel; c.helper_stage = None
    if G.touch_mode == 1:
        c.tail_touch = lambda a, c: ((code_prefetch(a, 30) if G.jit_cpf else 0) + touches(a, [(P_WO, 1024*1024*2), (P_W1, 1024*3584*2)], 200, SR=SB))
    if G.touch_mode == 4:
        c.tail_touch = lambda a, c: touches(a, [(P_WO, 1024*1024*2)], 200, SR=SB)
    if G.touch_mode == 5:
        c.tail_touch = lambda a, c: touches(a, [(P_WO, 1024*1024*2), (P_W1, 512*3584*2)], 200, SR=SB)
    if G.touch_mode == 3:
        c.trickle = [(P_WO, 1024*1024*2, 3, 0), (P_W1, 1024*3584*2, 6, 0)]
        if G.jit_cpf: c.tail_touch = lambda a, c: code_prefetch(a, 30)
    if G.touch_mode == 2:
        c.tail_touch = lambda a, c: touches(a, [(P_WO, 1024*1024*2), (P_W1, 1024*3584*2), (P_W2, 3584*1024*2)], 200, SR=SB)
    ONES, CS, RS, RQ = 192, 196, 220, 236
    def extra0(c, p, s):
        out = []
        for b in range(6):
            d = CS + 4*b
            out.append("%s %s, %s, %s, %s" % (MF16, vr(d, 4), vr(c.WF[p][b], 4), vr(ONES, 4), vr(d, 4) if s else "0"))
        for t in range(4):
            d = RS + 4*t
            out.append("%s %s, %s, %s, %s" % (MF16, vr(d, 4), vr(ONES, 4), vr(c.XF[p][t], 4), vr(d, 4) if s else "0"))
            d = RQ + 4*t
            out.append("%s %s, %s, %s, %s" % (MF16, vr(d, 4), vr(c.XF[p][t], 4), vr(c.XF[p][t], 4), vr(d, 4) if s else "0"))
        return out
    c.extra0 = extra0
    def pre_loop(a, c):
        for r in range(4): a("v_mov_b32 v%d, 0x3f803f80" % (ONES + r))
    c.pre_loop = pre_loop
    def after0(a, c):
        a("v_lshrrev_b32 v11, 4, v1")
        a("v_and_b32 v10, 15, v1")
        a("s_cmp_lg_u32 s6, 0")
        a("s_cbranch_scc1 p1a0_nocs")
        a("s_lshl_b32 s70, s7, 7")
        a("s_add_u32 s70, s70, %d" % L1_CSA)
        a("v_lshlrev_b32 v8, 4, v11")
        a("v_add_u32 v8, s70, v8")
        a("s_mov_b32 exec_lo, 0x00010001")
        a("s_mov_b32 exec_hi, 0x00010001")
        for b in range(6):
            a("ds_write_b128 v8, %s offset:%d" % (vr(CS + 4*b, 4), (b >> 1) * 256 + (b & 1) * 64))
        a("s_mov_b64 exec, -1")
        a.label("p1a0_nocs")
        a("s_cmp_lg_u32 s7, 0")
        a("s_cbranch_scc1 p1a0_nors")
        a("v_and_b32 v8, 3, v10")
        a("v_cmp_eq_u32 s[72:73], 1, v8")
        a("v_cmp_eq_u32 s[74:75], 2, v8")
        a("v_cmp_eq_u32 s[76:77], 3, v8")
        a("s_lshl_b32 s70, s6, 9")
        a("s_add_u32 s70, s70, %d" % L1_ST)
        a("v_lshlrev_b32 v9, 3, v10")
        a("v_add_u32 v9, s70, v9")
        for t in range(4):
            d = RQ + 4*t
            a("v_cndmask_b32 v%d, v%d, v%d, s[72:73]" % (RS + 4*t + 1, d, d + 1))
            a("v_cndmask_b32 v%d, v%d, v%d, s[74:75]" % (RS + 4*t + 1, RS + 4*t + 1, d + 2))
            a("v_cndmask_b32 v%d, v%d, v%d, s[76:77]" % (RS + 4*t + 1, RS + 4*t + 1, d + 3))
        a("s_mov_b32 exec_lo, 0x00f0000f")
        a("s_mov_b32 exec_hi, 0xf0000f00")
        for t in range(4):
            a("ds_write_b64 v9, %s offset:%d" % (vr(RS + 4*t, 2), t * 128))
        a("s_mov_b64 exec, -1")
        a.label("p1a0_nors")
    c.after0 = after0
    return c

L3_XT = 139264
def p3_cfg():
    c = base_cfg("p3"); c.NB = 2; c.TNI = 2
    c.xmode = "blk"; c.wmode = "pair"; c.KX = 1024; c.NST = 16; c.NS = 5; c.flag = True
    c.ldw = 2048; c.strip = [0]; c.ntile_bytes = 128
    c.SS = 16384 + 2 * 4096
    c.orient = ["T"] * 2
    c.tmap = lambda a, c: tile_map(a, 4, 8)
    c.wwave_off = 256
    c.wtile = lambda b: (0, b & 1, c.VWA + (b & 1))
    c.ACC = [[16 + (t * 2 + b) * 4 for b in range(2)] for t in range(4)]
    c.XF = [[48 + p * 16 + t * 4 for t in range(4)] for p in range(2)]
    c.WF = [[80 + p * 8 + b * 4 for b in range(2)] for p in range(2)]
    c.reads_per_gap = 2
    def srds_loader(a, c):
        srd(a, SX, P_WS, WS_O, SZ_ACT)
        srd(a, SW, P_WO, 0, 1024*1024*2)
        srd(a, SA, P_X, 0, SZ_ACT)
    c.srds_loader = srds_loader
    def loader_pre(a, c):
        a("v_lshrrev_b32 v10, 3, v1")
        a("v_lshlrev_b32 v10, 11, v10")
        a("v_and_b32 v11, 7, v1")
        a("v_lshrrev_b32 v12, 4, v1")
        a("v_xor_b32 v13, v11, v12")
        a("v_lshl_add_u32 v20, v13, 4, v10")
        a("v_xor_b32 v13, 4, v13")
        a("v_lshl_add_u32 v21, v13, 4, v10")
        a("s_lshl_b32 s70, s4, 7")
        a("s_lshl_b32 s71, s7, 6")
        a("s_add_u32 s70, s70, s71")
        a("s_lshl_b32 s70, s70, 11")
        a("s_lshl_b32 s71, s5, 7")
        a("s_add_u32 s70, s70, s71")
        a("s_lshl_b32 s71, s7, 13")
        a("s_add_u32 s71, s71, %d" % L3_XT)
        for j in range(8):
            a("s_add_u32 m0, s71, %d" % (j * 1024))
            a("s_add_u32 s%d, s70, %d" % (S_TMP, j * 8 * 2048))
            a("buffer_load_dwordx4 v%d, %s, s%d offen lds" % (20 + (j & 1), S(SA), S_TMP))
        return 8
    c.loader_pre = loader_pre
    if G.touch_mode == 1:
        c.tail_touch = lambda a, c: ((code_prefetch(a, 30) if G.jit_cpf else 0) + touches(a, [(P_W2, 3584*1024*2)], 200, SR=SB))
    if G.touch_mode == 4:
        c.tail_touch = lambda a, c: touches(a, [(P_W1, 1024*3584*2)], 200, SR=SB)
    if G.touch_mode == 5:
        def tt(a, c):
            a("s_add_u32 s76, s%d, %d" % (P_W1, 512*3584*2)); a("s_addc_u32 s77, s%d, 0" % (P_W1 + 1))
            return touches(a, [(76, 512*3584*2), (P_W2, 1792*1024*2)], 200, SR=SB)
        c.tail_touch = tt
    if G.touch_mode == 3:
        c.trickle = [(P_W1, 1024*3584*2, 4, 78)]
        if G.jit_cpf: c.tail_touch = lambda a, c: code_prefetch(a, 30)
    return c

L4_TAB = 135168
def p4_cfg():
    c = base_cfg("p4"); c.NB = 7; c.TNI = 7
    c.xmode = "blk"; c.wmode = "lin7"; c.KX = 1024; c.NST = 16; c.NS = 3; c.flag = True
    c.ldw = 7168; c.ntile_bytes = 448
    c.SS = 16384 + 7 * 4096
    c.orient = ["T"] * 7
    c.tmap = lambda a, c: tile_map(a, 8, 4)
    c.wtile = lambda b: (b >> 1, b & 1, c.VWA + (b & 1))
    c.ACC = [[16 + (t * 7 + b) * 4 for b in range(7)] for t in range(4)]
    c.XF = [[128 + p * 16 + t * 4 for t in range(4)] for p in range(2)]
    c.WF = [[160 + p * 28 + b * 4 for b in range(7)] for p in range(2)]
    def srds_loader(a, c):
        srd(a, SX, P_WS, WS_H, SZ_ACT)
        srd(a, SW, P_W1, 0, 1024*3584*2)
    c.srds_loader = srds_loader
    if G.jit_cpf: c.tail_touch = lambda a, c: code_prefetch(a, 30)
    if G.touch_mode == 3: c.trickle = [(P_W2, 3584*1024*2, 9, 0)]
    if G.touch_mode == 4: c.tail_touch = lambda a, c: touches(a, [(P_W2, 3584*1024*2)], 200, SR=SB)
    if G.touch_mode == 5:
        def tt4(a, c):
            a("s_add_u32 s76, s%d, %d" % (P_W2, 1792*1024*2)); a("s_addc_u32 s77, s%d, 0" % (P_W2 + 1))
            return touches(a, [(76, 1792*1024*2)], 200, SR=SB)
        c.tail_touch = tt4
    def rot(a, c): a("s_mov_b32 s86, s4")
    c.rot = None if G.x_norot4 else rot
    ONES, CS = 244, 216
    def extra0(c, p, s):
        return ["%s %s, %s, %s, %s" % (MF16, vr(CS + 4*b, 4), vr(c.WF[p][b], 4), vr(ONES, 4), vr(CS + 4*b, 4) if s else "0") for b in range(7)]
    c.extra0 = extra0
    def pre_loop(a, c):
        for r in range(4): a("v_mov_b32 v%d, 0x3f803f80" % (ONES + r))
    c.pre_loop = pre_loop
    def after0(a, c):
        a("s_cmp_lg_u32 s6, 0")
        a("s_cbranch_scc1 p4a0_nocs")
        a("s_mul_i32 s70, s7, 448")
        a("s_add_u32 s70, s70, %d" % (L4_TAB + 3072))
        a("v_lshrrev_b32 v8, 4, v1")
        a("v_lshlrev_b32 v8, 4, v8")
        a("v_add_u32 v8, s70, v8")
        a("s_mov_b32 exec_lo, 0x00010001")
        a("s_mov_b32 exec_hi, 0x00010001")
        for b in range(7):
            a("ds_write_b128 v8, %s offset:%d" % (vr(CS + 4*b, 4), b * 64))
        a("s_mov_b64 exec, -1")
        a.label("p4a0_nocs")
    c.after0 = after0
    return c

KSEND, KKEEP = 24, 32
def p5_tmap(a, c):
    a("s_and_b32 s82, s30, 1")
    a("s_lshr_b32 s4, s30, 1")
    a("s_lshl_b32 s4, s4, 2")
    a("s_and_b32 s%d, s31, 3" % S_TMP)
    a("s_add_u32 s4, s4, s%d" % S_TMP)
    a("s_lshr_b32 s5, s31, 2")
def p5_cfg():
    c = base_cfg("p5"); c.NB = 4; c.TNI = 4
    c.xmode = "blk"; c.wmode = "pair"; c.KX = 3584; c.NST = KKEEP; c.NS = G.p5ns; c.flag = True
    c.ldw = 2048; c.strip = [0, 128]; c.ntile_bytes = 256
    c.SS = 16384 + 4 * 4096
    c.orient = ["T"] * 4
    c.tmap = p5_tmap
    c.wwave_off = 1024
    c.wtile = lambda b: (b >> 1, b & 1, c.VWA + (b & 1))
    c.ACC = [[16 + (t * 4 + b) * 4 for b in range(4)] for t in range(4)]
    c.XF = [[80 + p * 16 + t * 4 for t in range(4)] for p in range(2)]
    c.WF = [[112 + p * 16 + b * 4 for b in range(4)] for p in range(2)]
    def srds_loader(a, c):
        srd(a, SX, P_WS, WS_F, SZ_F)
        srd(a, SW, P_W2, 0, 3584*1024*2)
    c.srds_loader = srds_loader
    def koff(a, c):
        a("s_mul_i32 s%d, s82, %d" % (S_TMP, KKEEP * 4096))
        a("s_add_u32 s%d, s%d, s%d" % (S_XOFF, S_XOFF, S_TMP))
        a("s_mul_i32 s%d, s82, %d" % (S_TMP, KKEEP * 64 * 2048))
        a("s_add_u32 s%d, s%d, s%d" % (S_WOFF, S_WOFF, S_TMP))
    c.koff = koff
    c.jump_at = KSEND
    def jump(a, c):
        a("s_mul_i32 s%d, s82, %d" % (S_TMP, KKEEP * 4096))
        a("s_sub_u32 s%d, s%d, s%d" % (S_XOFF, S_XOFF, S_TMP))
        a("s_mul_i32 s%d, s82, %d" % (S_TMP, KKEEP * 64 * 2048))
        a("s_sub_u32 s%d, s%d, s%d" % (S_WOFF, S_WOFF, S_TMP))
        if G.p5skip:
            a("s_cmp_lg_u32 s7, s82")
            a("s_cselect_b32 s%d, 0x70000000, s%d" % (S_XOFF, S_XOFF))
    c.jump = jump
    return c


KA6, KB6 = 11, 12
def p6_tmap(a, c):
    a("s_lshr_b32 s82, s30, 1")
    a("s_and_b32 s4, s30, 1")
    a("s_lshl_b32 s4, s4, 3")
    a("s_and_b32 s%d, s31, 7" % S_TMP)
    a("s_add_u32 s4, s4, s%d" % S_TMP)
    a("s_lshr_b32 s5, s31, 3")
def p6_cfg():
    c = base_cfg("p6"); c.NB = 8; c.TNI = 8
    c.xmode = "blk"; c.wmode = "pair"; c.KX = 3584; c.NST = KA6 + KB6; c.NS = 3; c.flag = True
    c.ldw = 2048; c.strip = [0, 128, 256, 384]; c.ntile_bytes = 512
    c.SS = 16384 + 8 * 4096
    c.orient = ["T"] * 8
    c.tmap = p6_tmap
    c.wwave_off = 256
    c.wtile = lambda b: (2 * (b >> 1), b & 1, c.VWA + (b & 1))
    c.ACC = [[16 + (t * 8 + b) * 4 for b in range(8)] for t in range(4)]
    c.XF = [[144 + p * 16 + t * 4 for t in range(4)] for p in range(2)]
    c.WF = [[176 + p * 32 + b * 4 for b in range(8)] for p in range(2)]
    c.strip_sgpr = 72
    def srds_loader(a, c):
        srd(a, SX, P_WS, WS_F, SZ_F)
        srd(a, SW, P_W2, 0, 3584*1024*2)
        for k in range(4): a("s_mov_b32 s%d, %d" % (72 + k, 128 * k))
    c.srds_loader = srds_loader
    def koff(a, c):
        a("s_mul_i32 s%d, s82, %d" % (S_TMP, KA6 * 4096))
        a("s_add_u32 s%d, s%d, s%d" % (S_XOFF, S_XOFF, S_TMP))
        a("s_mul_i32 s%d, s82, %d" % (S_TMP, KA6 * 64 * 2048))
        a("s_add_u32 s%d, s%d, s%d" % (S_WOFF, S_WOFF, S_TMP))
    c.koff = koff
    c.jump_at = KA6
    def jump(a, c):
        a("s_mul_i32 s%d, s82, %d" % (S_TMP, KA6))
        a("s_sub_u32 s76, %d, s%d" % (4 * KA6 - KA6, S_TMP))
        a("s_mul_i32 s%d, s76, 4096" % S_TMP)
        a("s_add_u32 s%d, s%d, s%d" % (S_XOFF, S_XOFF, S_TMP))
        a("s_mul_i32 s%d, s76, %d" % (S_TMP, 64 * 2048))
        a("s_add_u32 s%d, s%d, s%d" % (S_WOFF, S_WOFF, S_TMP))
        for k in range(4):
            a("s_cmp_eq_u32 s82, %d" % k)
            a("s_cselect_b32 s%d, s%d, 0x70000000" % (72 + k, 72 + k))
    c.jump = jump
    return c

def p6_cfgB(cA):
    c = p6_cfg(); c.TNI = 2; c.orient = ["T"] * 2; c.name = "p6b"
    c.wtile = lambda b: (0, b & 1, c.VWA + (b & 1))
    c.ACC = [[16 + t * 32 + b * 4 for b in range(2)] for t in range(4)]
    c.XF = cA.XF
    c.WF = [[176 + p * 32 + b * 4 for b in range(2)] for p in range(2)]
    c.reads_per_gap = 1
    return c

def loopN(R, c, n, label, nbar):
    a = R.a
    a("s_mov_b32 s%d, 0" % S_CNT)
    a.label(label)
    stage_body(R, c, count_bar=nbar)
    a("s_add_u32 s%d, s%d, 1" % (S_CNT, S_CNT))
    a("s_cmp_lt_u32 s%d, %d" % (S_CNT, n))
    a("s_cbranch_scc1 %s" % label)

def p6_compute(R):
    a = R.a
    c = p6_cfg()
    c.tmap(a, c)
    compute_addr(a, c)
    zero_acc(a, c)
    R.bar(); R.bar()
    stamp(a, 12); cstamp(a, 38)
    for r in reads(c, 0, 0): a(r)
    a("s_mov_b32 s%d, 0" % S_BUF)
    loopN(R, c, KA6, "p6_loopA", KA6)
    a("s_waitcnt lgkmcnt(0)")
    srd(a, SC, P_WS, WS_PX, 64*4*4*4*4096)
    srd(a, SF, P_WS, WS_FLAG, FLAG_SZ)
    a("v_lshlrev_b32 v15, 4, v1")
    a("s_lshl_b32 s72, s4, 2")
    a("s_add_u32 s72, s72, s5")
    a("s_lshl_b32 s73, s72, 2")
    a("s_add_u32 s73, s73, s82")
    a("s_lshl_b32 s74, s73, 4")
    a("s_add_u32 s74, s74, s3")
    a("s_lshl_b32 s74, s74, 12")
    for q in range(4):
        a("s_cmp_eq_u32 s82, %d" % q)
        a("s_cbranch_scc1 p6_nos%d" % q)
        P = 144 + 16 * (q & 1)
        for t in range(4): pack4(a, P + 4*t, c.ACC[t][2*q], c.ACC[t][2*q + 1])
        a("s_add_u32 s75, s74, %d" % (q * 4 * 4096))
        for t in range(4):
            a("buffer_store_dwordx4 %s, v15, %s, s75 offen offset:%d sc1" % (vr(P + 4*t, 4), S(SC), t * 1024))
        a.label("p6_nos%d" % q)
    for q in range(1, 4):
        a("s_cmp_lg_u32 s82, %d" % q)
        a("s_cbranch_scc1 p6_nom%d" % q)
        for t in range(4):
            for r in range(0, 8, 2):
                a("v_pk_mov_b32 %s, %s, %s op_sel:[0,1]" % (vr(16 + t*32 + r, 2), vr(c.ACC[t][2*q] + r, 2), vr(c.ACC[t][2*q] + r, 2)))
        a.label("p6_nom%d" % q)
    cB = p6_cfgB(c)
    a("s_lshl_b32 s75, s82, 10")
    a("v_add_u32 v%d, s75, v%d" % (c.VWA, c.VWA))
    a("v_add_u32 v%d, s75, v%d" % (c.VWA + 1, c.VWA + 1))
    for r in reads(cB, 0, 0): a(r)
    HR = 120; BR = 136
    srd(a, SA, P_WS, WS_H, SZ_ACT)
    srd(a, SB, P_B2, 0, 2048)
    a("v_and_b32 v10, 15, v1")
    a("v_lshrrev_b32 v11, 4, v1")
    a("v_lshlrev_b32 v12, 4, v10")
    a("v_lshrrev_b32 v13, 1, v11")
    a("v_lshl_add_u32 v12, v13, 9, v12")
    a("v_and_b32 v13, 1, v11")
    a("v_lshl_add_u32 v12, v13, 3, v12")
    a("s_lshl_b32 s70, s4, 2")
    a("s_lshl_b32 s71, s6, 1")
    a("s_add_u32 s70, s70, s71")
    a("s_lshl_b32 s70, s70, 7")
    a("s_lshl_b32 s71, s5, 5")
    a("s_add_u32 s70, s70, s71")
    a("s_lshl_b32 s71, s82, 3")
    a("s_add_u32 s70, s70, s71")
    a("s_lshl_b32 s71, s7, 2")
    a("s_add_u32 s70, s70, s71")
    a("s_lshl_b32 s70, s70, 9")
    for t in range(4):
        for b in range(2):
            a("buffer_load_dwordx2 %s, v12, %s, s70 offen offset:%d sc1" % (vr(HR + (t*2 + b)*2, 2), S(SA), b * 1024 + (t & 1) * 256))
        if t == 1: a("s_add_u32 s70, s70, %d" % (128 * 512))
    a("v_lshlrev_b32 v13, 3, v11")
    a("s_lshl_b32 s70, s5, 9")
    a("s_lshl_b32 s71, s82, 7")
    a("s_add_u32 s70, s70, s71")
    a("s_lshl_b32 s71, s7, 6")
    a("s_add_u32 s70, s70, s71")
    for b in range(2):
        a("buffer_load_dwordx2 %s, v13, %s, s70 offen offset:%d" % (vr(BR + 2*b, 2), S(SB), b * 32))
    N1 = G.p6n1; N2 = G.p6n2; N3 = KB6 - N1 - N2
    loopN(R, cB, N1, "p6_loopB1", N1)
    a("s_waitcnt vmcnt(0)")
    a("s_lshl_b32 s75, s73, 2")
    a("s_add_u32 s75, s75, s3")
    a("s_lshl_b32 s75, s75, 3")
    flag_write(a, 75, FL_X, vtmp=8)
    loopN(R, cB, N2, "p6_loopB2", N2)
    a("v_add_u32 v9, 1, v1")
    a("v_add_u32 v9, s82, v9")
    a("v_and_b32 v9, 3, v9")
    a("s_lshl_b32 s75, s72, 2")
    a("v_add_u32 v9, s75, v9")
    a("v_lshlrev_b32 v9, 2, v9")
    a("v_add_u32 v9, s3, v9")
    a("v_lshlrev_b32 v9, 3, v9")
    a("v_add_u32 v9, %d, v9" % FL_X)
    flag_poll_v(a, 9, 3, vtmp=10)
    PRS = [24, 56, 88]
    for j in range(3):
        a("s_add_u32 s75, s82, %d" % (j + 1))
        a("s_and_b32 s75, s75, 3")
        a("s_lshl_b32 s76, s72, 2")
        a("s_add_u32 s76, s76, s75")
        a("s_lshl_b32 s76, s76, 2")
        a("s_add_u32 s76, s76, s82")
        a("s_lshl_b32 s76, s76, 2")
        a("s_add_u32 s76, s76, s3")
        a("s_lshl_b32 s76, s76, 12")
        for t in range(4):
            a("buffer_load_dwordx4 %s, v15, %s, s76 offen offset:%d sc1" % (vr(PRS[j] + 4*t, 4), S(SC), t * 1024))
    if N3: loopN(R, cB, N3, "p6_loopB3", N3)
    a("s_waitcnt lgkmcnt(0)")
    stamp(a, 13); cstamp(a, 39)
    srd(a, SD, P_OUT, 0, SZ_ACT)
    a("v_and_b32 v10, 15, v1")
    a("v_lshrrev_b32 v11, 4, v1")
    a("v_and_b32 v13, 1, v11")
    a("v_lshl_add_u32 v12, v13, 4, v10")
    a("v_lshlrev_b32 v12, 11, v12")
    a("v_lshrrev_b32 v13, 1, v11")
    a("v_lshl_add_u32 v12, v13, 4, v12")
    a("s_lshl_b32 s70, s4, 7")
    a("s_lshl_b32 s71, s6, 6")
    a("s_add_u32 s70, s70, s71")
    a("s_lshl_b32 s70, s70, 11")
    a("s_lshl_b32 s71, s5, 9")
    a("s_add_u32 s70, s70, s71")
    a("s_lshl_b32 s71, s82, 7")
    a("s_add_u32 s70, s70, s71")
    a("s_lshl_b32 s71, s7, 6")
    a("s_add_u32 s70, s70, s71")
    BF = 144
    for b in range(2):
        for d in range(2):
            a("v_lshlrev_b32 v%d, 16, v%d" % (BF + 4*b + 2*d, BR + 2*b + d))
            a("v_and_b32 v%d, 0xffff0000, v%d" % (BF + 4*b + 2*d + 1, BR + 2*b + d))
    def addbf(acc, x, tp):
        a("v_lshlrev_b32 v%d, 16, v%d" % (tp, x))
        a("v_and_b32 v%d, 0xffff0000, v%d" % (tp + 1, x))
        a("v_pk_add_f32 %s, %s, %s" % (vr(acc, 2), vr(acc, 2), vr(tp, 2)))
    n_ = 0
    for t in range(4):
        for b in range(2):
            acc = cB.ACC[t][b]
            for d in range(2):
                a("v_pk_add_f32 %s, %s, %s" % (vr(acc + 2*d, 2), vr(acc + 2*d, 2), vr(BF + 4*b + 2*d, 2)))
                addbf(acc + 2*d, HR + (t*2 + b)*2 + d, 160 + 2 * (n_ & 7)); n_ += 1
    a("s_waitcnt vmcnt(0)")
    for j in range(3):
        for t in range(4):
            for b in range(2):
                for d in range(2):
                    addbf(cB.ACC[t][b] + 2*d, PRS[j] + 4*t + 2*b + d, 160 + 2 * (n_ & 7)); n_ += 1
    P = 176
    for u in range(2):
        for b in range(2):
            pk = P + 4 * b + 8 * u
            pack_pair(a, cB.ACC[2*u][b], cB.ACC[2*u + 1][b], pk)
            a("buffer_store_dwordx4 %s, v12, %s, s70 offen offset:%d" % (vr(pk, 4), S(SD), b * 32))
        if u == 0: a("s_add_u32 s70, s70, %d" % (32 * 2048))
    stamp(a, 14)

def kv_gather(a, do_z):
    srd(a, SA, P_WS, WS_KVP, 16*16*8192)
    a("v_lshlrev_b32 v8, 4, v1")
    a("s_lshl_b32 s70, s5, 17")
    a("s_lshl_b32 s71, s3, 10")
    a("s_add_u32 s70, s70, s71")
    L = 32
    for m in range(16):
        a("buffer_load_dwordx4 %s, v8, %s, s70 offen sc1" % (vr(L + 4*m, 4), S(SA)))
        if m < 15: a("s_add_u32 s70, s70, 8192")
    if do_z:
        srd(a, SB, P_WS, WS_ZP, 16*16*512)
        a("v_lshlrev_b32 v9, 2, v1")
        a("s_lshl_b32 s72, s5, 13")
        a("s_sub_u32 s73, s3, 6")
        a("s_lshl_b32 s73, s73, 8")
        a("s_add_u32 s72, s72, s73")
        for m in range(16):
            a("buffer_load_dword v%d, v9, %s, s72 offen sc1" % (96 + m, S(SB)))
            if m < 15: a("s_add_u32 s72, s72, 512")
    a("s_mov_b32 s74, 0x00003f80")
    a("s_mov_b32 s75, 0x3f800000")
    A = 16
    for r in range(8): a("v_mov_b32 v%d, 0" % (A + r))
    a("v_mov_b32 v24, s74")
    a("v_mov_b32 v25, s75")
    a("s_waitcnt vmcnt(%d)" % (16 if do_z else 0))
    for m in range(16):
        for d in range(4):
            a("v_dot2c_f32_bf16 v%d, v%d, v24" % (A + 2*d, L + 4*m + d))
            a("v_dot2c_f32_bf16 v%d, v%d, v25" % (A + 2*d + 1, L + 4*m + d))
    for d in range(4): a("v_cvt_pk_bf16_f32 v%d, v%d, v%d" % (28 + d, A + 2*d, A + 2*d + 1))
    a("s_lshl_b32 s71, s3, 10")
    a("s_add_u32 s71, s71, %d" % L1_KVF)
    a("v_add_u32 v8, s71, v8")
    a("ds_write_b128 v8, v[28:31]")
    if do_z:
        a("s_waitcnt vmcnt(0)")
        for m in range(1, 16): a("v_add_f32 v96, v96, v%d" % (96 + m))
        a("v_cvt_pk_bf16_f32 v96, v96, v96")
        a("v_lshlrev_b32 v9, 1, v1")
        a("s_sub_u32 s73, s3, 6")
        a("s_lshl_b32 s73, s73, 7")
        a("s_add_u32 s73, s73, %d" % L1_ZF)
        a("v_add_u32 v9, s73, v9")
        a("ds_write_b16 v9, v96")
    a("s_waitcnt lgkmcnt(0)")

def off_mn(a):
    a("s_lshl_b32 s70, s4, 7")
    a("s_lshl_b32 s71, s5, 3")
    a("s_add_u32 s71, s71, s70")
def off_nm(a):
    a("s_lshl_b32 s70, s5, 7")
    a("s_lshl_b32 s71, s4, 3")
    a("s_add_u32 s71, s71, s70")

def compute_role(a):
    R = Role(a)
    a("s_lshr_b32 s6, s3, 1")
    a("s_and_b32 s7, s3, 1")
    if G.st_touch:
        a("s_lshl_b32 s76, s2, 2")
        a("s_add_u32 s76, s76, s3")
        if G.t1sleep: a("s_sleep %d" % G.t1sleep)
        start_touch(a, 76, 1)
    c = p1_cfg()
    c.tmap(a, c)
    compute_addr(a, c)
    zero_acc(a, c)
    c.pre_loop(a, c)
    R.bar()
    stamp(a, 1); cstamp(a, 32)
    mainloop(R, c)
    stamp(a, 2); cstamp(a, 33)
    p1_epilogue(R, c)
    if G.stop_after <= 1: return R
    c = p3_cfg()
    c.tmap(a, c)
    compute_addr(a, c)
    zero_acc(a, c)
    R.bar()
    R.bar()
    stamp(a, 6); cstamp(a, 34)
    mainloop(R, c)
    stamp(a, 7); cstamp(a, 35)
    p3_epilogue(a, c)
    if G.stop_after > 3: R.bar()
    a("s_waitcnt vmcnt(0)")
    publish_flag(a, 2, off_mn, FL_C)
    stamp(a, 8)
    if G.stop_after <= 3: return R
    c = p4_cfg()
    c.tmap(a, c)
    compute_addr(a, c)
    zero_acc(a, c)
    c.pre_loop(a, c)
    R.bar(); R.bar()
    stamp(a, 9); cstamp(a, 36)
    mainloop(R, c)
    stamp(a, 10); cstamp(a, 37)
    R.bar()
    p4_epilogue(a, c)
    if G.stop_after > 4: R.bar()
    a("s_waitcnt vmcnt(0)")
    publish_flag(a, 3, off_mn, FL_D)
    stamp(a, 11)
    if G.stop_after <= 4: return R
    if G.p5v == 2:
        p6_compute(R)
        return R
    c = p5_cfg()
    c.tmap(a, c)
    compute_addr(a, c)
    zero_acc(a, c)
    R.bar()
    p5_pre(a, c)
    R.bar()
    stamp(a, 12); cstamp(a, 38)
    a("s_cmp_eq_u32 s6, s82")
    if G.p5pre:
        a("s_cselect_b32 s81, %d, %d" % (KKEEP - 2, KSEND))
        mainloop(R, c, niter_sgpr=81, nbar=KKEEP - 2, tail=False)
        a("s_cmp_eq_u32 s6, s82")
        a("s_cbranch_scc0 p5_loopdone")
        p5_fetch_partial(a, c)
        c.name = "p5b"
        a("s_mov_b32 s%d, 0" % S_CNT)
        a.label("p5b_loop")
        stage_body(R, c, count_bar=2)
        a("s_add_u32 s%d, s%d, 1" % (S_CNT, S_CNT))
        a("s_cmp_lt_u32 s%d, 2" % S_CNT)
        a("s_cbranch_scc1 p5b_loop")
        a.label("p5_loopdone")
        a("s_waitcnt lgkmcnt(0)")
    else:
        a("s_cselect_b32 s81, %d, %d" % (KKEEP, KSEND))
        mainloop(R, c, niter_sgpr=81, nbar=KKEEP)
    stamp(a, 13); cstamp(a, 39)
    p5_epilogue(a, c)
    return R

L1_QL = 65536
def p1_epilogue(R, c):
    a = R.a
    a("v_mov_b32 v14, %d" % L_NONCE)
    a("ds_read_b64 v[8:9], v14")
    a("s_mov_b32 s%d, 0x%x" % (S_L2P, LOG2E))
    a("s_mov_b32 s%d, 0x%x" % (S_L2P + 1, LOG2E))
    srd(a, SA, P_WS, WS_KVP, 16*16*8192)
    srd(a, SB, P_WS, WS_ZP, 16*16*512)
    WP = 112
    wphi_frags(a, WP, 7)
    a("v_and_b32 v10, 15, v1")
    a("v_bfe_u32 v12, v1, 2, 2")
    a("v_and_b32 v13, 3, v1")
    a("v_lshlrev_b32 v15, 4, v1")
    a("s_lshl_b32 s70, s3, 13")
    a("s_add_u32 s70, s70, %d" % L1_QL)
    a("v_add_u32 v15, s70, v15")
    for k, (t, b) in enumerate(((2, 0), (2, 1), (3, 0), (3, 1))):
        a("ds_write_b128 v15, %s offset:%d" % (vr(c.ACC[t][b], 4), 2048 + k * 1024))
    R.bar()
    LS = 192
    a("s_lshl_b32 s70, s6, 9")
    a("s_add_u32 s70, s70, %d" % L1_ST)
    a("v_lshlrev_b32 v14, 3, v10")
    a("v_add_u32 v14, s70, v14")
    for t in range(4): a("ds_read_b64 %s, v14 offset:%d" % (vr(LS + 2*t, 2), t * 128))
    a("s_lshl_b32 s71, s7, 7")
    a("s_add_u32 s71, s71, %d" % L1_CS)
    a("v_lshlrev_b32 v13, 4, v11")
    a("v_add_u32 v13, s71, v13")
    for b in range(4): a("ds_read_b128 %s, v13 offset:%d" % (vr(232 + 4*b, 4), (b >> 1) * 256 + (b & 1) * 64))
    a("v_lshlrev_b32 v14, 5, v11")
    a("v_add_u32 v14, s70, v14")
    for t in range(4):
        for hh in range(2): a("ds_read_b128 %s, v14 offset:%d" % (vr(200 + 8*t + 4*hh, 4), t * 128 + hh * 16))
    a("v_lshlrev_b32 v14, 2, v10")
    a("v_add_u32 v14, s71, v14")
    for nt in range(2): a("ds_read_b32 v%d, v14 offset:%d" % (248 + nt, 512 + nt * 64))
    a("v_and_b32 v13, 3, v1")
    a("s_waitcnt lgkmcnt(0)")
    a("v_readfirstlane_b32 s%d, v8" % S_NONCE)
    a("v_readfirstlane_b32 s%d, v9" % (S_NONCE + 1))
    QF = 120; KF = 136; VF = 152
    for t in (2, 3, 0, 1):
        for l in ln_T_list(c.ACC[t][2], 232 + 8, LS + 2*t, 250) + ln_T_list(c.ACC[t][3], 232 + 12, LS + 2*t, 250): a(l)
        pack4(a, KF + 4*t, c.ACC[t][2], c.ACC[t][3])
        if t >= 2: a("ds_write_b128 v15, %s offset:%d" % (vr(KF + 4*t, 4), (t - 2) * 1024))
    for t in (0, 1):
        for l in ln_T_list(c.ACC[t][0], 232, LS + 2*t, 250) + ln_T_list(c.ACC[t][1], 232 + 4, LS + 2*t, 250): a(l)
        pack4(a, QF + 4*t, c.ACC[t][0], c.ACC[t][1])
    a("s_waitcnt lgkmcnt(0)")
    stamp(a, 40)
    R.bar()
    stamp(a, 41)
    for t in range(4):
        for nt in range(2):
            acc = c.ACC[t][4 + nt]
            for r in range(4): a("v_mul_f32 v%d, v%d, v%d" % (250 + r, 200 + 8*t + 2*r + 1, 248 + nt))
            for r in range(4): a("v_fma_f32 v%d, v%d, v%d, v%d" % (acc + r, acc + r, 200 + 8*t + 2*r, 250 + r))
    for u in range(2):
        for nt in range(2):
            pack4(a, VF + (u*2 + nt)*4, c.ACC[2*u][4 + nt], c.ACC[2*u + 1][4 + nt])
    WA = 8; RA = 4
    pht_write_addr(a, 3, WA)
    a("s_lshl_b32 s70, s3, 13")
    a("v_lshl_add_u32 v14, v11, 2, v12")
    a("v_bfe_u32 v15, v14, 1, 2")
    a("v_bfe_u32 v2, v14, 2, 1")
    a("v_lshl_or_b32 v15, v2, 2, v15")
    a("v_xor_b32 v15, v15, v13")
    a("v_lshlrev_b32 v14, 6, v14")
    a("v_lshl_add_u32 v14, v15, 3, v14")
    a("v_add_u32 v%d, s70, v14" % RA)
    a("v_xor_b32 v%d, 32, v%d" % (RA + 1, RA))
    ONES = 168
    for r in range(4): a("v_mov_b32 v%d, 0x3f803f80" % (ONES + r))
    PHK = 220
    stamp(a, 42)
    feature_map2(a, WP, [KF, KF + 4], [(PHK, PHK + 4), (PHK + 8, PHK + 12)])
    for t in range(2):
        for sg in range(2):
            for b in range(2):
                a("ds_write_b64 v%d, %s offset:%d" % (WA + b, vr(PHK + 8*t + 4*sg + 2*b, 2), sg * 4096 + t * 1024))
    a("s_waitcnt lgkmcnt(0)")
    stamp(a, 43)
    R.bar()
    KV = 172; Z = 204; PH = 80
    k = 0; frs = []
    for u in range(2):
        for sg in range(2):
            for b in range(2):
                ph = PH + 4*k; k += 1
                for e in range(2):
                    a("ds_read_b64_tr_b16 %s, v%d offset:%d" % (vr(ph + 2*e, 2), RA + b, sg * 4096 + u * 2048 + e * 1024))
                frs.append((u, sg, b, ph))
    for n_, (u, sg, b, ph) in enumerate(frs):
        if n_ in (0, 4): a("s_waitcnt lgkmcnt(%d)" % (8 if n_ == 0 else 0))
        for nt in range(2):
            d = KV + ((sg*2 + b)*2 + nt)*4
            MF(a, d, ph, VF + (u*2 + nt)*4, None if u == 0 else d)
        d = Z + (sg*2 + b)*4
        MF(a, d, ph, ONES, None if u == 0 else d)
    stamp(a, 44)
    a("v_lshlrev_b32 v12, 4, v1")
    a("s_lshl_b32 s70, s3, 13")
    a("s_add_u32 s70, s70, 32768")
    a("v_add_u32 v13, s70, v12")
    a("s_xor_b32 s71, s3, 2")
    a("s_lshl_b32 s71, s71, 13")
    a("s_add_u32 s71, s71, 32768")
    a("v_add_u32 v14, s71, v12")
    a("s_cmp_eq_u32 s6, 0")
    a("s_cbranch_scc1 p1e_i0")
    nb0 = R.nb
    for keep, lab in ((1, None), (0, "p1e_i0")):
        if lab: a.label(lab)
        send = 1 - keep
        for q in range(4):
            a("ds_write_b128 v13, %s offset:%d" % (vr(KV + send*16 + 4*q, 4), q * 1024))
        for q in range(2):
            a("ds_write_b128 v13, %s offset:%d" % (vr(Z + send*8 + 4*q, 4), 4096 + q * 1024))
        a("s_waitcnt lgkmcnt(0)")
        R.nb = nb0
        R.bar()
        X = 80
        for q in range(4):
            a("ds_read_b128 %s, v14 offset:%d" % (vr(X + 4*q, 4), q * 1024))
        for q in range(2):
            a("ds_read_b128 %s, v14 offset:%d" % (vr(X + 16 + 4*q, 4), 4096 + q * 1024))
        a("s_lshl_b32 s70, s5, 4")
        a("s_add_u32 s70, s70, s4")
        a("s_lshl_b32 s72, s70, 9")
        a("s_lshl_b32 s70, s70, 3")
        a("s_lshl_b32 s71, s7, 2")
        a("s_add_u32 s70, s70, s71")
        a("s_add_u32 s70, s70, %d" % (keep * 2))
        a("s_lshl_b32 s70, s70, 10")
        a("s_lshl_b32 s71, s7, 8")
        a("s_add_u32 s72, s72, s71")
        a("s_add_u32 s72, s72, %d" % (keep * 128))
        a("v_lshlrev_b32 v15, 5, v11")
        a("s_waitcnt lgkmcnt(0)")
        for r in range(0, 16, 2): a("v_pk_add_f32 %s, %s, %s" % (vr(KV + keep*16 + r, 2), vr(KV + keep*16 + r, 2), vr(X + r, 2)))
        for r in range(0, 8, 2): a("v_pk_add_f32 %s, %s, %s" % (vr(Z + keep*8 + r, 2), vr(Z + keep*8 + r, 2), vr(X + 16 + r, 2)))
        for nt in range(2):
            pack4(a, X + 4*nt, KV + (keep*4 + 0 + nt)*4, KV + (keep*4 + 2 + nt)*4)
            a("buffer_store_dwordx4 %s, v12, %s, s70 offen offset:%d sc1" % (vr(X + 4*nt, 4), S(SA), nt * 1024))
        a("s_mov_b32 exec_lo, 0x00010001")
        a("s_mov_b32 exec_hi, 0x00010001")
        for b in range(2):
            a("buffer_store_dwordx4 %s, v15, %s, s72 offen offset:%d sc1" % (vr(Z + keep*8 + 4*b, 4), S(SB), b * 16))
        a("s_mov_b64 exec, -1")
        if keep == 1: a("s_branch p1e_done")
    a.label("p1e_done")
    stamp(a, 45)
    PHQ = 220
    feature_map2(a, WP, [QF, QF + 4], [(PHQ, PHQ + 4), (PHQ + 8, PHQ + 12)])
    a("s_waitcnt vmcnt(0)")
    stamp(a, 46)
    publish_flag(a, 0, off_nm, FL_A)
    stamp(a, 3)
    R.bar()
    stamp(a, 4)
    kv_gather(a, False)
    R.bar()
    o_part(a, PHQ, 0, 6, 7, R)
    stamp(a, 5)
    if G.stop_after > 1: R.bar()
    a("s_waitcnt vmcnt(0)")
    publish_flag(a, 1, lambda a: a("s_mov_b32 s71, s88"), FL_B, n=8)

def aux_q_part1(a, R):
    a("s_sub_u32 s77, s3, 4")
    a("s_and_b32 s93, s77, 1")
    a("s_lshr_b32 s92, s77, 1")
    WP = 112; KF = 160; QR = 80; LS = 96; CS = 104
    a("v_lshlrev_b32 v5, 4, v1")
    a("s_lshl_b32 s70, s77, 13")
    a("s_add_u32 s70, s70, %d" % L1_QL)
    a("v_add_u32 v5, s70, v5")
    for t in range(2): a("ds_read_b128 %s, v5 offset:%d" % (vr(KF + 4*t, 4), t * 1024))
    wphi_frags(a, WP, 93)
    a("s_mov_b32 s%d, 0x%x" % (S_L2P, LOG2E))
    a("s_mov_b32 s%d, 0x%x" % (S_L2P + 1, LOG2E))
    a("v_and_b32 v10, 15, v1")
    WA = 8
    pht_write_addr(a, 77, WA)
    a("s_waitcnt lgkmcnt(0)")
    PHK = 144
    feature_map2(a, WP, [KF, KF + 4], [(PHK, PHK + 4), (PHK + 8, PHK + 12)])
    for t in range(2):
        for sg in range(2):
            for b in range(2):
                a("ds_write_b64 v%d, %s offset:%d" % (WA + b, vr(PHK + 8*t + 4*sg + 2*b, 2), sg * 4096 + (2 + t) * 1024))
    for k in range(4): a("ds_read_b128 %s, v5 offset:%d" % (vr(QR + 4*k, 4), 2048 + k * 1024))
    a("s_lshl_b32 s70, s92, 9")
    a("s_add_u32 s70, s70, %d" % L1_ST)
    a("v_lshlrev_b32 v14, 3, v10")
    a("v_add_u32 v14, s70, v14")
    for t in range(2): a("ds_read_b64 %s, v14 offset:%d" % (vr(LS + 2*t, 2), (2 + t) * 128))
    a("s_lshl_b32 s71, s93, 7")
    a("s_add_u32 s71, s71, %d" % L1_CS)
    a("v_lshlrev_b32 v14, 4, v11")
    a("v_add_u32 v14, s71, v14")
    for b in range(2): a("ds_read_b128 %s, v14 offset:%d" % (vr(CS + 4*b, 4), b * 64))
    a("v_mov_b32 v14, %d" % L_NONCE)
    a("ds_read_b64 v[6:7], v14")
    a("s_waitcnt lgkmcnt(0)")
    R.bar()
    R.bar()
    a("v_readfirstlane_b32 s%d, v6" % S_NONCE)
    a("v_readfirstlane_b32 s%d, v7" % (S_NONCE + 1))
    QF = 160
    for t in range(2):
        for l in ln_T_list(QR + 8*t, CS, LS + 2*t, 100) + ln_T_list(QR + 8*t + 4, CS + 4, LS + 2*t, 100): a(l)
        pack4(a, QF + 4*t, QR + 8*t, QR + 8*t + 4)
    feature_map2(a, WP, [QF, QF + 4], [(128, 132), (136, 140)])

def aux_q_part2(a):
    o_part(a, 128, 2, 92, 93, None)

def p3_epilogue(a, c):
    srd(a, SA, P_WS, WS_H, SZ_ACT)
    srd(a, SB, P_WS, WS_HSTP, 32*2048*8)
    a("v_and_b32 v10, 15, v1")
    a("v_lshrrev_b32 v11, 4, v1")
    a("v_bfe_u32 v12, v10, 1, 3")
    a("v_lshrrev_b32 v13, 1, v11")
    a("s_lshl_b32 s70, s7, 2")
    a("v_add_u32 v13, s70, v13")
    a("v_xor_b32 v12, v12, v13")
    a("s_lshl_b32 s70, s6, 13")
    a("s_add_u32 s70, s70, %d" % L3_XT)
    a("v_lshlrev_b32 v13, 7, v10")
    a("v_and_b32 v14, 1, v11")
    a("v_lshl_add_u32 v13, v14, 3, v13")
    a("v_add_u32 v13, s70, v13")
    a("v_lshl_add_u32 v96, v12, 4, v13")
    a("v_xor_b32 v12, 2, v12")
    a("v_lshl_add_u32 v97, v12, 4, v13")
    XR = 100
    for t in range(4):
        for b in range(2):
            a("ds_read_b64 %s, v%d offset:%d" % (vr(XR + (t*2 + b)*2, 2), 96 + b, t * 2048))
    a("v_lshlrev_b32 v15, 4, v1")
    a("s_lshl_b32 s70, s4, 2")
    a("s_lshl_b32 s71, s6, 1")
    a("s_add_u32 s70, s70, s71")
    a("s_mov_b32 s72, s70")
    a("s_lshl_b32 s70, s70, 7")
    a("s_lshl_b32 s71, s5, 3")
    a("s_add_u32 s70, s70, s71")
    a("s_lshl_b32 s71, s7, 2")
    a("s_add_u32 s70, s70, s71")
    a("s_lshl_b32 s70, s70, 9")
    a("s_lshl_b32 s71, s5, 1")
    a("s_add_u32 s71, s71, s7")
    a("s_lshl_b32 s71, s71, 11")
    a("s_lshl_b32 s73, s72, 5")
    a("s_add_u32 s71, s71, s73")
    a("s_lshl_b32 s71, s71, 3")
    a("v_lshlrev_b32 v9, 3, v10")
    a("v_and_b32 v14, 1, v11")
    a("v_lshl_add_u32 v9, v14, 2, v9")
    a("v_lshrrev_b32 v14, 1, v11")
    a("v_lshl_add_u32 v9, v14, 7, v9")
    a("v_and_b32 v14, 1, v11")
    a("v_cmp_eq_u32 s[74:75], 0, v14")
    a("v_cmp_gt_u32 s[76:77], 2, v11")
    a("s_waitcnt lgkmcnt(0)")
    St = 120; P = 128
    for u in range(2):
        for tt in range(2):
            t = 2*u + tt
            for b in range(2):
                acc = c.ACC[t][b]
                for d in range(2):
                    x = XR + (t*2 + b)*2 + d
                    tp = 136 + 2 * (b * 2 + d)
                    a("v_lshlrev_b32 v%d, 16, v%d" % (tp, x))
                    a("v_and_b32 v%d, 0xffff0000, v%d" % (tp + 1, x))
                    a("v_pk_add_f32 %s, %s, %s" % (vr(acc + 2*d, 2), vr(acc + 2*d, 2), vr(tp, 2)))
            s1 = St + 2*tt; s2 = s1 + 1
            A0 = c.ACC[t][0]
            a("v_pk_add_f32 v[144:145], %s, %s" % (vr(A0, 2), vr(A0 + 2, 2)))
            a("v_pk_mul_f32 v[146:147], %s, %s" % (vr(A0, 2), vr(A0, 2)))
            a("v_pk_fma_f32 v[146:147], %s, %s, v[146:147]" % (vr(A0 + 2, 2), vr(A0 + 2, 2)))
            for r in (4, 6):
                a("v_pk_add_f32 v[144:145], v[144:145], %s" % vr(A0 + r, 2))
                a("v_pk_fma_f32 v[146:147], %s, %s, v[146:147]" % (vr(A0 + r, 2), vr(A0 + r, 2)))
            a("v_add_f32 v%d, v144, v145" % s1)
            a("v_add_f32 v%d, v146, v147" % s2)
            xq(a, "v_add_f32", s1, 124)
            xq(a, "v_add_f32", s2, 125)
        a("v_cndmask_b32 v124, v%d, v%d, s[74:75]" % (St + 1, St))
        a("v_cndmask_b32 v125, v%d, v%d, s[74:75]" % (St + 3, St + 2))
        a("v_cndmask_b32 v124, v125, v124, s[76:77]")
        a("buffer_store_dword v124, v9, %s, s71 offen sc1" % S(SB))
        for b in range(2):
            pack_pair(a, c.ACC[2*u][b], c.ACC[2*u + 1][b], P + 4*b)
            a("buffer_store_dwordx4 %s, v15, %s, s70 offen offset:%d sc1" % (vr(P + 4*b, 4), S(SA), b * 1024))
        if u == 0:
            a("s_add_u32 s70, s70, %d" % (128 * 512))
            a("s_add_u32 s71, s71, %d" % (32 * 8))

def p4_epilogue(a, c):
    srd(a, SA, P_WS, WS_F, SZ_F)
    a("v_and_b32 v10, 15, v1")
    a("v_lshrrev_b32 v11, 4, v1")
    a("s_mul_i32 s70, s7, 448")
    a("s_add_u32 s70, s70, %d" % L4_TAB)
    a("v_lshlrev_b32 v12, 4, v11")
    a("v_add_u32 v12, s70, v12")
    a("s_lshl_b32 s70, s6, 9")
    a("s_add_u32 s70, s70, %d" % (L4_TAB + 2048))
    a("v_lshlrev_b32 v13, 3, v10")
    a("v_add_u32 v13, s70, v13")
    ST = 128
    for t in range(4):
        a("ds_read_b64 %s, v13 offset:%d" % (vr(ST + 2*t, 2), t * 128))
    a("v_lshlrev_b32 v15, 4, v1")
    a("s_lshl_b32 s70, s4, 2")
    a("s_lshl_b32 s71, s6, 1")
    a("s_add_u32 s70, s70, s71")
    a("s_mul_i32 s70, s70, 448")
    a("s_mul_i32 s71, s5, 28")
    a("s_add_u32 s70, s70, s71")
    a("s_mul_i32 s71, s7, 14")
    a("s_add_u32 s70, s70, s71")
    a("s_lshl_b32 s70, s70, 9")
    a("s_add_u32 s71, s70, %d" % (448 * 512))
    TB = 136
    for b in range(7):
        a("ds_read_b128 %s, v12 offset:%d" % (vr(TB + 8*b, 4), 64 * b))
        a("ds_read_b128 %s, v12 offset:%d" % (vr(TB + 8*b + 4, 4), 1024 + 64 * b))
    a("v_add_u32 v14, 4096, v15")
    a("s_waitcnt lgkmcnt(0)")
    T = 192; P = 208
    for b in range(7):
        cs = TB + 8*b; b1 = cs + 4
        for t in range(4):
            tmp = T + 4*t
            for r in (0, 2):
                a("v_pk_fma_f32 %s, %s, %s, %s op_sel:[0,1,0] op_sel_hi:[1,1,1]" % (vr(tmp + r, 2), vr(cs + r, 2), vr(ST + 2*t, 2), vr(b1 + r, 2)))
        for t in range(4):
            acc = c.ACC[t][b]; tmp = T + 4*t
            for r in (0, 2):
                a("v_pk_fma_f32 %s, %s, %s, %s op_sel:[0,0,0] op_sel_hi:[1,0,1]" % (vr(acc + r, 2), vr(acc + r, 2), vr(ST + 2*t, 2), vr(tmp + r, 2)))
        for t in range(4):
            acc = c.ACC[t][b]
            for r in range(4): a("v_max_f32 v%d, 0, v%d" % (acc + r, acc + r))
        for t in range(4):
            acc = c.ACC[t][b]
            for r in (0, 2): a("v_pk_mul_f32 %s, %s, %s" % (vr(acc + r, 2), vr(acc + r, 2), vr(acc + r, 2)))
        for u in range(2):
            pk = P + 4*u + 8*(b & 1)
            pack_pair(a, c.ACC[2*u][b], c.ACC[2*u + 1][b], pk)
            off = b * 1024
            so = "s70" if u == 0 else "s71"
            if off < 4096:
                a("buffer_store_dwordx4 %s, v15, %s, %s offen offset:%d sc1" % (vr(pk, 4), S(SA), so, off))
            else:
                a("buffer_store_dwordx4 %s, v14, %s, %s offen offset:%d sc1" % (vr(pk, 4), S(SA), so, off - 4096))

HR5 = 144; BR5 = 176
def p5_pre(a, c):
    srd(a, SA, P_WS, WS_H, SZ_ACT)
    srd(a, SB, P_B2, 0, 2048)
    a("v_and_b32 v10, 15, v1")
    a("v_lshrrev_b32 v11, 4, v1")
    a("v_lshlrev_b32 v12, 4, v10")
    a("v_lshrrev_b32 v13, 1, v11")
    a("v_lshl_add_u32 v12, v13, 9, v12")
    a("v_and_b32 v13, 1, v11")
    a("v_lshl_add_u32 v12, v13, 3, v12")
    a("s_lshl_b32 s70, s4, 2")
    a("s_lshl_b32 s71, s6, 1")
    a("s_add_u32 s70, s70, s71")
    a("s_lshl_b32 s70, s70, 7")
    a("s_lshl_b32 s71, s5, 4")
    a("s_add_u32 s70, s70, s71")
    a("s_lshl_b32 s71, s7, 3")
    a("s_add_u32 s70, s70, s71")
    a("s_lshl_b32 s70, s70, 9")
    a("s_cmp_eq_u32 s6, s82")
    a("s_cbranch_scc0 p5pre_skip")
    for t in range(4):
        for b in range(4):
            a("buffer_load_dwordx2 %s, v12, %s, s70 offen offset:%d sc1" % (vr(HR5 + (t*4 + b)*2, 2), S(SA), b * 1024 + (t & 1) * 256))
        if t == 1: a("s_add_u32 s70, s70, %d" % (128 * 512))
    a("v_lshlrev_b32 v13, 3, v11")
    a("s_lshl_b32 s70, s5, 8")
    a("s_lshl_b32 s71, s7, 7")
    a("s_add_u32 s70, s70, s71")
    for b in range(4):
        a("buffer_load_dwordx2 %s, v13, %s, s70 offen offset:%d" % (vr(BR5 + 2*b, 2), S(SB), b * 32))
    a.label("p5pre_skip")

def p5_fetch_partial(a, c):
    srd(a, SC, P_WS, WS_PX, 128*2*2*16384)
    srd(a, SF, P_WS, WS_FLAG, FLAG_SZ)
    a("s_lshl_b32 s72, s4, 3")
    a("s_add_u32 s72, s72, s5")
    a("s_lshl_b32 s73, s72, 2")
    a("s_xor_b32 s74, s82, 1")
    a("s_lshl_b32 s74, s74, 1")
    a("s_add_u32 s73, s73, s74")
    a("s_add_u32 s73, s73, s7")
    a("s_lshl_b32 s74, s73, 3")
    flag_poll(a, 74, FL_X, 1, vtmp=8)
    a("v_lshlrev_b32 v15, 4, v1")
    a("s_lshl_b32 s74, s73, 14")
    for q in range(16):
        if q and q % 4 == 0: a("s_add_u32 s74, s74, 4096")
        a("buffer_load_dwordx4 %s, v15, %s, s74 offen offset:%d sc1" % (vr(184 + 4*q, 4), S(SC), (q % 4) * 1024))

def p5_epilogue(a, c):
    srd(a, SC, P_WS, WS_PX, 128*2*2*16384)
    srd(a, SD, P_OUT, 0, SZ_ACT)
    srd(a, SF, P_WS, WS_FLAG, FLAG_SZ)
    a("s_lshl_b32 s72, s4, 3")
    a("s_add_u32 s72, s72, s5")
    a("v_lshlrev_b32 v15, 4, v1")
    a("s_cmp_eq_u32 s6, s82")
    a("s_cbranch_scc1 p5_keep")
    a("s_lshl_b32 s73, s72, 2")
    a("s_lshl_b32 s74, s82, 1")
    a("s_add_u32 s73, s73, s74")
    a("s_add_u32 s73, s73, s7")
    a("s_lshl_b32 s74, s73, 14")
    for q in range(16):
        if q and q % 4 == 0: a("s_add_u32 s74, s74, 4096")
        a("buffer_store_dwordx4 %s, v15, %s, s74 offen offset:%d sc1" % (vr(16 + 4*q, 4), S(SC), (q % 4) * 1024))
    for k in range(KSEND, KKEEP):
        a("s_barrier")
        if k == KSEND + 3:
            a("s_waitcnt vmcnt(0)")
            a("s_lshl_b32 s74, s73, 3")
            flag_write(a, 74, FL_X)
    a("s_endpgm")
    a.label("p5_keep")
    PR = 184
    if not G.p5pre: p5_fetch_partial(a, c)
    a("v_and_b32 v10, 15, v1")
    a("v_lshrrev_b32 v11, 4, v1")
    a("v_and_b32 v13, 1, v11")
    a("v_lshl_add_u32 v12, v13, 4, v10")
    a("v_lshlrev_b32 v12, 11, v12")
    a("v_lshrrev_b32 v13, 1, v11")
    a("v_lshl_add_u32 v12, v13, 4, v12")
    a("s_lshl_b32 s70, s4, 7")
    a("s_lshl_b32 s71, s6, 6")
    a("s_add_u32 s70, s70, s71")
    a("s_lshl_b32 s70, s70, 11")
    a("s_lshl_b32 s71, s5, 8")
    a("s_add_u32 s70, s70, s71")
    a("s_lshl_b32 s71, s7, 7")
    a("s_add_u32 s70, s70, s71")
    BF = 80
    a("s_waitcnt vmcnt(16)")
    for b in range(4):
        for d in range(2):
            a("v_lshlrev_b32 v%d, 16, v%d" % (BF + 4*b + 2*d, BR5 + 2*b + d))
            a("v_and_b32 v%d, 0xffff0000, v%d" % (BF + 4*b + 2*d + 1, BR5 + 2*b + d))
    for t in range(4):
        for b in range(4):
            acc = c.ACC[t][b]
            for d in range(2):
                x = HR5 + (t*4 + b)*2 + d
                tp = 112 + 2 * ((b * 2 + d) & 7)
                a("v_lshlrev_b32 v%d, 16, v%d" % (tp, x))
                a("v_and_b32 v%d, 0xffff0000, v%d" % (tp + 1, x))
                a("v_pk_add_f32 %s, %s, %s" % (vr(acc + 2*d, 2), vr(acc + 2*d, 2), vr(BF + 4*b + 2*d, 2)))
                a("v_pk_add_f32 %s, %s, %s" % (vr(acc + 2*d, 2), vr(acc + 2*d, 2), vr(tp, 2)))
    a("s_waitcnt vmcnt(0)")
    for r in range(0, 64, 2): a("v_pk_add_f32 %s, %s, %s" % (vr(16 + r, 2), vr(16 + r, 2), vr(PR + r, 2)))
    P = 96
    for u in range(2):
        for b in range(4):
            pk = P + 4 * (b & 1) + 8 * u
            pack_pair(a, c.ACC[2*u][b], c.ACC[2*u + 1][b], pk)
            a("buffer_store_dwordx4 %s, v12, %s, s70 offen offset:%d" % (vr(pk, 4), S(SD), b * 32))
        if u == 0: a("s_add_u32 s70, s70, %d" % (32 * 2048))
    stamp(a, 14)

def loader_role(a):
    R = Role(a)
    a("s_sub_u32 s7, s3, 4")
    c = p1_cfg()
    loader_phase(R, c)
    R.bar()
    R.bar()
    aux_q_part1(a, R)
    R.bar()
    kv_gather(a, False)
    R.bar()
    aux_q_part2(a)
    def pubB(a, nyounger):
        a("s_waitcnt vmcnt(%d)" % nyounger)
        publish_flag(a, 1, lambda a: a("s_mov_b32 s71, s88"), FL_B, n=8)
    if G.stop_after <= 1:
        pubB(a, 0); return R
    a("s_sub_u32 s7, s3, 4")
    c3 = p3_cfg(); c3.pre_t_hook = pubB
    loader_phase(R, c3)
    if G.stop_after <= 3: return R
    loader_phase(R, p4_cfg())
    if G.stop_after <= 4:
        R.bar(); return R
    c5 = p6_cfg() if G.p5v == 2 else p5_cfg()
    c5.pre_s_bars = 1
    loader_phase(R, c5)
    return R

def bar_loop(R, n, name):
    a = R.a
    a("s_mov_b32 s%d, 0" % S_CNT)
    a.label(name)
    R.bar(n)
    a("s_add_u32 s%d, s%d, 1" % (S_CNT, S_CNT))
    a("s_cmp_lt_u32 s%d, %d" % (S_CNT, n))
    a("s_cbranch_scc1 %s" % name)


def touches(a, items, vbase, SR=SX):
    a("s_lshl_b32 s70, s2, 1")
    a("s_add_u32 s70, s70, s7")
    a("s_lshl_b32 s70, s70, 13")
    a("v_lshlrev_b32 v16, 7, v1")
    k = 0
    for (p, nbytes) in items:
        srd(a, SR, p, 0, nbytes)
        n = (nbytes // 8192 + 511) // 512
        a("s_mov_b32 s71, s70")
        for i in range(n):
            a("buffer_load_dword v%d, v16, %s, s71 offen" % (vbase + k, S(SR))); k += 1
            if i < n - 1: a("s_add_u32 s71, s71, %d" % (512 * 8192))
    return k

_cpf = [0]
def code_prefetch(a, vtmp):
    _cpf[0] += 1; k = _cpf[0]
    a("s_getpc_b64 s[72:73]")
    a.label("kp_pc%d" % k)
    a("s_sub_u32 s72, s72, kp_pc%d-kp_kernel" % k)
    a("s_subb_u32 s73, s73, 0")
    a("v_lshlrev_b32 v%d, 7, v1" % vtmp)
    a("s_mov_b32 s75, kp_codeend-kp_kernel")
    NL = 8
    for i in range(NL):
        a("v_cmp_gt_u32 vcc, s75, v%d" % vtmp)
        a("v_cndmask_b32 v%d, 0, v%d, vcc" % (vtmp + 1, vtmp))
        a("global_load_dword v%d, v%d, s[72:73]" % (vtmp + 2, vtmp + 1))
        if i < NL - 1: a("v_add_u32 v%d, 8192, v%d" % (vtmp, vtmp))
    return NL

def start_touch(a, wid_sgpr, batch):
    a("v_lshlrev_b32 v16, 7, v1")
    if batch == 1:
        a("s_cmp_lt_u32 s%d, 512" % wid_sgpr)
        a("s_cbranch_scc0 st_w_%d" % wid_sgpr)
        srd(a, SX, P_X, 0, SZ_ACT)
        a("s_lshl_b32 s71, s%d, 13" % wid_sgpr)
        a("s_branch st_d_%d" % wid_sgpr)
        a.label("st_w_%d" % wid_sgpr)
        srd(a, SX, P_WQKV, 0, 288 * 8192)
        a("s_sub_u32 s71, s%d, 512" % wid_sgpr)
        a("s_lshl_b32 s71, s71, 13")
        a.label("st_d_%d" % wid_sgpr)
    else:
        srd(a, SX, P_WQKV, 0, 1024*3072*2)
        a("s_add_u32 s71, s%d, 288" % wid_sgpr)
        a("s_lshl_b32 s71, s71, 13")
    a("buffer_load_dword v254, v16, %s, s71 offen" % S(SX))


def call(a, name):
    a("s_getpc_b64 s[90:91]")
    a.label("c_%s_%d" % (name, len(a.lines)))
    lab = "c_%s_%d" % (name, len(a.lines) - 1)
    a("s_add_u32 s90, s90, %s-%s" % (name, lab))
    a("s_addc_u32 s91, s91, 0")
    a("s_swappc_b64 s[88:89], s[90:91]")

def minmax_list(regs, acc):
    L = []
    L.append("v_min3_u32 v%d, v%d, v%d, v%d" % (acc, regs[0], regs[1], regs[2]))
    L.append("v_max3_u32 v%d, v%d, v%d, v%d" % (acc + 1, regs[0], regs[1], regs[2]))
    k = 3
    while k < len(regs):
        r2 = regs[k + 1] if k + 1 < len(regs) else regs[k]
        L.append("v_min3_u32 v%d, v%d, v%d, v%d" % (acc, acc, regs[k], r2))
        L.append("v_max3_u32 v%d, v%d, v%d, v%d" % (acc + 1, acc + 1, regs[k], r2))
        k += 2
    return L

def helper_subs(a):
    a.label("hsub_tag1")
    for l in minmax_list([32 + 4*k + 2 for k in range(16)] + [96 + 4*k + 3 for k in range(8)], 160): a(l)
    a("s_setpc_b64 s[88:89]")
    a.label("hsub_sum1")
    for k in range(1, 16): a("v_pk_add_f32 v[32:33], v[32:33], %s" % vr(32 + 4*k, 2))
    for k in range(1, 8):
        a("v_pk_add_f32 v[96:97], v[96:97], %s" % vr(96 + 4*k, 2))
        a("v_add_f32 v98, v98, v%d" % (96 + 4*k + 2))
    a("s_setpc_b64 s[88:89]")
    a.label("hsub_fin")
    a("v_mul_f32 v32, 0x3a800000, v32")
    a("v_mul_f32 v33, 0x3a800000, v33")
    a("v_fma_f32 v33, -v32, v32, v33")
    a("v_max_f32 v33, 0, v33")
    a("v_add_f32 v33, 0x3727c5ac, v33")
    a("v_rsq_f32 v40, v33")
    a("s_nop 0")
    a("v_mul_f32 v41, v32, v40")
    a("v_sub_f32 v41, 0, v41")
    a("s_setpc_b64 s[88:89]")
    a.label("hsub_st4")
    for p in range(1, 32): a("v_pk_add_f32 v[32:33], v[32:33], %s" % vr(32 + 2*p, 2))
    a("s_setpc_b64 s[88:89]")
    a.label("hsub_tag4")
    for l in minmax_list([104 + 4*k + 3 for k in range(16)], 170): a(l)
    a("s_setpc_b64 s[88:89]")
    a.label("hsub_sum4")
    for k in range(1, 16):
        a("v_pk_add_f32 v[104:105], v[104:105], %s" % vr(104 + 4*k, 2))
        a("v_add_f32 v106, v106, v%d" % (104 + 4*k + 2))
    a("s_setpc_b64 s[88:89]")

def helper_p1(R):
    a = R.a
    if G.hstage:
        c = p1_cfg()
        c.srds_loader(a, c)
        loader_setup(a, c)
        rot_begin(a, c)
        IX(a, c, 2 * c.SS, k=2); IW(a, c, 2 * c.SS, k=2)
    if G.st_touch:
        a("s_lshl_b32 s75, s2, 1")
        a("s_add_u32 s75, s75, s7")
        a("s_sleep %d" % G.t2sleep)
        start_touch(a, 75, 2)
    if G.early_touch:
        E0 = G.early_touch
        a("s_lshl_b32 s75, s2, 1")
        a("s_add_u32 s75, s75, s7")
        a("s_cmp_lt_u32 s75, 128")
        a("s_cbranch_scc0 et_w")
        srd(a, SX, P_X, 0, SZ_ACT)
        a("v_lshrrev_b32 v16, 2, v1")
        a("v_lshlrev_b32 v16, 11, v16")
        a("v_and_b32 v17, 3, v1")
        a("v_lshl_add_u32 v16, v17, 7, v16")
        a("s_lshl_b32 s71, s75, 15")
        a("s_add_u32 s71, s71, %d" % (E0 * 128))
        a("s_branch et_d")
        a.label("et_w")
        srd(a, SX, P_WQKV, 0, (E0 + 4) * 64 * 6144)
        a("v_lshlrev_b32 v16, 7, v1")
        a("s_sub_u32 s71, s75, 128")
        a("s_lshl_b32 s71, s71, 13")
        a("s_add_u32 s71, s71, %d" % (E0 * 64 * 6144))
        a.label("et_d")
        a("buffer_load_dword v253, v16, %s, s71 offen" % S(SX))
    if G.tlb_warm:
        srd(a, SX, P_WS, 0, 0x3000000)
        a("v_lshlrev_b32 v16, 21, v1")
        a("v_add_u32 v16, 0x1fff80, v16")
        a("buffer_load_dword v253, v16, %s, 0 offen" % S(SX))
        srd(a, SX, P_OUT, 0, SZ_ACT)
        a("v_lshlrev_b32 v16, 20, v1")
        a("buffer_load_dword v252, v16, %s, 0 offen" % S(SX))
    if G.code_pf:
        a("s_cmp_lg_u32 s7, 1")
        a("s_cbranch_scc1 h_nocpf")
        code_prefetch(a, 30)
        a.label("h_nocpf")
    srd(a, SX, P_DBG, 0, 256)
    a("s_or_b32 s70, s2, s7")
    a("s_cmp_lg_u32 s70, 0")
    a("s_cbranch_scc1 h_nononce")
    a("s_memrealtime s[70:71]")
    a("s_waitcnt lgkmcnt(0)")
    a("s_or_b32 s70, s70, 1")
    a("s_xor_b32 s71, s71, 0x5bd1e995")
    a("v_mov_b32 v20, s70")
    a("v_mov_b32 v21, s71")
    a("v_mov_b32 v22, 0")
    a("s_mov_b64 exec, 1")
    a("buffer_store_dwordx2 v[20:21], v22, %s, 0 offen sc1" % S(SX))
    a("s_mov_b64 exec, -1")
    a.label("h_nononce")
    if G.dry:
        for nm in ("hsub_tag1", "hsub_sum1", "hsub_fin", "hsub_st4", "hsub_tag4", "hsub_sum4"): call(a, nm)
    a("v_mov_b32 v22, 0")
    R.bar()
    a("buffer_load_dwordx2 v[20:21], v22, %s, 0 offen sc1" % S(SX))
    R.bar(); R.bar()
    a("s_mov_b32 s80, 0")
    a.label("h_npoll")
    a("s_waitcnt vmcnt(0)")
    a("v_readfirstlane_b32 s%d, v20" % S_NONCE)
    a("v_readfirstlane_b32 s%d, v21" % (S_NONCE + 1))
    a("s_cmp_lg_u32 s%d, 0" % S_NONCE)
    a("s_cbranch_scc1 h_nok")
    a("buffer_load_dwordx2 v[20:21], v22, %s, 0 offen sc1" % S(SX))
    a("s_add_u32 s80, s80, 1")
    a("s_cmp_lt_u32 s80, 0x40000")
    a("s_cbranch_scc1 h_npoll")
    a.label("h_nok")
    a("v_mov_b32 v22, %d" % L_NONCE)
    a("ds_write_b64 v22, v[20:21]")
    a("s_waitcnt lgkmcnt(0)")
    P = G.p1peel
    a("v_lshlrev_b32 v19, 2, v1")
    a("v_add_u32 v19, %d, v19" % L1_CS)
    a("v_mov_b32 v24, 0")
    for k in range(3): a("ds_write_b32 v19, v24 offset:%d" % (k * 256))
    a("s_waitcnt lgkmcnt(0)")
    for _ in range(P): R.bar()
    srd(a, SC, P_WS, WS_RSP, 16*2048*16)
    srd(a, SD, P_WS, WS_CSQ, 16*16*1024)
    a("v_lshlrev_b32 v18, 4, v1")
    a("s_lshl_b32 s70, s7, 9")
    a("s_add_u32 s70, s70, %d" % L1_ST)
    a("v_lshlrev_b32 v17, 3, v1")
    a("v_add_u32 v17, s70, v17")
    a("ds_read_b64 v[24:25], v17")
    a("v_mul_u32_u24 v19, 12, v1")
    a("v_add_u32 v20, %d, v19" % L1_CSA)
    for e in range(3): a("ds_read_b32 v%d, v20 offset:%d" % (28 + e, 4 * e))
    a("v_mov_b32 v26, s%d" % S_NONCE)
    a("v_mov_b32 v27, s%d" % S_NONCE)
    a("v_mov_b32 v31, s%d" % S_NONCE)
    a("s_lshl_b32 s70, s5, 11")
    a("s_lshl_b32 s71, s4, 7")
    a("s_add_u32 s70, s70, s71")
    a("s_lshl_b32 s71, s7, 6")
    a("s_add_u32 s70, s70, s71")
    a("s_lshl_b32 s70, s70, 4")
    a("s_lshl_b32 s72, s4, 4")
    a("s_add_u32 s72, s72, s5")
    a("s_lshl_b32 s72, s72, 10")
    a("s_waitcnt lgkmcnt(0)")
    a("buffer_store_dwordx4 v[24:27], v18, %s, s70 offen sc1" % S(SC))
    a("s_cmp_lg_u32 s7, 1")
    a("s_cbranch_scc1 h_nocsq")
    a("buffer_store_dwordx4 v[28:31], v18, %s, s72 offen sc1" % S(SD))
    a.label("h_nocsq")
    LD = min(P + 5, 11)
    for _ in range(LD - 1 - (P + 1)): R.bar()
    def ld_bases():
        a("s_lshl_b32 s74, s4, 7")
        a("s_lshl_b32 s71, s7, 6")
        a("s_add_u32 s74, s74, s71")
        a("s_lshl_b32 s74, s74, 4")
        a("s_lshl_b32 s75, s7, 7")
        a("s_add_u32 s75, s75, s5")
        a("s_lshl_b32 s75, s75, 10")
    def rs_load(k):
        a("buffer_load_dwordx4 %s, v18, %s, s74 offen sc1" % (vr(32 + 4*k, 4), S(SC)))
        a("s_add_u32 s74, s74, %d" % (2048 * 16))
    def cs_load(k):
        a("buffer_load_dwordx4 %s, v18, %s, s75 offen sc1" % (vr(96 + 4*k, 4), S(SD)))
        a("s_add_u32 s75, s75, %d" % (16 * 1024))
    def all_loads():
        ld_bases()
        for k in range(16): rs_load(k)
        for k in range(8): cs_load(k)
    ld_bases()
    nseg = 15 - (LD - 1)
    per = G.hper
    todo = [("r", k) for k in range(16)] + [("c", k) for k in range(8)]
    for sgm in range(nseg):
        for _ in range(per):
            if todo:
                ty, k = todo.pop(0)
                (rs_load if ty == "r" else cs_load)(k)
        R.bar()
    assert not todo
    tag_check(a, None, 160, "lt", all_loads, sub="hsub_tag1")
    call(a, "hsub_sum1")
    a("v_add_u32 v20, %d, v19" % L1_CS)
    for e in range(3): a("ds_add_f32 v20, v%d offset:%d" % (96 + e, 4 * e))
    call(a, "hsub_fin")
    a("ds_write_b64 v17, v[40:41]")
    a("s_waitcnt lgkmcnt(0)")
    R.bar()
    a.label("h_p1done")
    if G.touch_mode == 0:
        touches(a, [(P_WO, 1024*1024*2), (P_W1, 1024*3584*2), (P_W2, 3584*1024*2)], 200)

def helper_role(a):
    R = Role(a)
    a("s_sub_u32 s7, s3, 6")
    if G.hprio: a("s_setprio 3")
    srd(a, SF, P_WS, WS_FLAG, FLAG_SZ)
    a("v_mov_b32 v20, 0")
    a("v_lshlrev_b32 v21, 2, v1")
    a("v_add_u32 v21, %d, v21" % (L_TOP + 16))
    a("s_mov_b64 exec, 0xff")
    a("ds_write_b32 v21, v20")
    a("s_mov_b64 exec, -1")
    a("s_waitcnt lgkmcnt(0)")
    c = p1_cfg(); c.tmap(a, c)
    R.trace = True
    helper_p1(R)
    R.trace = False
    if G.prof:
        srd(a, SX, P_WS, WS_PROF + 0x10000, 0x40000)
        a("s_lshl_b32 s70, s2, 1")
        a("s_add_u32 s70, s70, s7")
        a("s_lshl_b32 s70, s70, 8")
        a("v_lshlrev_b32 v2, 2, v1")
        a("buffer_store_dword v255, v2, %s, s70 offen" % S(SX))
    R.bar()
    aux_q_part1(a, R)
    def poll_if_h0(name, pre, grp):
        a("s_cmp_lg_u32 s7, 0")
        a("s_cbranch_scc1 %s" % name)
        pre(a)
        flag_poll(a, 70, grp, 16)
        a.label(name)
    poll_if_h0("h_a_skip", lambda a: a("s_lshl_b32 s70, s5, 7"), FL_A)
    R.bar()
    kv_gather(a, True)
    R.bar()
    aux_q_part2(a)
    if G.stop_after <= 1:
        a("s_waitcnt vmcnt(0)")
        publish_flag(a, 1, lambda a: a("s_mov_b32 s71, s88"), FL_B, n=8)
        return R
    R.bar()
    a("s_waitcnt vmcnt(0)")
    publish_flag(a, 1, lambda a: a("s_mov_b32 s71, s88"), FL_B, n=8)
    def staged(name, cfg, grp, masks, nbar_after):
        cfg.tmap(a, cfg)
        if not G.staged:
            poll_if_h0(name, lambda a: a("s_lshl_b32 s70, s4, 7"), grp)
            for _ in masks: R.bar()
            return
        a("s_mov_b32 s%d, 0" % S_RDY)
        for k, mk in enumerate(masks):
            a("s_cmp_lg_u32 s7, 0")
            a("s_cbranch_scc1 %s_%d" % (name, k))
            a("s_lshl_b32 s70, s4, 7")
            poll_mask(a, 70, grp, mk)
            a.label("%s_%d" % (name, k))
            R.bar()
    imm = lambda v: (lambda a: a("s_mov_b32 s76, 0x%x" % v))
    c3 = p3_cfg()
    staged("h_b", c3, FL_B, [imm(0x3), imm(0x1f), imm(0xffff)], 0)
    bar_loop(R, 15, "h3_loop")
    if G.stop_after <= 3: return R
    c4 = p4_cfg()
    R.bar()
    def m4(extra):
        def f(a):
            a("s_lshl_b32 s76, 1, s4")
            a("s_or_b32 s76, s76, 0x%x" % extra)
        return f
    staged("h_c", c4, FL_C, [m4(0x3), m4(0x7), imm(0xffff)], 0)
    p4_tables(R)
    if G.stop_after <= 4: return R
    if G.p5v == 2:
        c5 = p6_cfg()
        R.bar()
        def m6(extra):
            def f(a):
                a("s_mul_i32 s77, s82, 3")
                a("s_lshl_b32 s76, %d, s77" % extra)
            return f
        staged("h_d", c5, FL_D, [m6(1), m6(3), imm(0xffff)], 0)
        R.nb += KA6 + KB6 - 1
        return R
    c5 = p5_cfg()
    R.bar()
    def m5(v0, v1):
        def f(a):
            a("s_cmp_eq_u32 s82, 0")
            a("s_cselect_b32 s76, 0x%x, s77" % v0) if False else None
            a("s_mov_b32 s76, 0x%x" % v0)
            a("s_cmp_eq_u32 s82, 0")
            a("s_cbranch_scc1 m5_%x" % v0)
            a("s_mov_b32 s76, 0x%x" % v1)
            a.label("m5_%x" % v0)
        return f
    staged("h_d", c5, FL_D, [m5(0x1, 0x200), m5(0x3, 0x600), imm(0xffff)], 0)
    R.nb += KKEEP - 1
    return R

def p4_tables(R):
    a = R.a
    srd(a, SA, P_WS, WS_HSTP, 32*2048*8)
    srd(a, SB, P_WS, WS_CS2, 16*16*2*1024)
    srd(a, SC, P_B1, 0, 3584*2)
    a("v_lshlrev_b32 v16, 3, v1")
    a("s_lshl_b32 s70, s4, 7")
    a("s_lshl_b32 s71, s7, 6")
    a("s_add_u32 s70, s70, s71")
    a("s_lshl_b32 s70, s70, 3")
    L = 32
    def st_loads(p0, p1):
        for p in range(p0, p1):
            a("s_add_u32 s73, s70, %d" % (p * 2048 * 8))
            a("buffer_load_dwordx2 %s, v16, %s, s73 offen sc1" % (vr(L + 2*p, 2), S(SA)))
    a("s_mov_b32 s74, s70")
    st_loads(0, 8)
    a("v_lshlrev_b32 v17, 2, v1")
    a("s_mul_i32 s72, s5, 448")
    a("s_mul_i32 s73, s7, 224")
    a("s_add_u32 s72, s72, s73")
    a("buffer_load_dword v100, v17, %s, s72 offen" % S(SC))
    R.bar()
    a("v_mul_u32_u24 v19, 12, v1")
    a("s_mul_i32 s70, s7, 448")
    a("s_add_u32 s70, s70, %d" % (L4_TAB + 3072))
    a("v_add_u32 v19, s70, v19")
    for e in range(3): a("ds_read_b32 v%d, v19 offset:%d" % (24 + e, 4 * e))
    a("v_mov_b32 v27, s%d" % S_NONCE)
    a("v_lshlrev_b32 v18, 4, v1")
    a("s_lshl_b32 s70, s4, 4")
    a("s_add_u32 s70, s70, s5")
    a("s_lshl_b32 s70, s70, 1")
    a("s_add_u32 s70, s70, s7")
    a("s_lshl_b32 s70, s70, 10")
    a("s_waitcnt lgkmcnt(0)")
    a("buffer_store_dwordx4 v[24:27], v18, %s, s70 offen sc1" % S(SB))
    a("s_mov_b32 s70, s74")
    R.bar()
    st_loads(8, 16); R.bar()
    st_loads(16, 24); R.bar()
    st_loads(24, 32); R.bar()
    R.bar(); R.bar()
    CB = 104
    def cs_loads(m0=0, m1=16):
        for mm in range(m0, m1):
            a("s_lshl_b32 s70, s5, 1")
            a("s_add_u32 s70, s70, s7")
            a("s_lshl_b32 s70, s70, 10")
            a("s_add_u32 s70, s70, %d" % (mm * 16 * 2 * 1024))
            a("buffer_load_dwordx4 %s, v18, %s, s70 offen sc1" % (vr(CB + 4*mm, 4), S(SB)))
    cs_loads(0, 8); R.bar()
    cs_loads(8, 16); R.bar()
    for _ in range(6): R.bar()
    tag_check(a, None, 170, "cs4", cs_loads, sub="hsub_tag4")
    call(a, "hsub_st4")
    call(a, "hsub_sum4")
    a("v_mul_f32 v%d, 0x3a800000, v%d" % (L, L))
    a("v_mul_f32 v%d, 0x3a800000, v%d" % (L + 1, L + 1))
    a("v_fma_f32 v%d, -v%d, v%d, v%d" % (L + 1, L, L, L + 1))
    a("v_max_f32 v%d, 0, v%d" % (L + 1, L + 1))
    a("v_add_f32 v%d, 0x3727c5ac, v%d" % (L + 1, L + 1))
    a("v_rsq_f32 v%d, v%d" % (L + 2, L + 1))
    a("v_mul_f32 v%d, v%d, v%d" % (L + 3, L, L + 2))
    a("v_sub_f32 v%d, 0, v%d" % (L + 3, L + 3))
    a("s_lshl_b32 s70, s7, 9")
    a("s_add_u32 s70, s70, %d" % (L4_TAB + 2048))
    a("v_add_u32 v20, s70, v16")
    a("ds_write_b64 v20, %s" % vr(L + 2, 2))
    a("v_lshlrev_b32 v102, 16, v100")
    a("v_and_b32 v103, 0xffff0000, v100")
    a("s_mul_i32 s70, s7, 448")
    a("s_add_u32 s70, s70, %d" % (L4_TAB + 1024))
    a("v_add_u32 v20, s70, v16")
    a("s_mov_b32 exec_lo, -1")
    a("s_mov_b32 exec_hi, 0x00ffffff")
    a("ds_write_b64 v20, v[102:103]")
    a("s_mov_b64 exec, -1")
    a("v_mul_u32_u24 v19, 12, v1")
    a("s_mul_i32 s70, s7, 448")
    a("s_add_u32 s70, s70, %d" % L4_TAB)
    a("v_add_u32 v19, s70, v19")
    a("s_mov_b32 exec_lo, -1")
    a("s_mov_b32 exec_hi, 0x1f")
    for e in range(3): a("ds_write_b32 v19, v%d offset:%d" % (CB + e, 4 * e))
    a("s_mov_b32 exec_lo, 0")
    a("s_mov_b32 exec_hi, 0x20")
    a("ds_write_b32 v19, v%d" % CB)
    a("s_mov_b64 exec, -1")
    a("s_waitcnt lgkmcnt(0)")
    R.bar()

def wave_sum(a, v, t):
    for r in (8, 4, 2, 1):
        a("v_add_f32_dpp v%d, v%d, v%d row_ror:%d row_mask:0xf bank_mask:0xf" % (v, v, v, r))
    xq(a, "v_add_f32", v, t)

def k1(a):
    n = "k1_kernel"
    kernel_begin(a, n)
    a("s_cmp_ge_u32 s2, 480")
    a("s_cbranch_scc1 k1_end")
    for sdst, nm in ((32, "x"), (34, "ws"), (36, "w1"), (38, "wqkv")):
        a("s_load_dwordx2 %s, s[0:1], %d" % (sr(sdst, 2), KA[nm]))
    a("v_lshrrev_b32 v2, 6, v0")
    a("v_and_b32 v1, 63, v0")
    a("v_readfirstlane_b32 s3, v2")
    a("s_waitcnt lgkmcnt(0)")
    a("s_cmp_ge_u32 s2, 256")
    a("s_cbranch_scc1 k1_cs")
    srd(a, 8, 32, 0, SZ_ACT)
    srd(a, 12, 34, WS_XN, SZ_ACT)
    a("s_lshl_b32 s4, s2, 3")
    a("s_add_u32 s4, s4, s3")
    a("s_lshl_b32 s20, s4, 13")
    a("s_lshl_b32 s4, s4, 11")
    a("v_lshlrev_b32 v2, 4, v1")
    a("buffer_load_dwordx4 v[4:7], v2, s[8:11], s4 offen")
    a("buffer_load_dwordx4 v[8:11], v2, s[8:11], s4 offen offset:1024")
    srd(a, 16, 38, 0, 1024*3072*2)
    a("v_lshlrev_b32 v3, 7, v1")
    a("buffer_load_dword v40, v3, s[16:19], s20 offen")
    a("s_or_b32 s21, s2, s3")
    a("s_cmp_lg_u32 s21, 0")
    a("s_cbranch_scc1 k1_nononce")
    a("s_memrealtime s[22:23]")
    srd(a, 24, 34, WS_NONCE, 64)
    a("s_waitcnt lgkmcnt(0)")
    a("s_or_b32 s22, s22, 1")
    a("s_xor_b32 s23, s23, 0x5bd1e995")
    a("v_mov_b32 v42, s22")
    a("v_mov_b32 v43, s23")
    a("v_mov_b32 v44, 0")
    a("s_mov_b64 exec, 1")
    a("buffer_store_dwordx2 v[42:43], v44, s[24:27], 0 offen")
    a("s_mov_b64 exec, -1")
    a.label("k1_nononce")
    a("s_waitcnt vmcnt(1)")
    X = 16
    for i in range(8):
        a("v_lshlrev_b32 v%d, 16, v%d" % (X + 2*i, 4 + i))
        a("v_and_b32 v%d, 0xffff0000, v%d" % (X + 2*i + 1, 4 + i))
    a("v_add_f32 v12, v%d, v%d" % (X, X+1))
    for i in range(2, 16): a("v_add_f32 v12, v12, v%d" % (X + i))
    wave_sum(a, 12, 13)
    a("v_mul_f32 v12, 0x3a800000, v12")
    for i in range(16): a("v_sub_f32 v%d, v%d, v12" % (X + i, X + i))
    a("v_mul_f32 v14, v%d, v%d" % (X, X))
    for i in range(1, 16): a("v_fmac_f32 v14, v%d, v%d" % (X + i, X + i))
    wave_sum(a, 14, 13)
    a("v_mov_b32 v15, 0x3727c5ac")
    a("v_fmac_f32 v15, 0x3a800000, v14")
    a("v_rsq_f32 v15, v15")
    for i in range(16): a("v_mul_f32 v%d, v%d, v15" % (X + i, X + i))
    for i in range(8): a("v_cvt_pk_bf16_f32 v%d, v%d, v%d" % (4 + i, X + 2*i, X + 2*i + 1))
    a("buffer_store_dwordx4 v[4:7], v2, s[12:15], s4 offen sc1")
    a("buffer_store_dwordx4 v[8:11], v2, s[12:15], s4 offen offset:1024 sc1")
    a("s_endpgm")
    a.label("k1_cs")
    srd(a, 8, 36, 0, 1024*3584*2)
    srd(a, 12, 34, WS_CS1P, 8*3584*4)
    a("s_sub_u32 s4, s2, 256")
    a("s_mul_hi_u32 s5, s4, 0x%x" % ((2**32 + 27)//28))
    a("s_mul_i32 s6, s5, 28")
    a("s_sub_u32 s6, s4, s6")
    a("v_lshrrev_b32 v2, 4, v0")
    a("v_mul_u32_u24 v2, 7168, v2")
    a("v_and_b32 v3, 15, v0")
    a("v_lshl_add_u32 v2, v3, 4, v2")
    a("s_mul_i32 s7, s5, %d" % (128*7168))
    a("s_lshl_b32 s16, s6, 8")
    a("s_add_u32 s7, s7, s16")
    for i in range(4):
        a("buffer_load_dwordx4 %s, v2, s[8:11], s7 offen" % vr(4 + 4*i, 4))
        if i < 3: a("s_add_u32 s7, s7, %d" % (32*7168))
    A = 24
    a("s_waitcnt vmcnt(0)")
    for d in range(4):
        a("v_lshlrev_b32 v%d, 16, v%d" % (A + 2*d, 4 + d))
        a("v_and_b32 v%d, 0xffff0000, v%d" % (A + 2*d + 1, 4 + d))
    for i in range(1, 4):
        for d in range(4):
            a("v_lshlrev_b32 v20, 16, v%d" % (4 + 4*i + d))
            a("v_and_b32 v21, 0xffff0000, v%d" % (4 + 4*i + d))
            a("v_add_f32 v%d, v%d, v20" % (A + 2*d, A + 2*d))
            a("v_add_f32 v%d, v%d, v21" % (A + 2*d + 1, A + 2*d + 1))
    for e in range(8): xq(a, "v_add_f32", A + e, 20)
    a("v_and_b32 v3, 15, v1")
    a("v_lshlrev_b32 v3, 5, v3")
    a("s_lshl_b32 s16, s3, 9")
    a("v_add_u32 v3, s16, v3")
    a("ds_write_b128 v3, %s" % vr(A, 4))
    a("ds_write_b128 v3, %s offset:16" % vr(A + 4, 4))
    a("s_waitcnt lgkmcnt(0)")
    a("s_barrier")
    a("s_cmp_ge_u32 s3, 2")
    a("s_cbranch_scc1 k1_end")
    a("v_lshlrev_b32 v3, 2, v0")
    for w in range(8): a("ds_read_b32 v%d, v3 offset:%d" % (4 + w, w * 512))
    a("s_waitcnt lgkmcnt(0)")
    for w in range(1, 8): a("v_add_f32 v4, v4, v%d" % (4 + w))
    a("s_mul_i32 s7, s5, %d" % (3584*4))
    a("s_lshl_b32 s16, s6, 9")
    a("s_add_u32 s7, s7, s16")
    a("buffer_store_dword v4, v3, s[12:15], s7 offen sc1")
    a.label("k1_end")
    a("s_endpgm")
    return dict(name=n, grid=480, block=512, lds=4096, vgpr=48)

def kp(a):
    n = "kp_kernel"
    kernel_begin(a, n)
    a("s_cmp_ge_u32 s2, 256")
    a("s_cbranch_scc1 kp_end")
    if G.prof:
        a("s_memrealtime s[96:97]")
    for sdst, nm in ((P_WS, "ws"), (P_X, "x"), (P_WQKV, "wqkv"), (P_WPHI, "wphi"), (P_WO, "wo"), (P_W1, "w1"),
                     (P_B1, "b1"), (P_W2, "w2"), (P_B2, "b2"), (P_OUT, "out"), (P_DBG, "dbg")):
        a("s_load_dwordx2 %s, s[0:1], %d" % (sr(sdst, 2), KA[nm]))
    a("s_and_b32 s30, s2, 7")
    a("s_lshr_b32 s31, s2, 3")
    a("v_lshrrev_b32 v2, 6, v0")
    a("v_and_b32 v1, 63, v0")
    a("v_readfirstlane_b32 s3, v2")
    a("s_waitcnt lgkmcnt(0)")
    if G.loader_first:
        a("s_cmp_lt_u32 s3, 4")
        a("s_cbranch_scc1 kp_compute")
        a("s_cmp_ge_u32 s3, 6")
        a("s_cbranch_scc1 kp_helper")
        Rl = loader_role(a)
        a("s_endpgm")
        a.label("kp_compute")
    else:
        a("s_cmp_ge_u32 s3, 6")
        a("s_cbranch_scc1 kp_helper")
        a("s_cmp_ge_u32 s3, 4")
        a("s_cbranch_scc1 kp_loader")
    if G.prof: a("v_writelane_b32 v255, s96, 0")
    Rc = compute_role(a)
    if G.prof:
        a("s_waitcnt vmcnt(0)")
        stamp(a, 15)
        a("s_cmp_lg_u32 s7, 0")
        a("s_cbranch_scc1 kp_end")
        srd(a, SA, P_WS, WS_PROF, 256*256)
        a("s_lshl_b32 s70, s2, 8")
        a("v_lshlrev_b32 v2, 2, v1")
        a("buffer_store_dword v255, v2, %s, s70 offen" % S(SA))
    a("s_endpgm")
    if not G.loader_first:
        a.label("kp_loader")
        Rl = loader_role(a)
        a("s_endpgm")
    a.label("kp_helper")
    Rh = helper_role(a)
    a("s_endpgm")
    helper_subs(a)
    a.label("kp_end")
    a("s_endpgm")
    a.label("kp_codeend")
    print("barriers: compute %d loader %d helper %d" % (Rc.nb, Rl.nb, Rh.nb))
    assert Rc.nb == Rl.nb == Rh.nb
    return dict(name=n, grid=256, block=512, lds=163840, vgpr=256)

def build(prof=False, stop_after=5):
    G.prof = prof; G.stop_after = stop_after
    body = Asm()
    descs = [kp(body)]
    head = HEADER
    for d in descs:
        head += "; @launch kernel=%s grid=(%d,1,1) block=(%d,1,1) lds=%d\n" % (d["name"], d["grid"], d["block"], d["lds"])
    btxt = body.text()
    if G.xsc1:
        btxt = "\n".join((l.rstrip()[:-4] + " sc1 lds") if (l.startswith("buffer_load_dwordx4") and l.rstrip().endswith(" lds") and S(SX) in l) else l for l in btxt.split("\n"))
    txt = head + '.amdgcn_target "amdgcn-amd-amdhsa--gfx950"\n' + btxt
    txt += '.section .rodata,"a"\n'
    for d in descs:
        txt += ".p2align 6\n" + kernel_desc(d["name"], d["vgpr"], 102)
    return txt

if __name__ == "__main__":
    import sys
    stop = 5
    G.st_touch = "nost" not in sys.argv
    G.code_pf = "nocpf" not in sys.argv
    G.tlb_warm = "tlb" in sys.argv
    G.hprio = "nohprio" not in sys.argv
    G.hstage = False
    G.t2sleep = 16
    G.p5v = 2 if "p6" in sys.argv else 1
    G.p6n1 = 8; G.p6n2 = 3
    for x in sys.argv:
        if x.startswith("n1_"): G.p6n1 = int(x[3:])
        if x.startswith("n2_"): G.p6n2 = int(x[3:])
    G.p5ns = 4
    for x in sys.argv:
        if x.startswith("p5ns"): G.p5ns = int(x[4:])
    G.dry = "dry" in sys.argv
    G.hper = 8
    for x in sys.argv:
        if x.startswith("hper"): G.hper = int(x[4:])
    G.early_touch = 0
    for x in sys.argv:
        if x.startswith("et"): G.early_touch = int(x[2:])
    G.loader_first = "nolf" not in sys.argv
    G.t1sleep = 0
    G.xsc1 = "noxsc1" not in sys.argv
    for x in sys.argv:
        if x.startswith("t1s"): G.t1sleep = int(x[3:])
    G.staged = "nostaged" not in sys.argv
    G.jit_cpf = "nojit" not in sys.argv
    G.p5skip = "nop5skip" not in sys.argv
    G.p5pre = "nop5pre" not in sys.argv
    G.x_noh4 = "noh4" in sys.argv
    G.x_norot4 = "norot4" in sys.argv
    G.touch_mode = 1
    for x in sys.argv:
        if x.startswith("tm"): G.touch_mode = int(x[2:])
    for x in sys.argv:
        if x.startswith("peel"): G.p1peel = int(x[4:])
        if x.startswith("sleep"): G.t2sleep = int(x[5:])
    for x in sys.argv:
        if x.startswith("stop"): stop = int(x[4:])
    open(sys.argv[1], "w").write(build(prof="prof" in sys.argv, stop_after=stop))
```
